```python
import torch

def _softmax(x, axis=-1):
    return torch.softmax(x, dim=axis)

def _gelu(x):
    return torch.nn.functional.gelu(x, approximate='tanh')

def _silu(x):
    return torch.nn.functional.silu(x)

def _sigmoid(x):
    return torch.sigmoid(x)

def _layernorm(x, axis=-1, eps=1e-05):
    m = x.mean(dim=axis, keepdim=True)
    v = x.var(dim=axis, keepdim=True, unbiased=False)
    return (x - m) / torch.sqrt(v + eps)

def _scatter_add(tgt, idx, src, axis=0):
    return tgt.clone().index_add_(axis, idx, src)

def _segment_sum(src, seg, n):
    out = torch.zeros((n,) + src.shape[1:], dtype=src.dtype)
    return out.index_add_(0, seg, src)

def _pad(x, pw):
    flat = tuple((v for pair in reversed(pw) for v in pair))
    return torch.nn.functional.pad(x, flat)
kernel_name = 'parallel_sum__memory_aug_recurrent_mem_tr__dense_activation_relu__prompt'

def setup_inputs():

    _w = lambda a: (lambda t: t.to(torch.bfloat16) if t.is_floating_point() else t)(torch.as_tensor(a))

    def _A_setup():
        B, S, Dm = (1, 2048, 640)
        H, Dh = (32, 192)
        M, seg = (8, 32)
        seg = min(seg, S)
        S = S // seg * seg
        return {'x': _w((lambda *s: torch.randn(*s, dtype=torch.bfloat16) * 0.05)(B, S, Dm)), 'mem0': _w((lambda *s: torch.randn(*s, dtype=torch.bfloat16) * 1.6)(B, M, Dm)), 'Wq': _w((lambda *s: torch.randn(*s, dtype=torch.bfloat16) * 0.8)(Dm, H, Dh) * Dm ** (-0.5)), 'Wk': _w((lambda *s: torch.randn(*s, dtype=torch.bfloat16) * 0.8)(Dm, H, Dh) * Dm ** (-0.5)), 'Wv': _w((lambda *s: torch.randn(*s, dtype=torch.bfloat16) * 1.6)(Dm, H, Dh) * Dm ** (-0.5)), 'Wo': _w((lambda *s: torch.randn(*s, dtype=torch.bfloat16) * 1.6)(H, Dh, Dm) * (H * Dh) ** (-0.5)), 'seg_len': seg}
    _A_in = _A_setup()

    def _B_setup():
        B, S, D, Dff = (1, 2048, 640, 1536)
        return {'x': _w((lambda *s: torch.randn(*s, dtype=torch.bfloat16) * 0.05)(B, S, D)), 'w1': _w((lambda *s: torch.randn(*s, dtype=torch.bfloat16) * 0.05)(D, Dff)), 'w2': _w((lambda *s: torch.randn(*s, dtype=torch.bfloat16) * 0.05)(Dff, D))}
    _B_in = _B_setup()
    return {'A_x': _A_in['x'], 'A_mem0': _A_in['mem0'], 'A_Wq': _A_in['Wq'], 'A_Wk': _A_in['Wk'], 'A_Wv': _A_in['Wv'], 'A_Wo': _A_in['Wo'], 'A_seg_len': _A_in['seg_len'], 'B_x': _B_in['x'], 'B_w1': _B_in['w1'], 'B_w2': _B_in['w2']}

def reference(A_x, A_mem0, A_Wq, A_Wk, A_Wv, A_Wo, A_seg_len, B_x, B_w1, B_w2):

    def _A_ref(x, mem0, Wq, Wk, Wv, Wo, seg_len):
        B, S, Dm = x.shape
        H, Dh = (Wq.shape[1], Wq.shape[2])
        M = mem0.shape[1]
        scale = Dh ** (-0.5)
        n_seg = S // seg_len
        L = M + seg_len
        idx = torch.arange(L)
        mask = (idx[:, None] < M) | (idx[:, None] >= idx[None, :])
        mem = mem0
        outs = []
        for s in range(n_seg):
            xs = x[:, s * seg_len:(s + 1) * seg_len, :].clone()
            h = torch.concatenate([mem, xs], axis=1)
            q = torch.einsum('btd,dhe->bhte', h, Wq)
            k = torch.einsum('btd,dhe->bhte', h, Wk)
            v = torch.einsum('btd,dhe->bhte', h, Wv)
            scores = torch.einsum('bhqe,bhke->bhqk', q, k) * scale
            scores = torch.where(mask[None, None], scores, -1000000000.0)
            p = _softmax(scores, axis=-1)
            o = torch.einsum('bhqk,bhke->bhqe', p, v)
            o = torch.einsum('bhte,hed->btd', o, Wo)
            mem = o[:, :M, :].clone()
            outs.append(o[:, M:, :])
        return torch.concatenate(outs, axis=1)

    def _B_ref(x, w1, w2):
        h = torch.einsum('bsd,df->bsf', x, w1)
        zero = torch.zeros_like(h)
        h = torch.maximum(h, zero)
        return torch.einsum('bsf,fd->bsd', h, w2)
    x = A_x
    xn = _layernorm(x, axis=-1)
    return x + _A_ref(xn, A_mem0, A_Wq, A_Wk, A_Wv, A_Wo, A_seg_len) + _B_ref(xn, B_w1, B_w2)
```

```python
import re

_REG = re.compile(r'^(-|abs\()?([vas])(?:(\d+)|\[(\d+):(\d+)\])\)?$')


def regs_of(tok):
    tok = tok.strip()
    if tok in ('vcc', 'vcc_lo', 'vcc_hi'):
        return {('s', 'vcc')}
    if tok in ('exec', 'exec_lo', 'exec_hi'):
        return {('s', 'exec')}
    if tok == 'm0':
        return {('s', 'm0')}
    m = _REG.match(tok)
    if not m:
        return set()
    f = m.group(2)
    if m.group(3) is not None:
        return {(f, int(m.group(3)))}
    return {(f, i) for i in range(int(m.group(4)), int(m.group(5)) + 1)}


TRANS = ('v_exp_f32', 'v_log_f32', 'v_rcp_f32', 'v_rsq_f32', 'v_sqrt_f32', 'v_sin_f32', 'v_cos_f32')


class Ins:
    def __init__(self, text):
        self.text = text
        t = text.split(';')[0].strip()
        self.label = t.endswith(':')
        self.directive = t.startswith('.') and not self.label
        self.op = '' if (self.label or self.directive or not t) else t.split()[0]
        rest = t[len(self.op):].strip() if self.op else ''
        parts = [p.strip() for p in rest.split(',')] if rest else []
        self.mods = ''
        if parts:
            sp = parts[-1].split()
            if len(sp) > 1:
                parts[-1] = sp[0]
                self.mods = ' '.join(sp[1:])
        self.ops = parts
        self.classify()

    def classify(self):
        op, o = self.op, self.ops
        R = regs_of
        self.wr, self.rd = set(), set()
        self.kind = 'other'
        self.A = self.B = self.C = set()
        allr = lambda lst: set().union(*[R(x) for x in lst]) if lst else set()
        if op.startswith('v_mfma'):
            self.kind = 'mfma'
            self.wr = R(o[0]); self.A = R(o[1]); self.B = R(o[2]); self.C = R(o[3])
            self.rd = self.A | self.B | self.C
            self.passes = 8 if '32x32' in op else 4
        elif op.startswith('v_smfmac'):
            self.kind = 'mfma'
            self.wr = R(o[0]); self.A = R(o[1]) | R(o[3]); self.B = R(o[2]); self.C = R(o[0])
            self.rd = self.A | self.B | self.C
            self.passes = 8 if '32x32' in op else 4
        elif op.startswith('v_permlane') and 'swap' in op:
            self.kind = 'valu'
            self.wr = R(o[0]) | R(o[1]); self.rd = set(self.wr)
        elif op.startswith('v_'):
            self.kind = 'valu'
            self.wr = R(o[0]); self.rd = allr(o[1:])
            if op.startswith(('v_add_co', 'v_sub_co', 'v_addc_co')):
                self.wr |= R(o[1]); self.rd = allr(o[2:])
            if op.startswith(('v_fmac', 'v_dot2c')) or 'dpp' in op or op.startswith('v_writelane'):
                self.rd |= R(o[0])
        elif op.startswith('ds_read'):
            self.kind = 'ds'
            self.wr = R(o[0]); self.rd = allr(o[1:])
        elif op.startswith('ds_'):
            self.kind = 'ds'
            self.rd = allr(o)
        elif op.startswith('buffer_load'):
            self.kind = 'vmem'
            if 'lds' in self.mods.split():
                self.rd = allr(o) | {('s', 'm0')}
                self.ldsdma = True
            else:
                self.wr = R(o[0]); self.rd = allr(o[1:])
        elif op.startswith('buffer_store'):
            self.kind = 'vmem'
            self.rd = allr(o)
            self.data = R(o[0])
        elif op.startswith('buffer_atomic'):
            self.kind = 'vmem'
            self.rd = allr(o)
            if 'sc0' in self.mods.split():
                self.wr = R(o[0])
        elif op.startswith('s_'):
            self.kind = 'salu'
            if op.startswith(('s_cmp', 's_cbranch', 's_branch', 's_waitcnt', 's_nop', 's_barrier', 's_endpgm',
                              's_sleep', 's_setprio', 's_bitcmp')):
                self.rd = allr(o)
            else:
                self.wr = R(o[0]) if o else set(); self.rd = allr(o[1:])
                if 'saveexec' in op:
                    self.wr |= {('s', 'exec')}

    def states(self):
        if self.label or self.directive or not self.op:
            return 0
        if self.op == 's_nop':
            return int(self.ops[0], 0) + 1
        return 1


def isv(s):
    return {r for r in s if r[0] in 'va'}


def iss(s):
    return {r for r in s if r[0] == 's'}


def need(p, c):
    n = 0
    if p.kind == 'valu':
        vw = isv(p.wr); sw = iss(p.wr)
        if c.kind == 'mfma' and vw & c.rd:
            n = max(n, 2)
        if c.kind == 'valu':
            if ('dpp' in c.op or c.op.startswith('v_permlane')) and vw & c.rd:
                n = max(n, 2)
            if c.op.startswith(('v_readfirstlane', 'v_readlane')) and vw & c.rd:
                n = max(n, 1)
            if p.op.startswith(TRANS) and not c.op.startswith(TRANS) and vw & c.rd:
                n = max(n, 1)
            if sw & c.rd:
                n = max(n, 4 if c.op.startswith(('v_readlane', 'v_writelane')) else 2)
            if 'sdwa' in p.op and vw & (c.rd | c.wr):
                n = max(n, 1)
            if p.op.startswith('v_dot') and p.op != c.op and vw & (c.rd | c.wr):
                n = max(n, 3)
        if c.kind == 'vmem' and sw & c.rd:
            n = max(n, 5)
        if c.kind == 'salu' and sw & c.rd:
            n = max(n, 1)
        if c.op.startswith('s_cbranch_vcc') and ('s', 'vcc') in sw:
            n = max(n, 1)
        if p.op.startswith('v_dot') and c.kind in ('mfma', 'ds', 'vmem') and vw & c.rd:
            n = max(n, 3)
    if p.kind == 'mfma':
        big = {4: 8, 8: 12}[p.passes]
        if c.kind == 'mfma':
            if p.wr & (c.A | c.B):
                n = max(n, big)
            if p.wr & c.C:
                if not (p.wr == c.C and p.passes == c.passes):
                    n = max(n, {4: 6, 8: 10}[p.passes])
            elif p.wr & c.wr:
                n = max(n, {4: 6, 8: 10}[p.passes])
        elif c.kind in ('valu', 'vmem', 'ds'):
            if p.wr & (c.rd | c.wr):
                n = max(n, big)
            if c.kind == 'valu' and p.C & c.wr:
                n = max(n, {4: 3, 8: 7}[p.passes])
    if p.kind == 'salu':
        if ('s', 'm0') in p.wr and getattr(c, 'ldsdma', False):
            n = max(n, 1)
    if p.kind == 'vmem' and hasattr(p, 'data') and len(p.data) >= 3:
        if p.data & c.wr:
            n = max(n, 2)
    return n


class Asm:
    def __init__(self):
        self.lines = []
        self.uid = 0

    def __call__(self, fmt, *a):
        for ln in (fmt % a if a else fmt).split('\n'):
            ln = ln.strip()
            if ln:
                self.lines.append(ln)

    def label(self, name):
        self.lines.append(name + ':')

    def newlabel(self, base='L'):
        self.uid += 1
        return '%s_%d' % (base, self.uid)

    def finish(self, window=14):
        out = []
        nins = 0
        for ln in self.lines:
            c = Ins(ln)
            if c.op:
                d = 0
                req = 0
                for p in reversed(out):
                    if p.op in ('s_branch', 's_endpgm'):
                        break
                    if p.op:
                        r = need(p, c)
                        if r - d > req:
                            req = r - d
                    d += p.states()
                    if d >= window:
                        break
                if req > 0:
                    out.append(Ins('s_nop %d' % (req - 1)))
                    nins += 1
            out.append(c)
        pos = {i.text.split(';')[0].strip()[:-1]: k for k, i in enumerate(out) if i.label}
        errs = []
        for k, b in enumerate(out):
            if b.op.startswith(('s_cbranch', 's_branch')):
                t = pos[b.ops[0]]
                before = []
                d = 0
                j = k
                while j >= 0 and d < window:
                    if j < k and out[j].op in ('s_branch', 's_endpgm'):
                        break
                    before.append(out[j]); d += out[j].states(); j -= 1
                dd = 0
                j = t
                while j < len(out) and dd < window:
                    c = out[j]
                    if c.op:
                        d = dd
                        for p in before:
                            if p.op:
                                r = need(p, c)
                                if r > d:
                                    errs.append('branch hazard: %s -> %s (via %s) need %d have %d' % (p.text, c.text, b.text, r, d))
                            d += p.states()
                        if c.op in ('s_branch', 's_endpgm'):
                            break
                    dd += c.states(); j += 1
        if errs:
            raise RuntimeError('\n'.join(errs))
        self.n_nops = nins
        return '\n'.join((i.text if i.label else '    ' + i.text) for i in out) + '\n'


def v(a, n=1):
    return 'v%d' % a if n == 1 else 'v[%d:%d]' % (a, a + n - 1)


def a_(a, n=1):
    return 'a%d' % a if n == 1 else 'a[%d:%d]' % (a, a + n - 1)


def s(a, n=1):
    return 's%d' % a if n == 1 else 's[%d:%d]' % (a, a + n - 1)


class Stream:
    def __init__(self, asm):
        self.A = asm
        self.q = []

    def drain(self):
        if self.q:
            self.A('s_waitcnt lgkmcnt(0)')
        self.q = []

    def assume(self, lines):
        for ln in lines:
            self.q.append(Ins(ln).wr)

    def __call__(self, fmt, *a):
        ln = fmt % a if a else fmt
        i = Ins(ln)
        if i.op == 's_waitcnt' and 'lgkmcnt(0)' in ln:
            self.q = []
        touch = i.rd | i.wr
        last = -1
        for k, d in enumerate(self.q):
            if d & touch:
                last = k
        if last >= 0:
            left = len(self.q) - 1 - last
            self.A('s_waitcnt lgkmcnt(%d)', min(left, 15))
            self.q = self.q[last + 1:] if left <= 15 else self.q[-15:]
        self.A(ln)
        if i.kind == 'ds':
            self.q.append(i.wr)
```

```python
FL_XN = 0x0000
FL_P1 = 0x1000
FL_P2 = 0x2000
FL_PX = 0x2400
FL_ZM = 0x2800
STAMP = 0x4000
ML = 0x10000
MG = 0x20000
PR = 0x30000
ZL = 0x40000
XN = 0x100000
QX = 0x400000
KX = 0x1C00000
VX = 0x3400000
PX = 0x5200000
ZMG = 0x5700000
VO = 0x6B00000
MEMDBG = 0xD000000
TRASH = 0xE000000
WS_BYTES = 0x10000000
NAME = 'parallel_sum__memory_aug_recurrent_mem_tr__dense_activation_relu__prompt'
COFF = [0, 3, 5, 7]
```

```python
from asmlib import v, a_, s, Stream
from layout import *


def imp(g):
    globals().update({k: g[k] for k in g if not k.startswith('__') and k not in ('role_rv', 'role_f', 'role_rq')})


def gate(vFL, mkaddr, vt, ssoff, sNEED, sleep=1):
    L, D = A.newlabel('Lfg'), A.newlabel('Lfgd')
    A('v_cmp_gt_u32 vcc, s%d, v%d', sNEED, vFL)
    A('s_cbranch_vccz %s', D)
    if mkaddr:
        A(mkaddr)
    A.label(L)
    A('buffer_load_dword v%d, v%d, %s, %s offen sc1', vFL, vt, WS, ssoff)
    A('s_waitcnt vmcnt(0)')
    A('v_cmp_gt_u32 vcc, s%d, v%d', sNEED, vFL)
    A('s_cbranch_vccz %s', D)
    poll_tail(L, D, sleep=sleep)


def role_rv(g):
    imp(g)
    A.label('L_RV')
    if role_off('RV'):
        return
    lane = 1
    NL, NB = 18, 3
    MEM, VM, WL = 0, 10240, 16384
    RED = VM
    assert WL + 4 * NL * 2048 <= 163840
    vCH, vMST, vI, vR = 0, 1, 2, 4
    vIDX, vL16, vWL, vIDX2, vVMW, vVMR, vZST, vZLD, vPLD, vPMLD, vRR0, vRR1, vFL = range(7, 20)
    ACC1, R4, AR, LRAW, A2, STG, VOR, VW = 20, 32, 40, 80, 92, 104, 128, 176
    LF = AR + 12
    ZS, PP = AR + 12, AR + 24
    ACCC = AR
    TT = A2
    acc2 = lambda T: AR + 4 * T if T < 3 else (LRAW + 4 * (T - 3) if T < 6 else (R4 + 4 * (T - 6) if T < 8 else ACC1 + 4 * (T - 8)))
    sR0, sR1, sR2, sP0, sP1, sZ0, sZ1, sVO = s0_, s1_, s2_, s3_, s4_, s5_, s6_, s7_
    sLB, sGB, sFLG, sNEED, sZG, sD2, sFA, sT0, sZLD, sOWN = 78, 79, 3, 69, 100, 101, 55, 54, 53, 52
    seq = [('v', t, i) for i in range(3) for t in range(3)]
    seq += [('v', t, i) for t in range(3) for i in range(3, 10)]
    seq += [('o', T, 0) for T in range(10)]
    seq += [('o', T, 1) for T in range(6)]
    seq += [('o', T, 2) for T in range(6)]
    seq += [('o', 6, 1), ('o', 7, 1), ('o', 6, 2), ('o', 7, 2), ('o', 8, 1), ('o', 9, 1), ('o', 8, 2), ('o', 9, 2)]
    loc = plan(seq, NL, VW)

    srd(16, pWV, 640 * 6144 * 2)
    srd(20, pWO, 640 * 6144 * 2)
    A('s_lshl_b32 s%d, s%d, 4', sFLG, sHEAD)
    A('s_lshl_b32 s%d, s%d, 2', sA, sW)
    A('s_add_u32 s%d, s%d, s%d', sFLG, sFLG, sA)
    A('s_add_u32 s%d, s%d, %d', sFLG, sFLG, FL_ZM)
    zero_flag(2, sFLG)
    A('s_mul_i32 s%d, s%d, 3', sT0, sIDX)
    A('s_lshl_b32 s%d, s%d, 1', sA, sIDX)
    A('s_add_u32 s%d, s%d, 8', sA, sA)
    A('s_cmp_lt_u32 s%d, 8', sIDX)
    A('s_cselect_b32 s%d, s%d, s%d', sT0, sT0, sA)
    A('s_cselect_b32 s%d, 2, 1', sD2)
    A('s_mul_i32 s%d, s%d, 10240', sZ0, sHEAD)
    A('s_add_u32 s%d, s%d, %d', sZ0, sZ0, ZL)
    A('s_add_u32 s%d, s%d, %d', sZ1, sZ0, 32 * 10240)
    A('s_mul_i32 s%d, s%d, 10240', sOWN, sG)
    for i in range(4):
        A('v_mov_b32 v%d, -1', 4 + i)
    A('v_lshlrev_b32 v8, 4, v%d', lane)
    A('s_mul_i32 s%d, s%d, 2560', sA, sW)
    A('s_add_u32 s%d, s%d, s%d', sA, sA, sZ0)
    for off in (0, 1024, 1536):
        A('buffer_store_dwordx4 v[4:7], v8, %s, s%d offen offset:%d sc1', WS, sA, off)

    def mk_mst(dst, t):
        A('s_add_u32 s%d, s%d, s%d', sA, sT0, sW)
        A('s_lshl_b32 s%d, s%d, 8', sA, sA)
        A('s_cmp_le_u32 s%d, s%d', sW, sD2)
        A('s_cselect_b32 s%d, s%d, 0x%x', sA, sA, OOB)
        A('v_lshlrev_b32 v%d, 2, v%d', t, lane)
        A('v_add_u32 v%d, s%d, v%d', dst, sA, t)
    mk_mst(9, 10)
    A('v_bfe_u32 v10, v%d, 2, 3', lane)
    A('v_mul_u32_u24 v10, 1280, v10')
    A('v_and_b32 v11, 3, v%d', lane)
    A('v_lshl_add_u32 v10, v11, 3, v10')
    A('v_lshrrev_b32 v11, 5, v%d', lane)
    A('v_lshl_add_u32 v10, v11, 2, v10')
    A('s_add_u32 s%d, s%d, s%d', sA, sT0, sW)
    A('s_lshl_b32 s%d, s%d, 5', sA, sA)
    A('s_cmp_eq_u32 s%d, 0', sG)
    A('s_cselect_b32 s%d, s%d, 0x%x', sA, sA, OOB)
    A('v_add_u32 v10, s%d, v10', sA)
    A('buffer_load_dword v11, v10, %s, 0 offen', MEM0)
    for base in (ML, MG):
        A('s_add_u32 s%d, s%d, %d', sA, sOWN, base + 20480)
        A('buffer_store_dword v4, v9, %s, s%d offen sc1', WS, sA)
    A('s_waitcnt vmcnt(2)')
    A('v_min_u32 v11, -2, v11')
    for base in (ML, MG):
        A('s_add_u32 s%d, s%d, %d', sA, sOWN, base)
        A('buffer_store_dword v11, v9, %s, s%d offen sc1', WS, sA)
    A('s_mov_b32 s%d, 12288', sR0)
    A('s_mul_i32 s%d, s%d, 384', sR1, sHEAD)
    A('s_mul_i32 s%d, s%d, %d', sR2, sHEAD, 192 * 1280)
    st1 = stages_n192(WA, sR0, sR1, lambda w, st, kkl, j, t: wpair(loc, ('v', t, (st - COFF[w]) % 10), 2 * kkl + j), lane)
    st2 = stages_k192(WB, sR2, lambda E, T: wpair(loc, ('o', T, E % 3), E // 3), lane)
    run_stages(st1 + st2, first_hook=lambda: arrive_init(2), wsel=True)
    A('s_mul_i32 s%d, s%d, %d', sA, sW, NL * 2048)
    A('v_lshlrev_b32 v%d, 4, v%d', vWL, lane)
    A('s_add_u32 s%d, s%d, %d', sA, sA, WL)
    A('v_add_u32 v%d, s%d, v%d', vWL, sA, vWL)
    park_to_lds(NL, vWL)
    stamp(1)
    common_consts(lane, vCH, vR, vIDX, TT, vL16)
    A('v_mov_b32 v%d, v%d', vI, TT)
    A('v_mov_b32 v%d, v%d', vI + 1, TT + 1)
    A('v_xor_b32 v%d, 0x0a0a, v%d', vIDX2, vIDX)
    r_, g_, g0, g1, t0, t1, oob = range(TT, TT + 7)
    A('v_and_b32 v%d, 15, v%d', r_, lane)
    A('v_lshrrev_b32 v%d, 4, v%d', g_, lane)
    A('v_and_b32 v%d, 1, v%d', g0, g_)
    A('v_lshrrev_b32 v%d, 1, v%d', g1, g_)
    A('v_mov_b32 v%d, 0x%x', oob, OOB)
    A('v_lshrrev_b32 v%d, 2, v%d', t0, r_)
    A('v_and_b32 v%d, 3, v%d', t1, r_)
    A('v_lshl_add_u32 v%d, v%d, 3, v%d', t0, t0, t1)
    A('v_lshlrev_b32 v%d, 4, v%d', vVMW, t0)
    A('v_lshl_add_u32 v%d, v%d, 3, v%d', vVMW, g0, vVMW)
    A('v_lshl_add_u32 v%d, v%d, 2, v%d', vVMW, g1, vVMW)
    A('s_lshr_b32 s%d, s%d, 1', sA, sW)
    A('s_lshl_b32 s%d, s%d, 9', sA, sA)
    A('s_and_b32 s%d, s%d, 1', sB, sW)
    A('s_lshl_b32 s%d, s%d, 6', sB, sB)
    A('s_add_u32 s%d, s%d, s%d', sA, sA, sB)
    A('s_add_u32 s%d, s%d, %d', sA, sA, VM)
    A('v_add_u32 v%d, s%d, v%d', vVMW, sA, vVMW)
    A('v_lshlrev_b32 v%d, 8, v%d', vVMR, g_)
    A('v_bfe_u32 v%d, v%d, 3, 1', t0, lane)
    A('v_lshl_add_u32 v%d, v%d, 6, v%d', vVMR, t0, vVMR)
    A('v_bfe_u32 v%d, v%d, 2, 1', t0, lane)
    A('v_lshl_add_u32 v%d, v%d, 4, v%d', vVMR, t0, vVMR)
    A('v_bfe_u32 v%d, v%d, 1, 1', t0, lane)
    A('v_lshl_add_u32 v%d, v%d, 5, v%d', vVMR, t0, vVMR)
    A('v_and_b32 v%d, 1, v%d', t0, lane)
    A('v_lshl_add_u32 v%d, v%d, 3, v%d', vVMR, t0, vVMR)
    A('v_add_u32 v%d, %d, v%d', vVMR, VM, vVMR)
    A('v_lshlrev_b32 v%d, 4, v%d', t1, r_)
    A('v_lshl_add_u32 v%d, v%d, 8, v%d', vZST, g1, t1)
    A('v_lshl_add_u32 v%d, v%d, 3, v%d', vZST, g0, vZST)
    A('s_mul_i32 s%d, s%d, 2560', sA, sW)
    A('v_add_u32 v%d, s%d, v%d', vZST, sA, vZST)
    A('v_mul_u32_u24 v%d, 10240, v%d', vZLD, g_)
    A('v_add_u32 v%d, v%d, v%d', vZLD, vZLD, t1)
    A('v_mul_u32_u24 v%d, 640, v%d', vPLD, g1)
    A('v_lshl_add_u32 v%d, v%d, 8, v%d', vPLD, g0, vPLD)
    A('v_add_u32 v%d, v%d, v%d', vPLD, vPLD, t1)
    A('v_mul_u32_u24 v%d, 640, v%d', vPMLD, g_)
    A('v_add_u32 v%d, v%d, v%d', vPMLD, vPMLD, t1)
    A('v_add_u32 v%d, 512, v%d', vPMLD, vPMLD)
    A('v_cmp_gt_u32 vcc, 8, v%d', r_)
    A('v_cndmask_b32 v%d, v%d, v%d, vcc', vPMLD, oob, vPMLD)
    m_, n_ = r_, g_
    A('v_bfe_u32 v%d, v%d, 2, 3', m_, lane)
    A('v_and_b32 v%d, 3, v%d', n_, lane)
    A('v_lshlrev_b32 v%d, 2, v%d', n_, n_)
    A('v_lshrrev_b32 v%d, 5, v%d', t0, lane)
    A('v_lshl_add_u32 v%d, v%d, 1, v%d', n_, t0, n_)
    A('v_lshrrev_b32 v%d, 2, v%d', t0, m_)
    A('v_lshl_add_u32 v%d, v%d, 4, v%d', n_, t0, n_)
    A('v_and_b32 v%d, 3, v%d', t0, m_)
    A('v_lshlrev_b32 v%d, 2, v%d', t0, t0)
    A('v_lshl_add_u32 v%d, v%d, 4, v%d', t0, n_, t0)
    A('s_and_b32 s%d, s%d, 1', sA, sW)
    A('s_lshl_b32 s%d, s%d, 9', sA, sA)
    A('v_add_u32 v%d, s%d, v%d', t0, sA, t0)
    A('v_bfe_u32 v%d, v%d, 1, 1', t1, m_)
    A('v_lshl_add_u32 v%d, v%d, 5, v%d', t1, t1, n_)
    A('v_lshlrev_b32 v%d, 3, v%d', t1, t1)
    A('v_and_b32 v%d, 1, v%d', g0, m_)
    A('v_lshl_add_u32 v%d, v%d, 2, v%d', t1, g0, t1)
    A('v_add_u32 v%d, 1024, v%d', t1, t1)
    A('s_cmp_eq_u32 s%d, 2', sW)
    A('s_cselect_b64 vcc, -1, 0')
    A('s_cselect_b32 s%d, 8, 16', sA)
    A('v_cndmask_b32 v%d, v%d, v%d, vcc', vRR0, t0, t1)
    A('v_add_u32 v%d, %d, v%d', vRR0, RED, vRR0)
    A('v_add_u32 v%d, s%d, v%d', vRR1, sA, vRR0)
    A('v_mov_b32 v%d, 0', vFL)
    mk_mst(vMST, t0)
    wait_init(TT)
    stamp(2)
    A('s_cmp_eq_u32 s%d, 0', sMODE)
    A('s_cselect_b32 s%d, 0, %d', sLB, MG - ML)
    A('s_add_u32 s%d, s%d, %d', sLB, sLB, ML)
    A('s_add_u32 s%d, s%d, s%d', sLB, sLB, sOWN)
    A('s_sub_u32 s%d, %d, s%d', sGB, MG + 10240, sOWN)
    A('s_mov_b32 s%d, 0', sR0)
    A('s_mov_b32 s%d, 20480', sR1)
    A('s_mov_b32 s%d, 40960', sR2)
    A('s_lshl_b32 s%d, s%d, 2', sA, sG)
    A('s_add_u32 s%d, s%d, s%d', sA, sA, sW)
    A('s_mul_i32 s%d, s%d, 2560', sP0, sA)
    A('s_add_u32 s%d, s%d, %d', sP0, sP0, PR)
    A('s_add_u32 s%d, s%d, %d', sP1, sP0, 32 * 640)
    A('s_lshl_b32 s%d, s%d, 6', sFA, sA)
    A('s_add_u32 s%d, s%d, %d', sFA, sFA, FL_P2)
    A('s_lshl_b32 s%d, s%d, 10', sB, sT0)
    A('s_mul_i32 s%d, s%d, 40960', sZG, sA)
    A('s_add_u32 s%d, s%d, s%d', sZG, sZG, sB)
    A('s_add_u32 s%d, s%d, %d', sZG, sZG, ZMG)
    A('s_mul_i32 s%d, s%d, %d', sVO, sA, 4 * 40960)
    A('s_add_u32 s%d, s%d, s%d', sVO, sVO, sB)
    A('s_add_u32 s%d, s%d, %d', sVO, sVO, VO)
    A('s_lshl_b32 s%d, s%d, 2', sA, sA)
    A('s_sub_u32 s%d, s%d, s%d', sA, sA, sHEAD)
    A('s_mul_i32 s%d, s%d, 10240', sZLD, sA)
    A('s_lshl_b32 s%d, s%d, 8', sB, sT0)
    A('s_add_u32 s%d, s%d, s%d', sZLD, sZLD, sB)
    A('s_mov_b32 s%d, 0', sSEG)
    A('s_cmp_lg_u32 s%d, 0', sMODE)
    A('s_cbranch_scc1 L_RV_slow')

    def loop(tag, sc):
        S = Stream(A)
        A.label('L_RV_%s' % tag)
        for i in range(20):
            A('v_mov_b32 v%d, 0', ACC1 + i)
        for li in range(NB):
            for ln in w_reads(li, STG, NB, vWL):
                S(ln)
        A('s_add_u32 s%d, s%d, s%d', sB, sLB, sR0)
        A('s_add_u32 s%d, s%d, s%d', sC, sGB, sR0)
        A('s_add_u32 s%d, s%d, 1', sNEED, sSEG)
        fa = 'v_bfe_u32 v%d, v%d, 2, 6' % (TT, vL16)
        gate(vFL, fa, TT, 's%d' % sFA, sNEED)
        stamp(3)
        L, D = A.newlabel('Lv1'), A.newlabel('Lv1d')
        A.label(L)
        A('buffer_load_dwordx4 %s, v%d, %s, s%d offen sc1', v(LRAW, 4), vCH, WS, sB)
        A('s_waitcnt vmcnt(0)')
        check_sentinel(range(LRAW, LRAW + 4), TT)
        A('s_cbranch_vccz %s', D)
        poll_tail(L, D)
        L, D = A.newlabel('Lv2'), A.newlabel('Lv2d')
        A.label(L)
        for i in range(3):
            A('buffer_load_dwordx4 %s, v%d, %s, s%d offen offset:%d sc1', v(AR + 4 * i, 4), vCH, WS, sC, 1024 * i)
        for i in range(1, 3):
            A('buffer_load_dwordx4 %s, v%d, %s, s%d offen offset:%d sc1', v(LRAW + 4 * i, 4), vCH, WS, sB, 1024 * i)
        for h in range(2):
            A('v_mfma_f32_16x16x16_bf16 %s, %s, %s, 0', v(LF + 4 * h, 4), v(vI, 2), v(LRAW + 2 * h, 2))
        for i in range(4):
            A('v_mov_b32 v%d, -1', TT + 4 + i)
        A('v_mov_b32 v%d, s%d', TT + 2, sSEG)
        A('v_mov_b32 v%d, 0', TT + 3)
        A(fa.replace('v%d,' % TT, 'v%d,' % (TT + 1), 1))
        A('s_waitcnt vmcnt(0)')
        check_sentinel(list(range(AR, AR + 12)) + list(range(LRAW + 4, LRAW + 12)), TT)
        A('s_cbranch_vccz %s', D)
        poll_tail(L, D)
        stamp(4)
        sum_partials(S, LRAW, AR, LF, vI, {0})
        for c in range(3):
            for i in range(4):
                S('v_cvt_pk_bf16_f32 v%d, v%d, v%d', AR + 4 * c + i, LF + 8 * c + 2 * i, LF + 8 * c + 2 * i + 1)
            S('ds_write_b128 v%d, %s offset:%d', vCH, v(AR + 4 * c, 4), MEM + 1024 * c)
        fill = {}
        fill.setdefault(1, []).extend(['s_waitcnt lgkmcnt(0)', 's_barrier'])
        spread(fill, 2, [a_read(i, AR, vR) for i in range(3, 10)])
        vm = [['s_add_u32 s%d, s%d, s%d' % (sA, sOWN, sR2), 's_add_u32 s%d, s%d, %d' % (sB, sA, MG),
               'buffer_store_dword v%d, v%d, %s, s%d offen sc1' % (TT + 4, vMST, WS, sB)],
              ['s_add_u32 s%d, s%d, %d' % (sB, sA, ML),
               'buffer_store_dword v%d, v%d, %s, s%d offen' % (TT + 4, vMST, WS, sB)],
              ['s_mul_i32 s%d, s%d, 2560' % (sA, sW), 's_add_u32 s%d, s%d, s%d' % (sA, sA, sZ1),
               'buffer_store_dwordx4 %s, v%d, %s, s%d offen%s' % (v(TT + 4, 4), vL16, WS, sA, sc)],
              ['buffer_store_dwordx4 %s, v%d, %s, s%d offen offset:1024%s' % (v(TT + 4, 4), vL16, WS, sA, sc)],
              ['buffer_store_dwordx4 %s, v%d, %s, s%d offen offset:1536%s' % (v(TT + 4, 4), vL16, WS, sA, sc)],
              ['s_mov_b64 exec, 1', 'buffer_store_dword v%d, v%d, %s, s%d offen sc1' % (TT + 2, TT + 3, WS, sFLG), 's_mov_b64 exec, -1'],
              ['buffer_load_dword v%d, v%d, %s, s%d offen sc1' % (vFL, TT + 1, WS, sFA)]]
        k = 9
        for op in vm:
            fill.setdefault(k, []).extend(op)
            k += 1
        vo = []
        for j in range(4):
            reg = lambda t: VOR + (2 * t + (j >> 1)) * 8 + (j & 1) * 4
            vo.append(['s_add_u32 s%d, s%d, %d' % (sA, sVO, j * 40960),
                       'buffer_load_dwordx4 %s, v%d, %s, s%d offen sc1' % (v(reg(0), 4), vL16, WS, sA)])
            vo.append(['s_lshl_b32 s%d, s%d, 10' % (sB, sD2),
                       'buffer_load_dwordx4 %s, v%d, %s, s%d offen offset:1024 sc1' % (v(reg(1), 4), vL16, WS, sA)])
            vo.append(['s_add_u32 s%d, s%d, s%d' % (sA, sA, sB),
                       'buffer_load_dwordx4 %s, v%d, %s, s%d offen sc1' % (v(reg(2), 4), vL16, WS, sA)])
        k = 17
        for op in vo:
            fill.setdefault(k, []).extend(op)
            k += 2
        spread(fill, 2, ['v_mov_b32 v%d, 0' % (LRAW + i) for i in range(12)], per=2)
        spread(fill, 10, ['v_mov_b32 v%d, 0' % (AR + i) for i in range(12)], per=2)

        def post1(j):
            a = ACC1 + 4 * j
            return ['v_permlane32_swap_b32 v%d, v%d' % (a, a + 2), 'v_permlane32_swap_b32 v%d, v%d' % (a + 1, a + 3),
                    'v_add_f32 v%d, v%d, v%d' % (a, a, a + 2), 'v_add_f32 v%d, v%d, v%d' % (a + 1, a + 1, a + 3),
                    ['v_cvt_pk_bf16_f32 v%d, v%d, v%d' % (a, a, a + 1), 'ds_write_b32 v%d, v%d offset:%d' % (vVMW, a, 1024 * j)]]
        for j in range(3):
            e = spread(fill, 9 + 7 * (j + 1) + 2, post1(j))
            fill.setdefault(e + 1, []).extend(['s_waitcnt lgkmcnt(0)', 's_barrier'] +
                                              ['ds_read_b64_tr_b16 %s, v%d offset:%d' % (v(A2 + 4 * j + 2 * q, 2), vVMR, 1024 * j + 128 * q) for q in range(2)])
            if j < 2:
                spread(fill, e + 2, ['v_mov_b32 v%d, 0' % (ACC1 + 4 * j + i) for i in range(4)], per=2)

        def post2(p):
            a, b = acc2(2 * p), acc2(2 * p + 1)
            ops = ['v_permlane32_swap_b32 v%d, v%d' % (a + i, b + i) for i in range(4)]
            ops += ['v_pk_add_f32 %s, %s, %s' % (v(a + i, 2), v(a + i, 2), v(b + i, 2)) for i in (0, 2)]
            ops += ['v_cvt_pk_bf16_f32 v%d, v%d, v%d' % (a + i, a + 2 * i, a + 2 * i + 1) for i in range(2)]
            ops += ['buffer_store_dwordx2 %s, v%d, %s, s%d offen offset:%d%s' % (v(a, 2), vZST, WS, sZ0, 512 * p, sc)]
            return ops
        fill.setdefault(50, []).append('s_waitcnt vmcnt(14)')
        spread(fill, 51, post2(0) + post2(1), per=2)

        def mk(key, b):
            if key[0] == 'v':
                return 'v_smfmac_f32_16x16x64_bf16 %s, %s, %s, v%d' % (v(ACC1 + 4 * key[1], 4), v(AR + 4 * key[2], 4), b, vIDX)
            return 'v_smfmac_f32_16x16x64_bf16 %s, %s, %s, v%d' % (v(acc2(key[1]), 4), v(A2 + 4 * key[2], 4), b, vIDX)
        run_stream(S, seq, mk, loc, NL, STG, NB, vWL, fill)
        assert max(fill) < 60, max(fill)
        for p in range(2, 5):
            for ln in post2(p):
                S(ln)
        A('s_barrier')
        stamp(5)
        A('s_add_u32 s%d, s%d, s%d', sB, sZ0, sZLD)
        A('s_lshl_b32 s%d, s%d, 8', sC, sD2)
        A('s_add_u32 s%d, s%d, s%d', sC, sC, sB)
        L, D = A.newlabel('Lv3'), A.newlabel('Lv3d')
        A.label(L)
        A('buffer_load_dwordx4 %s, v%d, %s, s%d offen sc1', v(ZS, 4), vZLD, WS, sB)
        A('buffer_load_dwordx4 %s, v%d, %s, s%d offen offset:256 sc1', v(ZS + 4, 4), vZLD, WS, sB)
        A('buffer_load_dwordx4 %s, v%d, %s, s%d offen sc1', v(ZS + 8, 4), vZLD, WS, sC)
        A('s_waitcnt vmcnt(0)')
        check_sentinel(range(ZS, ZS + 12), TT)
        A('s_cbranch_vccz %s', D)
        poll_tail(L, D)
        stamp(6)
        A('s_mul_i32 s%d, s%d, 1536', sA, sW)
        A('v_add_u32 v%d, s%d, v%d', TT + 2, sA, vL16)
        A('v_lshrrev_b32 v%d, 1, v%d', TT + 3, vL16)
        A('v_add_u32 v%d, s%d, v%d', TT + 3, sA, TT + 3)
        A('s_add_u32 s%d, s%d, s%d', sA, sOWN, sR1)
        A('s_add_u32 s%d, s%d, %d', sB, sA, MG)
        A('s_add_u32 s%d, s%d, %d', sC, sA, ML)
        L, D = A.newlabel('Lv4'), A.newlabel('Lv4d')
        A.label(L)
        A('buffer_load_dwordx4 %s, v%d, %s, s%d offen sc1', v(PP, 4), vPMLD, WS, sP0)
        A('buffer_load_dwordx4 %s, v%d, %s, s%d offen sc1', v(PP + 4, 4), vPLD, WS, sP0)
        A('buffer_load_dwordx4 %s, v%d, %s, s%d offen offset:1280 sc1', v(PP + 8, 4), vPLD, WS, sP0)
        A('s_waitcnt vmcnt(0)')
        check_sentinel(range(PP, PP + 12), TT)
        A('s_cbranch_vccz %s', D)
        poll_tail(L, D)
        stamp(7)
        for t in range(3):
            A('v_mfma_f32_16x16x32_bf16 %s, %s, %s, 0', v(ACCC + 4 * t, 4), v(PP, 4), v(ZS + 4 * t, 4))
        for jj in range(2):
            for t in (2, 0, 1):
                A('v_smfmac_f32_16x16x64_bf16 %s, %s, %s, v%d', v(ACCC + 4 * t, 4), v(PP + 4 + 4 * jj, 4), v(VOR + (2 * t + jj) * 8, 8), vIDX2)
        c2 = ACCC + 8
        A('v_permlane32_swap_b32 v%d, v%d', c2, c2 + 2)
        A('v_permlane32_swap_b32 v%d, v%d', c2 + 1, c2 + 3)
        A('v_pk_add_f32 %s, %s, %s', v(c2, 2), v(c2, 2), v(c2 + 2, 2))
        A('ds_write_b64 v%d, %s offset:%d', TT + 3, v(c2, 2), RED + 1024)
        for i in range(4):
            A('v_permlane32_swap_b32 v%d, v%d', ACCC + i, ACCC + 4 + i)
        for i in (0, 2):
            A('v_pk_add_f32 %s, %s, %s', v(ACCC + i, 2), v(ACCC + i, 2), v(ACCC + 4 + i, 2))
        A('ds_write_b128 v%d, %s offset:%d', TT + 2, v(ACCC, 4), RED)
        A('s_waitcnt lgkmcnt(0)')
        A('s_barrier')
        A('ds_read2st64_b32 %s, v%d offset0:0 offset1:6', v(ACCC, 2), vRR0)
        A('ds_read2st64_b32 %s, v%d offset0:12 offset1:18', v(ACCC + 2, 2), vRR0)
        A('ds_read2st64_b32 %s, v%d offset0:0 offset1:6', v(ACCC + 4, 2), vRR1)
        A('ds_read2st64_b32 %s, v%d offset0:12 offset1:18', v(ACCC + 6, 2), vRR1)
        A('s_waitcnt lgkmcnt(2)')
        A('v_pk_add_f32 %s, %s, %s', v(ACCC, 2), v(ACCC, 2), v(ACCC + 2, 2))
        A('s_waitcnt lgkmcnt(0)')
        A('v_pk_add_f32 %s, %s, %s', v(ACCC + 4, 2), v(ACCC + 4, 2), v(ACCC + 6, 2))
        A('v_add_f32 v%d, v%d, v%d', ACCC, ACCC, ACCC + 1)
        A('v_add_f32 v%d, v%d, v%d', ACCC + 4, ACCC + 4, ACCC + 5)
        A('v_cvt_pk_bf16_f32 v%d, v%d, v%d', ACCC, ACCC, ACCC + 4)
        A('buffer_store_dword v%d, v%d, %s, s%d offen sc1', ACCC, vMST, WS, sB)
        A('buffer_store_dword v%d, v%d, %s, s%d offen', ACCC, vMST, WS, sC)
        stamp(8)
        if OPT['memdbg']:
            A('s_mul_i32 s%d, s%d, 20480', sA, sSEG)
            A('s_add_u32 s%d, s%d, s%d', sA, sA, sOWN)
            A('s_add_u32 s%d, s%d, %d', sA, sA, MEMDBG)
            A('buffer_store_dword v%d, v%d, %s, s%d offen', ACCC, vMST, WS, sA)
        A('buffer_store_dwordx4 %s, v%d, %s, s%d offen sc1', v(ZS, 4), vL16, WS, sZG)
        A('buffer_store_dwordx4 %s, v%d, %s, s%d offen offset:1024 sc1', v(ZS + 4, 4), vL16, WS, sZG)
        A('s_lshl_b32 s%d, s%d, 10', sA, sD2)
        A('s_add_u32 s%d, s%d, s%d', sA, sA, sZG)
        A('buffer_store_dwordx4 %s, v%d, %s, s%d offen sc1', v(ZS + 8, 4), vL16, WS, sA)
        rot3(sR0, sR1, sR2)
        for x0, x1 in ((sP0, sP1), (sZ0, sZ1)):
            A('s_mov_b32 s%d, s%d', sA, x0)
            A('s_mov_b32 s%d, s%d', x0, x1)
            A('s_mov_b32 s%d, s%d', x1, sA)
        A('s_add_u32 s%d, s%d, %d', sZG, sZG, 8 * 40960)
        A('s_add_u32 s%d, s%d, %d', sVO, sVO, 40 * 40960)
        A('s_add_u32 s%d, s%d, 1', sSEG, sSEG)
        A('s_cmp_lt_u32 s%d, 64', sSEG)
        A('s_cbranch_scc1 L_RV_%s', tag)
        A('s_branch L_RV_fin')

    loop('fast', '')
    loop('slow', ' sc1')
    A.label('L_RV_fin')
    A('s_waitcnt vmcnt(0)')
    A('v_mov_b32 v%d, 64', TT + 2)
    A('v_mov_b32 v%d, 0', TT + 3)
    A('s_mov_b64 exec, 1')
    A('buffer_store_dword v%d, v%d, %s, s%d offen sc1', TT + 2, TT + 3, WS, sFLG)
    A('s_mov_b64 exec, -1')
    finish_role(4)


def role_f(g):
    imp(g)
    A.label('L_F')
    A('s_lshl_b32 s%d, s%d, 3', sSEG, sG)
    A('s_add_u32 s%d, s%d, s%d', sSEG, sSEG, sT)
    layernorm()
    A('s_waitcnt vmcnt(0)')
    A('s_barrier')
    arrive_init(2)
    stamp(1)
    if OPT['roles'] != 'all' and 'F' not in OPT['roles'].split(','):
        finish_role(5)
        return
    lane = 1
    vL16, vFA1, vFA2, vFL1, vFL2, vPM, vRD, vXO = 0, 4, 5, 6, 7, 8, 9, 10
    ID = 12
    XR = 18
    TT = 24
    ACC = 40
    PXR = 80
    PMR = 144
    ZMR = 200
    sVO, sPX, sZG, sNEED, sOUT, sFF = s0_, s1_, s2_, s3_, s4_, s5_
    identity(lane, ID, None)
    A('v_mov_b32 v%d, 0', ID + 2)
    A('v_mov_b32 v%d, 0', ID + 3)
    A('v_mov_b32 v%d, v%d', ID + 4, ID)
    A('v_mov_b32 v%d, v%d', ID + 5, ID + 1)
    A('v_lshlrev_b32 v%d, 4, v%d', vL16, lane)
    A('v_and_b32 v2, 7, v%d', lane)
    A('s_lshl_b32 s%d, s%d, 3', sA, sW)
    A('v_add_u32 v2, s%d, v2', sA)
    A('v_and_b32 v3, 1, v%d', lane)
    A('s_lshl_b32 s%d, s%d, 1', sA, sW)
    A('s_add_u32 s%d, s%d, 32', sA, sA)
    A('v_add_u32 v%d, s%d, v3', TT, sA)
    A('v_cmp_gt_u32 vcc, 8, v%d', lane)
    A('v_cndmask_b32 v%d, v%d, v2, vcc', vFA1, TT)
    A('v_lshlrev_b32 v%d, 4, v%d', vFA1, vFA1)
    A('s_lshr_b32 s%d, s%d, 1', sA, sT)
    A('s_lshl_b32 s%d, s%d, 2', sA, sA)
    A('s_add_u32 s%d, s%d, %d', sA, sA, FL_P2)
    A('v_add_u32 v%d, s%d, v%d', vFA1, sA, vFA1)
    A('v_lshlrev_b32 v2, 4, v2')
    A('v_bfe_u32 v3, v%d, 3, 1', lane)
    A('v_lshl_add_u32 v2, v3, 2, v2')
    A('v_add_u32 v2, %d, v2', FL_PX + 8)
    A('v_and_b32 v3, 15, v%d', lane)
    A('v_lshlrev_b32 v3, 4, v3')
    A('v_bfe_u32 v%d, v%d, 4, 1', TT, lane)
    A('v_lshl_add_u32 v3, v%d, 2, v3', TT)
    A('s_lshr_b32 s%d, s%d, 1', sA, sW)
    A('s_lshl_b32 s%d, s%d, 8', sA, sA)
    A('s_and_b32 s%d, s%d, 1', sB, sW)
    A('s_lshl_b32 s%d, s%d, 3', sB, sB)
    A('s_add_u32 s%d, s%d, s%d', sA, sA, sB)
    A('s_add_u32 s%d, s%d, %d', sA, sA, FL_ZM)
    A('v_add_u32 v3, s%d, v3', sA)
    A('v_cmp_gt_u32 vcc, 32, v%d', lane)
    A('v_cndmask_b32 v%d, v2, v3, vcc', vFA2)
    A('v_mov_b32 v%d, 0', vFL1)
    A('v_mov_b32 v%d, 0', vFL2)
    A('v_lshrrev_b32 v2, 4, v%d', lane)
    A('v_and_b32 v3, 15, v%d', lane)
    A('v_mul_u32_u24 v%d, 2560, v2', vPM)
    A('v_lshl_add_u32 v%d, v3, 4, v%d', vPM, vPM)
    A('v_add_u32 v%d, 2048, v%d', vPM, vPM)
    A('v_mul_u32_u24 v%d, 1280, v3', vXO)
    A('v_lshl_add_u32 v%d, v2, 3, v%d', vXO, vXO)
    A('s_mul_i32 s%d, s%d, 160', sA, sT)
    A('v_add_u32 v%d, s%d, v%d', vXO, sA, vXO)
    A('s_lshl_b32 s%d, s%d, 1', sA, sW)
    A('s_add_u32 s%d, s%d, 1', sA, sA)
    A('s_cmp_eq_u32 s%d, 0', sW)
    A('s_cselect_b32 s%d, 0, s%d', s6_, sA)
    A('s_lshl_b32 s%d, s%d, 10', sA, s6_)
    A('v_add_u32 v%d, s%d, v%d', vRD, sA, vL16)
    sBO = [78, 79, 69]
    for j in range(3):
        A('s_add_u32 s%d, s%d, %d', sA, s6_, j)
        A('s_lshr_b32 s%d, s%d, 1', sB, sA)
        A('s_lshl_b32 s%d, s%d, 5', sB, sB)
        A('s_and_b32 s%d, s%d, 1', sA, sA)
        A('s_mul_i32 s%d, s%d, 20480', sA, sA)
        A('s_add_u32 s%d, s%d, s%d', sBO[j], sA, sB)
    wait_init(TT)
    A('s_mov_b32 s%d, s%d', sSEG, sG)
    A.label('L_F_loop')
    A('s_add_u32 s%d, s%d, 1', sNEED, sSEG)
    A('s_mul_i32 s%d, s%d, 5120', sC, sT)
    A('s_mul_i32 s%d, s%d, %d', sVO, sSEG, 40 * 40960)
    A('s_add_u32 s%d, s%d, s%d', sVO, sVO, sC)
    A('s_add_u32 s%d, s%d, %d', sVO, sVO, VO)
    A('s_mul_i32 s%d, s%d, %d', sA, sW, 2 * 40960)
    A('s_add_u32 s%d, s%d, s%d', sFF, sVO, sA)
    A('s_add_u32 s%d, s%d, %d', sFF, sFF, 32 * 40960)
    A('s_mul_i32 s%d, s%d, %d', sZG, sSEG, 8 * 40960)
    A('s_add_u32 s%d, s%d, s%d', sZG, sZG, sA)
    A('s_add_u32 s%d, s%d, s%d', sZG, sZG, sC)
    A('s_add_u32 s%d, s%d, %d', sZG, sZG, ZMG)
    A('s_lshl_b32 s%d, s%d, 2', sA, sA)
    A('s_add_u32 s%d, s%d, s%d', sVO, sVO, sA)
    A('s_mul_i32 s%d, s%d, %d', sPX, sSEG, 32 * 2560)
    A('s_mul_i32 s%d, s%d, %d', sA, sW, 8 * 2560)
    A('s_add_u32 s%d, s%d, s%d', sPX, sPX, sA)
    A('s_add_u32 s%d, s%d, %d', sPX, sPX, PX)
    A('s_mul_i32 s%d, s%d, 40960', sOUT, sSEG)
    gate(vFL1, None, vFA1, '0', sNEED, sleep=8)

    def load5(dst, sbase, off):
        A('s_add_u32 s%d, s%d, %d', sA, sbase, off)
        A('s_add_u32 s%d, s%d, %d', sB, sbase, off + 4096)
        for t in range(5):
            A('buffer_load_dwordx4 %s, v%d, %s, s%d offen offset:%d sc1', a_(dst + 4 * t, 4), vL16, WS, sA if t < 4 else sB, (t % 4) * 1024)
    for j in range(2):
        load5(160 + 20 * j, sFF, j * 40960)
    for j in range(8):
        load5(20 * j, sVO, j * 40960)
    for j in range(3):
        A('s_add_u32 s%d, s%d, s%d', sA, sOUT, sBO[j])
        A('buffer_load_dwordx2 %s, v%d, %s, s%d offen', v(XR + 2 * j, 2), vXO, XS, sA)
    A('s_waitcnt vmcnt(43)')
    for j in range(2):
        for t in range(5):
            for qt in range(2):
                d = v(ACC + (2 * t + qt) * 4, 4)
                A('v_mfma_f32_16x16x32_bf16 %s, %s, %s, %s', d, a_(160 + 20 * j + 4 * t, 4), v(ID + 2 * qt, 4), '0' if j == 0 else d)
    A('s_waitcnt vmcnt(0)')
    gate(vFL2, None, vFA2, '0', sNEED, sleep=4)
    stamp(3)
    for j in range(8):
        A('s_add_u32 s%d, s%d, %d', sA, sPX, j * 2560)
        for qt in range(2):
            A('buffer_load_dwordx4 %s, v%d, %s, s%d offen offset:%d sc1', v(PXR + (2 * j + qt) * 4, 4), vL16, WS, sA, 1024 * qt)
    for j in range(2):
        A('s_add_u32 s%d, s%d, %d', sA, sPX, j * 4 * 2560)
        for qt in range(2):
            A('buffer_load_dwordx4 %s, v%d, %s, s%d offen offset:%d sc1', v(PMR + (2 * j + qt) * 4, 4), vPM, WS, sA, 256 * qt)
        load5(ZMR + 20 * j, sZG, j * 40960)
    for j in range(8):
        A('s_waitcnt vmcnt(%d)', 14 + 2 * (7 - j))
        for t in range(5):
            for qt in range(2):
                d = v(ACC + (2 * t + qt) * 4, 4)
                A('v_mfma_f32_16x16x32_bf16 %s, %s, %s, %s', d, a_(20 * j + 4 * t, 4), v(PXR + (2 * j + qt) * 4, 4), d)
    for j in range(2):
        A('s_waitcnt vmcnt(%d)', 7 * (1 - j))
        for t in range(5):
            for qt in range(2):
                d = v(ACC + (2 * t + qt) * 4, 4)
                A('v_mfma_f32_16x16x32_bf16 %s, %s, %s, %s', d, a_(ZMR + 20 * j + 4 * t, 4), v(PMR + (2 * j + qt) * 4, 4), d)
    A('s_mul_i32 s%d, s%d, 10240', sA, sW)
    A('v_add_u32 v2, s%d, v%d', sA, vL16)
    A('s_barrier')
    for b in range(10):
        A('ds_write_b128 v2, %s offset:%d', v(ACC + 4 * b, 4), 1024 * b)
    A('s_waitcnt lgkmcnt(0)')
    A('s_barrier')
    for j in range(3):
        for w in range(4):
            A('ds_read_b128 %s, v%d offset:%d', v(TT + 4 * w, 4), vRD, 10240 * w + 1024 * j)
        A('v_lshlrev_b32 v%d, 16, v%d', ACC, XR + 2 * j)
        A('v_and_b32 v%d, 0xffff0000, v%d', ACC + 1, XR + 2 * j)
        A('v_lshlrev_b32 v%d, 16, v%d', ACC + 2, XR + 2 * j + 1)
        A('v_and_b32 v%d, 0xffff0000, v%d', ACC + 3, XR + 2 * j + 1)
        A('s_waitcnt lgkmcnt(0)')
        for i in (0, 2):
            A('v_pk_add_f32 %s, %s, %s', v(TT + i, 2), v(TT + i, 2), v(TT + 4 + i, 2))
            A('v_pk_add_f32 %s, %s, %s', v(TT + 8 + i, 2), v(TT + 8 + i, 2), v(TT + 12 + i, 2))
        for i in (0, 2):
            A('v_pk_add_f32 %s, %s, %s', v(TT + i, 2), v(TT + i, 2), v(TT + 8 + i, 2))
        for i in (0, 2):
            A('v_pk_add_f32 %s, %s, %s', v(TT + i, 2), v(TT + i, 2), v(ACC + i, 2))
        A('v_cvt_pk_bf16_f32 v%d, v%d, v%d', ACC + 4 + 2 * j, TT, TT + 1)
        A('v_cvt_pk_bf16_f32 v%d, v%d, v%d', ACC + 5 + 2 * j, TT + 2, TT + 3)
        A('s_add_u32 s%d, s%d, s%d', sA, sOUT, sBO[j])
        A('buffer_store_dwordx2 %s, v%d, %s, s%d offen', v(ACC + 4 + 2 * j, 2), vXO, OUT, sA)
    stamp(4)
    A('s_add_u32 s%d, s%d, 6', sSEG, sSEG)
    A('s_cmp_lt_u32 s%d, 64', sSEG)
    A('s_cbranch_scc1 L_F_loop')
    finish_role(5)
```

```python
from asmlib import v, a_, s, Stream
from layout import *

OOB = 0x70000000
SCALE_LOG2E = 0x3dd53b95
import struct
assert abs(struct.unpack('<f', struct.pack('<I', SCALE_LOG2E))[0] - 192 ** -0.5 * 1.4426950408889634) < 1e-8
NEG_MASK = struct.unpack('<I', struct.pack('<f', -1e9 * 192 ** 0.5))[0]
NEG_BIG = 0xff7fffff


def plan(seq, n_lds, vbase):
    pos = [int((i + 0.75) * len(seq) / n_lds) for i in range(n_lds)]
    loc = {}
    na = nv = 0
    for n, key in enumerate(seq):
        if n in pos:
            loc[key] = ('l', pos.index(n))
        elif na < 32:
            loc[key] = ('a', 8 * na); na += 1
        else:
            loc[key] = ('v', vbase + 8 * nv); nv += 1
    assert vbase + 8 * nv == 256, (vbase, nv)
    return loc


TMPW = 24


def wpair(loc, key, half):
    kind, b = loc[key]
    if kind == 'a':
        return a_(b + 2 * half, 2)
    if kind == 'v':
        return v(b + 2 * half, 2)
    return v(TMPW + 8 * b + 2 * half, 2)


def park_to_lds(n_lds, vWL):
    A('s_barrier')
    for i in range(n_lds):
        A('ds_write_b128 v%d, %s offset:%d', vWL, v(TMPW + 8 * i, 4), 2048 * i)
        A('ds_write_b128 v%d, %s offset:%d', vWL, v(TMPW + 8 * i + 4, 4), 2048 * i + 1024)
    A('s_waitcnt lgkmcnt(0)')


def common_consts(lane, vCH, vR, vIDX, vI, vL16):
    A('s_lshl_b32 s%d, s%d, 1', sA, sW)
    A('s_add_u32 s%d, s%d, 1', sA, sA)
    A('s_cmp_eq_u32 s%d, 0', sW)
    A('s_cselect_b32 s%d, 0, s%d', sA, sA)
    A('v_lshlrev_b32 v%d, 4, v%d', vL16, lane)
    A('s_lshl_b32 s%d, s%d, 10', sB, sA)
    A('v_add_u32 v%d, s%d, v%d', vCH, sB, vL16)
    for i, d in enumerate((3, 5, 7)):
        A('s_add_u32 s%d, s%d, %d', sB, sA, d)
        A('s_cmp_ge_u32 s%d, 10', sB)
        A('s_cselect_b32 s%d, 10, 0', sC)
        A('s_sub_u32 s%d, s%d, s%d', sB, sB, sC)
        A('s_lshl_b32 s%d, s%d, 10', sB, sB)
        A('v_add_u32 v%d, s%d, v%d', vR + i, sB, vL16)
    A('v_and_b32 v%d, 8, v%d', vIDX, lane)
    A('v_cmp_eq_u32 vcc, 0, v%d', vIDX)
    A('v_mov_b32 v%d, 0xeeee', vIDX)
    A('v_mov_b32 v%d, 0x4444', vI)
    A('v_cndmask_b32 v%d, v%d, v%d, vcc', vIDX, vIDX, vI)
    identity(lane, vI, None)


def identity(lane, vI, _):
    A('v_lshrrev_b32 v2, 4, v%d', lane)
    A('v_lshlrev_b32 v2, 2, v2')
    A('v_and_b32 v3, 15, v%d', lane)
    A('v_sub_u32 v2, v3, v2')
    for j in range(2):
        A('v_mov_b32 v%d, 0', vI + j)
        A('v_mov_b32 v3, 0x3f80')
        A('v_cmp_eq_u32 vcc, %d, v2', 2 * j)
        A('v_cndmask_b32 v%d, v%d, v3, vcc', vI + j, vI + j)
        A('v_mov_b32 v3, 0x3f800000')
        A('v_cmp_eq_u32 vcc, %d, v2', 2 * j + 1)
        A('v_cndmask_b32 v%d, v%d, v3, vcc', vI + j, vI + j)


def check_sentinel(regs, t):
    regs = list(regs)
    cur = regs.pop(0)
    while regs:
        a = regs.pop(0)
        b = regs.pop(0) if regs else a
        A('v_max3_u32 v%d, v%d, v%d, v%d', t, cur, a, b)
        cur = t
    A('v_cmp_eq_u32 vcc, -1, v%d', cur)


def a_read(i, Areg, vR):
    k = 0 if i < 5 else (1 if i < 7 else 2)
    return 'ds_read_b128 %s, v%d offset:%d' % (v(Areg + 4 * i, 4), vR + k, (i - (3, 5, 7)[k]) * 1024)


def w_reads(li, stg, nb, vWL):
    b = stg + 8 * (li % nb)
    return ['ds_read_b128 %s, v%d offset:%d' % (v(b, 4), vWL, 2048 * li),
            'ds_read_b128 %s, v%d offset:%d' % (v(b + 4, 4), vWL, 2048 * li + 1024)]


def wop(loc, key, stg, nb):
    kind, b = loc[key]
    if kind == 'a':
        return a_(b, 8)
    if kind == 'v':
        return v(b, 8)
    return v(stg + 8 * (b % nb), 8)


def sum_partials(S, Lraw, Areg, Lf, vI, have_l):
    for c in range(3):
        for h in range(2):
            d = v(Lf + 8 * c + 4 * h, 4)
            if c not in have_l:
                S('v_mfma_f32_16x16x16_bf16 %s, %s, %s, 0', d, v(vI, 2), v(Lraw + 4 * c + 2 * h, 2))
    for c in range(3):
        for h in range(2):
            d = v(Lf + 8 * c + 4 * h, 4)
            S('v_mfma_f32_16x16x16_bf16 %s, %s, %s, %s', d, v(vI, 2), v(Areg + 4 * c + 2 * h, 2), d)


def run_stream(S, seq, mk, loc, n_lds, stg, nb, vWL, fill):
    pend = []
    for n, key in enumerate(seq):
        S(mk(key, wop(loc, key, stg, nb)))
        if loc[key][0] == 'l' and loc[key][1] + nb < n_lds:
            pend += w_reads(loc[key][1] + nb, stg, nb, vWL)
        lines = list(fill.get(n, []))
        if pend and not any(l.startswith(('ds_', 'buffer_')) for l in lines):
            S(pend.pop(0))
        elif len(pend) > 1:
            S(pend.pop(0))
        for ln in lines:
            S(ln)
    assert not pend


def spread(fill, start, ops, per=1):
    k = start
    for i, op in enumerate(ops):
        fill.setdefault(k, []).extend(op if isinstance(op, list) else [op])
        if (i + 1) % per == 0:
            k += 1
    return k + (1 if len(ops) % per else 0)


def rot3(r0, r1, r2):
    A('s_mov_b32 s%d, s%d', sA, r0)
    A('s_mov_b32 s%d, s%d', r0, r1)
    A('s_mov_b32 s%d, s%d', r1, r2)
    A('s_mov_b32 s%d, s%d', r2, sA)


def flag_gate(vFL, vFA, sNEED):
    L, D = A.newlabel('Lfg'), A.newlabel('Lfgd')
    A('v_cmp_gt_u32 vcc, s%d, v%d', sNEED, vFL)
    A('s_cbranch_vccz %s', D)
    A.label(L)
    A('buffer_load_dword v%d, v%d, %s, 0 offen sc1', vFL, vFA, WS)
    A('s_waitcnt vmcnt(0)')
    A('v_cmp_gt_u32 vcc, s%d, v%d', sNEED, vFL)
    A('s_cbranch_vccz %s', D)
    poll_tail(L, D, sleep=1)


def role_rq(g):
    A.label('L_RQ')
    if role_off('RQ'):
        return
    lane = 1
    NL, NB = 15, 3
    MEM, EX, EXM, EXX, WL = 0, 10240, 14336, 16384, 36864
    assert WL + 4 * NL * 2048 <= 163840
    vCH, vXX, vI, vR = 0, 1, 2, 4
    vIDX, vL16, vWL, vPX, vPM, vMMR, vFL, vFA, vXS = 7, 8, 9, 10, 11, 12, 13, 14, 15
    PXH, Y, ACC, AR, STG, KC, KN, QR, VW = 16, 22, 28, 52, 92, 116, 128, 140, 152
    assert QR + 12 == VW
    LRAW, LF = QR, AR + 12
    SM, SX = AR, AR + 4
    XS_ = AR + 12
    TT = AR + 32
    sR0, sR1, sR2, sP0, sP1, sKN, sQC, sPXO = s0_, s1_, s2_, s3_, s4_, s5_, s6_, s7_
    sLB, sGB, sFLG, sNEED, sVOP, sCS, sPXS = 78, 79, 3, 69, 100, 101, 55
    seq = [(t, i) for i in range(3) for t in range(6)]
    for p in range(3):
        for i in range(3, 10):
            seq += [(p, i), (3 + p, i)]
    loc = plan(seq, NL, VW)

    A('s_lshl_b32 s%d, s%d, 4', sFLG, sHEAD)
    A('s_lshl_b32 s%d, s%d, 2', sA, sW)
    A('s_add_u32 s%d, s%d, s%d', sFLG, sFLG, sA)
    A('s_add_u32 s%d, s%d, %d', sFLG, sFLG, FL_PX)
    zero_flag(2, sFLG)
    A('s_mul_i32 s%d, s%d, 640', sP0, sHEAD)
    A('s_add_u32 s%d, s%d, %d', sP0, sP0, PR)
    A('s_add_u32 s%d, s%d, %d', sP1, sP0, 32 * 640)
    A('v_lshlrev_b32 v2, 2, v0')
    A('v_mov_b32 v3, -1')
    A('v_cmp_gt_u32 vcc, 160, v0')
    A('v_mov_b32 v4, 0x%x', OOB)
    A('v_cndmask_b32 v2, v4, v2, vcc')
    A('buffer_store_dword v3, v2, %s, s%d offen sc1', WS, sP0)
    A('s_mov_b32 s%d, 12288', sKN)
    A('s_mul_i32 s%d, s%d, 384', sQC, sHEAD)

    def dest(off):
        return lambda w, st, kkl, j, t: wpair(loc, (off + t, (st - COFF[w]) % 10), 2 * kkl + j)
    run_stages(stages_n192(WA, sKN, sQC, dest(0), lane) + stages_n192(WB, sKN, sQC, dest(3), lane, setup=False),
               first_hook=lambda: arrive_init(2), wsel=True)
    A('s_mul_i32 s%d, s%d, %d', sA, sW, NL * 2048)
    A('v_lshlrev_b32 v%d, 4, v%d', vWL, lane)
    A('s_add_u32 s%d, s%d, %d', sA, sA, WL)
    A('v_add_u32 v%d, s%d, v%d', vWL, sA, vWL)
    park_to_lds(NL, vWL)
    stamp(1)
    common_consts(lane, vCH, vR, vIDX, TT, vL16)
    A('v_mov_b32 v%d, v%d', vI, TT)
    A('v_mov_b32 v%d, v%d', vI + 1, TT + 1)
    m_, u_, g_ = TT, TT + 1, TT + 2
    A('v_and_b32 v%d, 7, v%d', m_, lane)
    A('v_bfe_u32 v%d, v%d, 3, 1', u_, lane)
    A('v_lshrrev_b32 v%d, 4, v%d', g_, lane)
    A('v_and_b32 v%d, 15, v%d', vPX, lane)
    A('v_lshlrev_b32 v%d, 4, v%d', vPX, vPX)
    A('v_lshrrev_b32 v%d, 1, v%d', TT + 3, g_)
    A('v_lshl_add_u32 v%d, v%d, 8, v%d', vPX, TT + 3, vPX)
    A('v_and_b32 v%d, 1, v%d', TT + 4, g_)
    A('v_lshl_add_u32 v%d, v%d, 3, v%d', vPX, TT + 4, vPX)
    A('v_lshlrev_b32 v%d, 4, v%d', vPM, m_)
    A('v_lshl_add_u32 v%d, v%d, 2, v%d', vPM, g_, vPM)
    A('v_add_u32 v%d, 512, v%d', vPM, vPM)
    A('v_mov_b32 v%d, 0x%x', TT + 5, OOB)
    A('v_cmp_eq_u32 vcc, 0, v%d', u_)
    A('v_cndmask_b32 v%d, v%d, v%d, vcc', vPM, TT + 5, vPM)
    A('v_lshl_add_u32 v%d, v%d, 3, v%d', vMMR, g_, m_)
    A('v_lshlrev_b32 v%d, 3, v%d', vMMR, vMMR)
    A('v_lshl_add_u32 v%d, v%d, 2, v%d', vMMR, u_, vMMR)
    A('v_add_u32 v%d, %d, v%d', vMMR, EXM + 256, vMMR)
    A('s_sub_u32 s%d, s%d, %d', sA, sFLG, FL_PX - FL_P1)
    A('v_and_b32 v%d, 1, v%d', vFA, lane)
    A('v_lshlrev_b32 v%d, 9, v%d', vFA, vFA)
    A('v_add_u32 v%d, s%d, v%d', vFA, sA, vFA)
    A('v_mov_b32 v%d, 0', vFL)
    A('v_and_b32 v%d, 15, v%d', vXS, lane)
    A('v_lshlrev_b32 v%d, 4, v%d', vXS, vXS)
    A('v_lshl_add_u32 v%d, v%d, 3, v%d', vXS, g_, vXS)
    A('s_lshl_b32 s%d, s%d, 8', sA, sW)
    A('s_add_u32 s%d, s%d, %d', sA, sA, 2048 - 512 - 16)
    A('v_add_u32 v%d, s%d, v%d', vXS, sA, vXS)
    A('v_cmp_le_u32 vcc, 2, v%d', g_)
    A('v_cndmask_b32 v%d, v%d, v%d, vcc', vXS, TT + 5, vXS)
    A('s_lshl_b32 s%d, s%d, 10', sA, sW)
    A('s_sub_u32 s%d, s%d, 2048', sA, sA)
    A('v_add_u32 v%d, s%d, v%d', vXX, sA, vL16)
    A('s_cmp_eq_u32 s%d, 0', sW)
    A('s_cselect_b64 vcc, -1, 0')
    A('v_cndmask_b32 v%d, v%d, v%d, vcc', vPX, TT + 5, vPX)
    A('v_cndmask_b32 v%d, v%d, v%d, vcc', vPM, TT + 5, vPM)
    A('s_cmp_ge_u32 s%d, 2', sW)
    A('s_cselect_b64 vcc, -1, 0')
    A('v_cndmask_b32 v%d, v%d, v%d, vcc', vXS, TT + 5, vXS)
    A('v_cndmask_b32 v%d, v%d, v%d, vcc', vXX, TT + 5, vXX)
    A('s_mov_b32 s%d, 0x%x', sCS, SCALE_LOG2E)
    wait_init(TT)
    stamp(2)
    A('s_mul_i32 s%d, s%d, 10240', sA, sG)
    A('s_cmp_eq_u32 s%d, 0', sMODE)
    A('s_cselect_b32 s%d, 0, %d', sLB, MG - ML)
    A('s_add_u32 s%d, s%d, %d', sLB, sLB, ML)
    A('s_add_u32 s%d, s%d, s%d', sLB, sLB, sA)
    A('s_sub_u32 s%d, %d, s%d', sGB, MG + 10240, sA)
    A('s_mov_b32 s%d, 0', sR0)
    A('s_mov_b32 s%d, 20480', sR1)
    A('s_mov_b32 s%d, 40960', sR2)
    A('s_mul_i32 s%d, s%d, %d', sQC, sHEAD, 64 * 12288)
    A('s_mul_i32 s%d, s%d, 3072', sA, sW)
    A('s_add_u32 s%d, s%d, s%d', sQC, sQC, sA)
    A('s_add_u32 s%d, s%d, %d', sKN, sQC, KX)
    A('s_add_u32 s%d, s%d, %d', sQC, sQC, QX)
    A('s_mul_i32 s%d, s%d, 2560', sPXO, sHEAD)
    A('s_add_u32 s%d, s%d, %d', sPXS, sPXO, TRASH)
    A('s_add_u32 s%d, s%d, %d', sPXO, sPXO, PX)
    A('s_mul_i32 s%d, s%d, 40960', sVOP, sHEAD)
    A('s_mul_i32 s%d, s%d, 10240', sA, sW)
    A('s_add_u32 s%d, s%d, s%d', sVOP, sVOP, sA)
    A('s_add_u32 s%d, s%d, %d', sVOP, sVOP, VO + 40 * 40960)
    A('s_mov_b32 s%d, 0', sSEG)
    A('s_mov_b32 s%d, 1', sNEED)
    flag_gate(vFL, vFA, sNEED)
    for i in range(3):
        A('buffer_load_dwordx4 %s, v%d, %s, s%d offen offset:%d sc1', v(KN + 4 * i, 4), vL16, WS, sKN, 1024 * i)
    A('s_add_u32 s%d, s%d, 12288', sKN, sKN)
    A('s_waitcnt vmcnt(0)')
    A('s_cmp_lg_u32 s%d, 0', sMODE)
    A('s_cbranch_scc1 L_RQ_slow')

    def px_stores(first_guard):
        return [['buffer_store_dwordx4 %s, v%d, %s, s%d offen sc1' % (v(PXH, 4), vXX, WS, sPXS)],
                ['buffer_store_dwordx2 %s, v%d, %s, s%d offen sc1' % (v(PXH + 4, 2), vXS, WS, sPXS)]]

    def loop(tag, sc):
        S = Stream(A)
        A.label('L_RQ_%s' % tag)
        for i in range(12):
            A('v_mov_b32 v%d, v%d', KC + i, KN + i)
        for i in range(24):
            A('v_mov_b32 v%d, 0', ACC + i)
        for li in range(NB):
            for ln in w_reads(li, STG, NB, vWL):
                S(ln)
        A('s_add_u32 s%d, s%d, s%d', sB, sLB, sR0)
        A('s_add_u32 s%d, s%d, s%d', sC, sGB, sR0)
        A('s_add_u32 s%d, s%d, 2', sNEED, sSEG)
        A('s_min_u32 s%d, s%d, 64', sNEED, sNEED)
        flag_gate(vFL, vFA, sNEED)
        stamp(3)
        L, D = A.newlabel('Lq1'), A.newlabel('Lq1d')
        A.label(L)
        A('buffer_load_dwordx4 %s, v%d, %s, s%d offen sc1', v(LRAW, 4), vCH, WS, sB)
        A('s_waitcnt vmcnt(0)')
        check_sentinel(range(LRAW, LRAW + 4), TT)
        A('s_cbranch_vccz %s', D)
        poll_tail(L, D)
        stamp(4)
        L, D = A.newlabel('Lq2'), A.newlabel('Lq2d')
        A.label(L)
        for i in range(3):
            A('buffer_load_dwordx4 %s, v%d, %s, s%d offen offset:%d sc1', v(AR + 4 * i, 4), vCH, WS, sC, 1024 * i)
        for i in range(1, 3):
            A('buffer_load_dwordx4 %s, v%d, %s, s%d offen offset:%d sc1', v(LRAW + 4 * i, 4), vCH, WS, sB, 1024 * i)
        for h in range(2):
            A('v_mfma_f32_16x16x16_bf16 %s, %s, %s, 0', v(LF + 4 * h, 4), v(vI, 2), v(LRAW + 2 * h, 2))
        A('s_waitcnt vmcnt(0)')
        check_sentinel(list(range(AR, AR + 12)) + list(range(LRAW + 4, LRAW + 12)), AR + 36)
        A('s_cbranch_vccz %s', D)
        poll_tail(L, D)
        stamp(5)
        sum_partials(S, LRAW, AR, LF, vI, {0})
        for i in range(4):
            S('v_cvt_pk_bf16_f32 v%d, v%d, v%d', AR + i, LF + 2 * i, LF + 2 * i + 1)
        S('ds_write_b128 v%d, %s offset:%d', vCH, v(AR, 4), MEM)
        fill = {}
        cv = lambda c: ['v_cvt_pk_bf16_f32 v%d, v%d, v%d' % (AR + 4 * c + i, LF + 8 * c + 2 * i, LF + 8 * c + 2 * i + 1) for i in range(4)]
        spread(fill, 0, cv(1) + cv(2), per=2)
        fill.setdefault(2, []).insert(0, 'ds_write_b128 v%d, %s offset:%d' % (vCH, v(AR + 4, 4), MEM + 1024))
        fill.setdefault(4, []).insert(0, 'ds_write_b128 v%d, %s offset:%d' % (vCH, v(AR + 8, 4), MEM + 2048))
        fill.setdefault(7, []).extend(['s_waitcnt lgkmcnt(0)', 's_barrier'])
        spread(fill, 8, [a_read(i, AR, vR) for i in range(3, 10)])
        vm = [['v_mov_b32 v%d, -1' % Y, 'v_mov_b32 v%d, -1' % (Y + 1),
               'buffer_store_dwordx2 %s, v%d, %s, s%d offen%s' % (v(Y, 2), vPX, WS, sP1, sc)],
              ['buffer_store_dword v%d, v%d, %s, s%d offen%s' % (Y, vPM, WS, sP1, sc)]]
        vm += px_stores(False)
        vm += [['buffer_load_dwordx4 %s, v%d, %s, s%d offen offset:%d sc1' % (v(QR + 4 * i, 4), vL16, WS, sQC, 1024 * i)] for i in range(3)]
        vm += [['buffer_load_dwordx4 %s, v%d, %s, s%d offen offset:%d sc1' % (v(KN + 4 * i, 4), vL16, WS, sKN, 1024 * i)] for i in range(3)]
        vm += [['buffer_load_dword v%d, v%d, %s, 0 offen sc1' % (vFL, vFA, WS)]]
        k = 16
        for op in vm:
            fill.setdefault(k, []).extend(op)
            k += 2

        def post(p):
            q, kk = ACC + 4 * p, ACC + 12 + 4 * p
            ops = ['v_permlane32_swap_b32 v%d, v%d' % (q + i, kk + i) for i in range(4)]
            ops += ['v_add_f32 v%d, v%d, v%d' % (q + i, q + i, kk + i) for i in range(4)]
            ops += ['v_cvt_pk_bf16_f32 v%d, v%d, v%d' % (q + i, q + 2 * i, q + 2 * i + 1) for i in range(2)]
            mf = 'v_mfma_f32_16x16x16_bf16 %s, %s, %s, 0' % (v(kk, 4), v(q, 2), v(vI, 2))
            fin = ['v_cvt_pk_bf16_f32 v%d, v%d, v%d' % (Y + 2 * p + i, kk + 2 * i, kk + 2 * i + 1) for i in range(2)]
            return ops, mf, fin
        for p in range(2):
            ops, mf, fin = post(p)
            st = 18 + 14 * (p + 1) + 3
            e = spread(fill, st, ops)
            if p == 0:
                fill.setdefault(e + 1, []).append(mf)
                spread(fill, e + 6, fin)
        run_stream(S, seq, lambda key, b: 'v_smfmac_f32_16x16x64_bf16 %s, %s, %s, v%d' % (v(ACC + 4 * key[0], 4), v(AR + 4 * key[1], 4), b, vIDX),
                   loc, NL, STG, NB, vWL, fill)
        assert max(fill) < 60, max(fill)
        stamp(6)
        _, mf1, fin1 = post(1)
        ops2, mf2, fin2 = post(2)
        S(mf1)
        for ln in ops2:
            S(ln)
        S(mf2)
        for ln in fin1:
            S(ln)
        S('v_mfma_f32_16x16x32_bf16 %s, %s, %s, 0', v(SM, 4), v(Y, 4), v(Y, 4))
        S('v_mfma_f32_16x16x32_bf16 %s, %s, %s, 0', v(SX, 4), v(KC, 4), v(Y, 4))
        S('v_mfma_f32_16x16x32_bf16 %s, %s, %s, 0', v(SX + 4, 4), v(KC + 4, 4), v(Y, 4))
        for ln in fin2:
            S(ln)
        S('v_mfma_f32_16x16x16_bf16 %s, %s, %s, %s', v(SM, 4), v(Y + 4, 2), v(Y + 4, 2), v(SM, 4))
        S('v_mfma_f32_16x16x16_bf16 %s, %s, %s, %s', v(SX, 4), v(KC + 8, 2), v(Y + 4, 2), v(SX, 4))
        S('v_mfma_f32_16x16x16_bf16 %s, %s, %s, %s', v(SX + 4, 4), v(KC + 10, 2), v(Y + 4, 2), v(SX + 4, 4))
        A('s_lshl_b32 s%d, s%d, 10', sA, sW)
        S('v_add_u32 v%d, s%d, v%d', TT, sA, vL16)
        S('v_lshrrev_b32 v%d, 1, v%d', TT + 1, TT)
        dpp = 'v_mov_b32_dpp v%d, v%d row_ror:8 row_mask:0xf bank_mask:0xc'
        S(dpp, SM, SM + 2)
        S(dpp, SM + 1, SM + 3)
        S('ds_write_b64 v%d, %s offset:%d', TT + 1, v(SM, 2), EXM)
        S(dpp, SX + 2, SX)
        S(dpp, SX + 3, SX + 1)
        S(dpp, SX + 4, SX + 6)
        S(dpp, SX + 5, SX + 7)
        S('ds_write_b128 v%d, %s offset:%d', TT, v(SX + 2, 4), EX)
        S('s_waitcnt lgkmcnt(0)')
        S('s_barrier')
        skip = A.newlabel('Lqs')
        A('s_cmp_lg_u32 s%d, 0', sW)
        A('s_cbranch_scc1 %s', skip)
        X = SX + 2
        for w in range(4):
            S('ds_read_b32 v%d, v%d offset:%d', ACC + 12 + w, vMMR, 512 * w)
        for w in range(1, 4):
            S('ds_read_b128 %s, v%d offset:%d', v(ACC + 4 * (w - 1), 4), vL16, EX + 1024 * w)
        MMv = ACC + 12
        S('v_add_f32 v%d, v%d, v%d', MMv, MMv, MMv + 1)
        S('v_add_f32 v%d, v%d, v%d', MMv + 2, MMv + 2, MMv + 3)
        S('v_add_f32 v%d, v%d, v%d', MMv, MMv, MMv + 2)
        for w in range(3):
            for i in range(0, 4, 2):
                S('v_pk_add_f32 %s, %s, %s', v(X + i, 2), v(X + i, 2), v(ACC + 4 * w + i, 2))
        MX, SU = TT, TT + 2
        A('v_max3_f32 v%d, v%d, v%d, v%d', MX, X, X + 1, MMv)
        A('v_max3_f32 v%d, v%d, v%d, v%d', MX, X + 2, X + 3, MX)
        allreduce8(MX, TT + 1, 'v_max_f32')
        A('v_mul_f32 v%d, s%d, v%d', MX, sCS, MX)
        vals = [X, X + 1, X + 2, X + 3, MMv]
        for r in vals:
            A('v_fma_f32 v%d, v%d, s%d, -v%d', r, r, sCS, MX)
        for r in vals:
            A('v_exp_f32 v%d, v%d', r, r)
        A('v_add_f32 v%d, v%d, v%d', SU, X, X + 1)
        A('v_add_f32 v%d, v%d, v%d', TT + 3, X + 2, X + 3)
        A('v_add_f32 v%d, v%d, v%d', SU, SU, MMv)
        A('v_add_f32 v%d, v%d, v%d', SU, SU, TT + 3)
        allreduce8(SU, TT + 1, 'v_add_f32')
        A('v_rcp_f32 v%d, v%d', SU, SU)
        for r in [MMv] + vals[:4]:
            A('v_mul_f32 v%d, v%d, v%d', r, r, SU)
        A('v_mov_b32_dpp v%d, v%d row_ror:8 row_mask:0xf bank_mask:0xf', MMv + 1, MMv)
        A('v_cvt_pk_bf16_f32 v%d, v%d, v%d', X, X, X + 1)
        A('v_cvt_pk_bf16_f32 v%d, v%d, v%d', X + 1, X + 2, X + 3)
        A('s_waitcnt vmcnt(9)')
        A('buffer_store_dwordx2 %s, v%d, %s, s%d offen%s', v(X, 2), vPX, WS, sP0, sc)
        A('v_cvt_pk_bf16_f32 v%d, v%d, v%d', MMv, MMv, MMv + 1)
        A('buffer_store_dword v%d, v%d, %s, s%d offen%s', MMv, vPM, WS, sP0, sc)
        A.label(skip)
        stamp(7)
        A('s_waitcnt vmcnt(0)')
        A('v_mov_b32 v%d, s%d', TT + 2, sSEG)
        A('v_mov_b32 v%d, 0', TT + 3)
        A('s_mov_b64 exec, 1')
        A('buffer_store_dword v%d, v%d, %s, s%d offen sc1', TT + 2, TT + 3, WS, sFLG)
        A('s_mov_b64 exec, -1')
        if OPT.get('pf', 1):
            A('v_lshlrev_b32 v%d, 3, v%d', TT + 4, vL16)
            A('buffer_load_dword v%d, v%d, %s, s%d offen', TT + 5, TT + 4, WS, sVOP)
            A('v_lshrrev_b32 v%d, 2, v%d', TT + 4, TT + 4)
            A('v_and_b32 v%d, 0xffffff80, v%d', TT + 4, TT + 4)
            A('s_add_u32 s%d, s%d, 8192', sA, sVOP)
            A('buffer_load_dword v%d, v%d, %s, s%d offen', TT + 6, TT + 4, WS, sA)
        tiles = [(Y, Y + 4, 0), (Y, Y + 4, 1), (KC, KC + 8, 0), (KC, KC + 8, 1), (KC + 4, KC + 10, 1)]
        for i, (k4, k2, qt) in enumerate(tiles):
            A('v_mfma_f32_16x16x32_bf16 %s, %s, %s, 0', v(XS_ + 4 * i, 4), v(k4, 4), v(QR + 4 * qt, 4))
        for i, (k4, k2, qt) in enumerate(tiles):
            A('v_mfma_f32_16x16x16_bf16 %s, %s, %s, %s', v(XS_ + 4 * i, 4), v(k2, 2), v(QR + 8 + 2 * qt, 2), v(XS_ + 4 * i, 4))
        A('s_mul_i32 s%d, s%d, 5120', sA, sW)
        A('v_add_u32 v%d, s%d, v%d', TT, sA, vL16)
        for i in range(5):
            A('ds_write_b128 v%d, %s offset:%d', TT, v(XS_ + 4 * i, 4), EXX + 1024 * i)
        A('s_waitcnt lgkmcnt(0)')
        A('s_barrier')
        skip = A.newlabel('Lqx')
        A('s_cmp_lt_u32 s%d, 2', sW)
        A('s_cbranch_scc1 %s', skip)
        A('s_sub_u32 s%d, s%d, 2', sB, sW)
        A('s_lshl_b32 s%d, s%d, 10', sA, sB)
        A('v_add_u32 v%d, s%d, v%d', TT, sA, vL16)
        V0 = XS_
        for j, off in enumerate((0, 2048, 3072)):
            for w in range(4):
                dst = V0 + 4 * j if w == 0 else ACC + 4 * (w - 1)
                A('ds_read_b128 %s, v%d offset:%d', v(dst, 4), TT, EXX + 5120 * w + off)
            A('s_waitcnt lgkmcnt(0)')
            for w in range(3):
                for i in range(0, 4, 2):
                    A('v_pk_add_f32 %s, %s, %s', v(V0 + 4 * j + i, 2), v(V0 + 4 * j + i, 2), v(ACC + 4 * w + i, 2))
        QD = TT + 1
        A('v_bfe_u32 v%d, v%d, 4, 4', QD, vL16)
        A('v_lshrrev_b32 v%d, 8, v%d', TT + 2, vL16)
        A('v_cmp_le_u32 vcc, 2, v%d', TT + 2)
        A('v_mov_b32 v%d, 0x%x', TT + 3, NEG_BIG)
        for i in range(4):
            A('v_cndmask_b32 v%d, v%d, v%d, vcc', V0 + i, TT + 3, V0 + i)
        A('v_lshlrev_b32 v%d, 2, v%d', TT + 2, TT + 2)
        A('v_sub_u32 v%d, v%d, v%d', QD, QD, TT + 2)
        A('s_lshl_b32 s%d, s%d, 4', sA, sB)
        A('v_add_u32 v%d, s%d, v%d', QD, sA, QD)
        A('v_mov_b32 v%d, 0x%x', TT + 3, NEG_MASK)
        for j in range(2):
            for i in range(4):
                A('v_cmp_le_i32 vcc, %d, v%d', 16 * j + i, QD)
                A('v_cndmask_b32 v%d, v%d, v%d, vcc', V0 + 4 + 4 * j + i, TT + 3, V0 + 4 + 4 * j + i)
        MX, SU, t = TT + 2, TT + 3, TT + 1
        A('v_max3_f32 v%d, v%d, v%d, v%d', MX, V0, V0 + 1, V0 + 2)
        for i in range(3, 11, 2):
            A('v_max3_f32 v%d, v%d, v%d, v%d', MX, MX, V0 + i, V0 + i + 1)
        A('v_max_f32 v%d, v%d, v%d', MX, MX, V0 + 11)
        allreduce4(MX, t, 'v_max_f32')
        for i in range(12):
            A('v_sub_f32 v%d, v%d, v%d', V0 + i, V0 + i, MX)
            A('v_mul_f32 v%d, s%d, v%d', V0 + i, sCS, V0 + i)
            A('v_exp_f32 v%d, v%d', V0 + i, V0 + i)
        A('v_add_f32 v%d, v%d, v%d', SU, V0, V0 + 1)
        for i in range(2, 12):
            A('v_add_f32 v%d, v%d, v%d', SU, SU, V0 + i)
        allreduce4(SU, t, 'v_add_f32')
        A('v_rcp_f32 v%d, v%d', SU, SU)
        for i in range(12):
            A('v_mul_f32 v%d, v%d, v%d', V0 + i, V0 + i, SU)
        for i in range(4):
            A('v_cvt_pk_bf16_f32 v%d, v%d, v%d', PXH + i, V0 + 4 + 2 * i, V0 + 5 + 2 * i)
        for i in range(2):
            A('v_cvt_pk_bf16_f32 v%d, v%d, v%d', PXH + 4 + i, V0 + 2 * i, V0 + 1 + 2 * i)
        A.label(skip)
        A('s_mov_b32 s%d, s%d', sPXS, sPXO)
        A('s_add_u32 s%d, s%d, %d', sPXO, sPXO, 32 * 2560)
        rot3(sR0, sR1, sR2)
        A('s_mov_b32 s%d, s%d', sA, sP0)
        A('s_mov_b32 s%d, s%d', sP0, sP1)
        A('s_mov_b32 s%d, s%d', sP1, sA)
        A('s_add_u32 s%d, s%d, 12288', sKN, sKN)
        A('s_add_u32 s%d, s%d, 12288', sQC, sQC)
        A('s_add_u32 s%d, s%d, %d', sVOP, sVOP, 40 * 40960)
        A('s_add_u32 s%d, s%d, 1', sSEG, sSEG)
        stamp(8)
        A('s_cmp_lt_u32 s%d, 64', sSEG)
        A('s_cbranch_scc1 L_RQ_%s', tag)
        A('s_branch L_RQ_fin')

    loop('fast', '')
    loop('slow', ' sc1')
    A.label('L_RQ_fin')
    for op in px_stores(False):
        for ln in op:
            A(ln)
    A('s_waitcnt vmcnt(0)')
    A('v_mov_b32 v%d, 64', TT + 2)
    A('v_mov_b32 v%d, 0', TT + 3)
    A('s_mov_b64 exec, 1')
    A('buffer_store_dword v%d, v%d, %s, s%d offen sc1', TT + 2, TT + 3, WS, sFLG)
    A('s_mov_b64 exec, -1')
    finish_role(3)


def allreduce4(x, t, op):
    A('v_mov_b32 v%d, v%d', t, x)
    A('v_permlane16_swap_b32 v%d, v%d', x, t)
    A('%s v%d, v%d, v%d', op, x, x, t)
    A('v_mov_b32 v%d, v%d', t, x)
    A('v_permlane32_swap_b32 v%d, v%d', x, t)
    A('%s v%d, v%d, v%d', op, x, x, t)


from role_rv import role_rv as _rv, role_f as _f


def role_rv(g):
    _rv(globals())


def role_f(g):
    globals().update({k: g[k] for k in g if not k.startswith('__') and k not in ('role_rv', 'role_f', 'role_rq')})
    _f(globals())
```

```python
import sys
from asmlib import Asm, Stream, v, a_, s
from layout import *

OPT = dict(stamp=0, force_slow=0, roles='all', memdbg=0)
for arg in sys.argv[2:]:
    k, val = arg.split('=')
    OPT[k] = val if k == 'roles' else int(val)

A = Asm()
sW, sT, sG, sMODE = 4, 5, 6, 7
WS, XS, WA, WB, OUT, DBG, MEM0 = 's[8:11]', 's[12:15]', 's[16:19]', 's[20:23]', 's[24:27]', 's[28:31]', 's[32:35]'
sBUD = 36
sA, sB, sC = 37, 38, 39
pX, pMEM0, pWQ, pWK, pWV, pWO, pW1, pW2, pOUT, pDBG, pWS = 40, 42, 44, 46, 48, 50, 56, 58, 60, 62, 64
sSEG, sIDX, sHEAD = 66, 67, 68
s0_, s1_, s2_, s3_, s4_, s5_, s6_, s7_ = range(70, 78)
BUDGET = 1 << 16
D_INIT = 40
D_FAIL = 44


def srd(base, ptr, nbytes):
    A('s_mov_b32 s%d, s%d', base, ptr)
    A('s_and_b32 s%d, s%d, 0xffff', base + 1, ptr + 1)
    A('s_mov_b32 s%d, 0x%x', base + 2, nbytes)
    A('s_mov_b32 s%d, 0x20000', base + 3)


def poll_tail(loop, done, sleep=0):
    if sleep:
        A('s_sleep %d', sleep)
    A('s_sub_u32 s%d, s%d, 1', sBUD, sBUD)
    A('s_cbranch_scc0 %s', loop)
    A('s_mov_b32 s%d, 0', sBUD)
    A.label(done)


def stamp(idx, vt=None):
    if OPT['stamp']:
        A('s_memtime s[%d:%d]', 80 + 2 * idx, 81 + 2 * idx)


def arrive_init(vt):
    L = A.newlabel('Larr')
    A('s_cmp_lg_u32 s%d, 0', sW)
    A('s_cbranch_scc1 %s', L)
    A('s_lshl_b32 s%d, s%d, 16', sA, sMODE)
    A('s_add_u32 s%d, s%d, 1', sA, sA)
    A('s_mov_b64 exec, 1')
    A('v_mov_b32 v%d, s%d', vt, sA)
    A('v_mov_b32 v%d, %d', vt + 1, D_INIT)
    A('buffer_atomic_add v%d, v%d, %s, 0 offen', vt, vt + 1, DBG)
    A('s_mov_b64 exec, -1')
    A.label(L)


def wait_init(vt):
    L, D = A.newlabel('Lwi'), A.newlabel('Lwid')
    A('v_mov_b32 v%d, %d', vt + 1, D_INIT)
    A.label(L)
    A('buffer_load_dword v%d, v%d, %s, 0 offen sc1', vt, vt + 1, DBG)
    A('s_waitcnt vmcnt(0)')
    A('v_readfirstlane_b32 s%d, v%d', sA, vt)
    A('s_and_b32 s%d, s%d, 0xffff', sB, sA)
    A('s_cmp_ge_u32 s%d, 256', sB)
    A('s_cbranch_scc1 %s', D)
    poll_tail(L, D, sleep=4)
    A('s_lshr_b32 s%d, s%d, 16', sMODE, sA)


def zero_flag(vt, sflag):
    A('s_mov_b64 exec, 1')
    A('v_mov_b32 v%d, 0', vt)
    A('buffer_store_dword v%d, v%d, %s, s%d offen sc1', vt, vt, WS, sflag)
    A('s_mov_b64 exec, -1')


SLOT = 24576
NSLOT = 6
sLW6, sLW5, sSTR = 90, 91, 92


def stages_n192(srdname, srs, scol, dest, lane, setup=True):
    vo, va, vb = 4, 10, 13
    t0, t1, t2 = 16, 17, 18
    if setup:
        for i in range(6):
            A('v_add_u32 v%d, %d, v%d', t0, 64 * i, lane)
            A('v_mul_u32_u24 v%d, 2731, v%d', t1, t0)
            A('v_lshrrev_b32 v%d, 16, v%d', t1, t1)
            A('v_mul_u32_u24 v%d, 24, v%d', t2, t1)
            A('v_sub_u32 v%d, v%d, v%d', t0, t0, t2)
            A('v_and_b32 v%d, 2, v%d', t2, t1)
            A('v_xor_b32 v%d, v%d, v%d', t0, t0, t2)
            A('v_and_b32 v%d, 8, v%d', t2, t1)
            A('v_lshrrev_b32 v%d, 1, v%d', t2, t2)
            A('v_xor_b32 v%d, v%d, v%d', t0, t0, t2)
            A('s_lshl_b32 s%d, s%d, 4', sA, sW)
            A('v_add_u32 v%d, s%d, v%d', t1, sA, t1)
            A('v_mul_lo_u32 v%d, v%d, s%d', t1, t1, srs)
            A('v_lshl_add_u32 v%d, v%d, 4, v%d', t0, t0, t1)
            A('v_add_u32 v%d, s%d, v%d', vo + i, scol, t0)
        A('v_lshrrev_b32 v%d, 4, v%d', t0, lane)
        A('v_bfe_u32 v%d, v%d, 2, 2', t1, lane)
        A('v_lshl_add_u32 v%d, v%d, 3, v%d', t2, t0, t1)
        A('v_mul_u32_u24 v%d, 384, v%d', vb, t2)
        A('v_and_b32 v%d, 1, v%d', vb + 1, lane)
        A('v_lshl_add_u32 v%d, v%d, 3, v%d', vb, vb + 1, vb)
        A('v_and_b32 v%d, 2, v%d', t1, t1)
        A('v_and_b32 v%d, 1, v%d', t0, t0)
        A('v_lshl_or_b32 v%d, v%d, 2, v%d', t1, t0, t1)
        A('v_bfe_u32 v%d, v%d, 1, 1', t0, lane)
        A('s_mul_i32 s%d, s%d, 6', sA, sW)
        for t in range(3):
            A('v_add_u32 v%d, s%d, v%d', t2, sA, t0)
            A('v_add_u32 v%d, %d, v%d', t2, 2 * t, t2)
            A('v_xor_b32 v%d, v%d, v%d', t2, t2, t1)
            A('v_lshl_add_u32 v%d, v%d, 4, v%d', va + t, t2, vb)
        A('s_mul_i32 s%d, s%d, 6144', sLW6, sW)
        A('s_lshl_b32 s%d, s%d, 6', sSTR, srs)

    def mk(st):
        def issue(base):
            A('s_mul_i32 s%d, s%d, %d', sA, sSTR, st)
            for i in range(6):
                A('s_add_u32 m0, s%d, %d', sLW6, base + i * 1024)
                A('buffer_load_dwordx4 v%d, %s, s%d offen lds', vo + i, srdname, sA)

        def consume(w, base):
            for t in range(3):
                A('v_add_u32 v%d, %d, v%d', vb + t, base, va + t)
            for kkl in range(2):
                for j in range(2):
                    for t in range(3):
                        A('ds_read_b64_tr_b16 %s, v%d offset:%d', dest(w, st, kkl, j, t), vb + t, (32 * kkl + 4 * j) * 384)
        return (issue, consume, 6)
    return [mk(st) for st in range(10)]


def stages_k192(srdname, sbase, dest, lane):
    vo, va = 19, 4
    t0, t1, t2, t3 = 2, 3, 16, 17
    A('s_lshl_b32 s%d, s%d, 2', sA, sW)
    for i in range(5):
        A('v_add_u32 v%d, %d, v%d', t0, 64 * i, lane)
        A('v_mul_u32_u24 v%d, 820, v%d', t1, t0)
        A('v_lshrrev_b32 v%d, 16, v%d', t1, t1)
        A('v_mul_u32_u24 v%d, 80, v%d', t2, t1)
        A('v_sub_u32 v%d, v%d, v%d', t0, t0, t2)
        A('v_add_u32 v%d, s%d, v%d', t1, sA, t1)
        A('v_and_b32 v%d, 7, v%d', t2, t1)
        A('v_lshlrev_b32 v%d, 1, v%d', t2, t2)
        A('v_xor_b32 v%d, v%d, v%d', t0, t0, t2)
        A('v_mul_u32_u24 v%d, 1280, v%d', t1, t1)
        A('v_lshl_add_u32 v%d, v%d, 4, v%d', vo + i, t0, t1)
    A('s_mul_i32 s%d, s%d, 5120', sLW5, sW)
    state = {}

    def late_setup():
        u0, u1 = 14, 15
        A('v_lshrrev_b32 v%d, 2, v%d', u0, lane)
        A('v_mul_u32_u24 v%d, 1280, v%d', t3, u0)
        A('v_and_b32 v%d, 1, v%d', u1, lane)
        A('v_lshl_add_u32 v%d, v%d, 3, v%d', t3, u1, t3)
        A('v_and_b32 v%d, 7, v%d', u0, u0)
        A('v_lshlrev_b32 v%d, 1, v%d', u0, u0)
        A('v_bfe_u32 v%d, v%d, 1, 1', u1, lane)
        A('s_mul_i32 s%d, s%d, 20', sA, sW)
        A('v_add_u32 v%d, s%d, v%d', u1, sA, u1)
        for T in range(10):
            A('v_add_u32 v%d, %d, v%d', t2, 2 * T, u1)
            A('v_xor_b32 v%d, v%d, v%d', t2, t2, u0)
            A('v_lshl_add_u32 v%d, v%d, 4, v%d', va + T, t2, t3)

    def mk(st):
        def issue(base):
            A('s_add_u32 s%d, s%d, %d', sA, sbase, st * 20480)
            for i in range(5):
                A('s_add_u32 m0, s%d, %d', sLW5, base + i * 1024)
                A('buffer_load_dwordx4 v%d, %s, s%d offen lds', vo + i, srdname, sA)

        def consume(w, base):
            if st == 0:
                late_setup()
                state['cur'] = 0
            hi = (base // 49152) * 49152
            if hi != state['cur']:
                for T in range(10):
                    A('v_add_u32 v%d, %d, v%d', va + T, hi - state['cur'], va + T)
                state['cur'] = hi
            for T in range(10):
                A('ds_read_b64_tr_b16 %s, v%d offset:%d', dest(st, T), va + T, base - hi)
        return (issue, consume, 5)
    return [mk(st) for st in range(12)]


def per_wave(body):
    done = A.newlabel('Lpw')
    labs = [A.newlabel('Lpw') for _ in range(4)]
    for w in range(1, 4):
        A('s_cmp_eq_u32 s%d, %d', sW, w)
        A('s_cbranch_scc1 %s', labs[w])
    for w in range(4):
        A.label(labs[w])
        body(w)
        if w < 3:
            A('s_branch %s', done)
    A.label(done)


def run_stages(stages, first_hook=None, wsel=False):
    n = len(stages)

    def body(w):
        for st in range(n):
            out = sum(stages[k][2] for k in range(st + 1, min(n, st + NSLOT)))
            A('s_waitcnt vmcnt(%d)', out)
            A('s_barrier')
            if st == 0 and first_hook:
                first_hook()
            stages[st][1](w, (st % NSLOT) * SLOT)
            A('s_waitcnt lgkmcnt(0)')
            if st + NSLOT < n:
                A('s_barrier')
                stages[st + NSLOT][0]((st % NSLOT) * SLOT)
    for st in range(min(NSLOT, n)):
        stages[st][0](st * SLOT)
    if wsel:
        per_wave(body)
    else:
        body(0)


def entry():
    A('s_cmp_ge_u32 s2, 256')
    A('s_cbranch_scc1 L_end')
    A('s_load_dwordx16 s[40:55], s[0:1], 0')
    A('s_load_dwordx8 s[56:63], s[0:1], 64')
    A('s_load_dwordx2 s[64:65], s[0:1], 96')
    A('v_lshrrev_b32 v2, 6, v0')
    A('v_and_b32 v1, 63, v0')
    A('v_readfirstlane_b32 s%d, v2', sW)
    A('s_mov_b32 s%d, %d', sBUD, BUDGET)
    A('s_getreg_b32 s%d, hwreg(HW_REG_XCC_ID)', sC)
    A('s_and_b32 s%d, s%d, 15', sC, sC)
    A('s_waitcnt lgkmcnt(0)')
    srd(8, pWS, WS_BYTES)
    srd(12, pX, 2048 * 640 * 2)
    srd(16, pWQ, 640 * 6144 * 2)
    srd(20, pWK, 640 * 6144 * 2)
    srd(24, pOUT, 2048 * 640 * 2)
    srd(28, pDBG, 256)
    srd(32, pMEM0, 8 * 640 * 2)
    stamp(0)
    A('s_cmp_lg_u32 s%d, 0', sW)
    A('s_cbranch_scc1 L_tk_done')
    A('s_mov_b64 exec, 1')
    A('s_and_b32 s%d, s%d, 7', sG, sC)
    A('s_mov_b32 s%d, 8', sB)
    A.label('L_tk_try')
    A('s_lshl_b32 s%d, s%d, 2', sA, sG)
    A('v_mov_b32 v2, 1')
    A('v_mov_b32 v3, s%d', sA)
    A('buffer_atomic_add v2, v3, %s, 0 offen sc0', DBG)
    A('s_waitcnt vmcnt(0)')
    A('v_readfirstlane_b32 s%d, v2', sT)
    A('s_cmp_lt_u32 s%d, 32', sT)
    A('s_cbranch_scc1 L_tk_got')
    A('s_sub_u32 s%d, s%d, 1', sB, sB)
    A('s_mov_b32 s%d, s%d', sG, sB)
    A('s_cbranch_scc0 L_tk_try')
    A('s_mov_b32 s%d, 8', sG)
    A('s_mov_b32 s%d, 0', sT)
    A.label('L_tk_got')
    A('s_lshl_b32 s%d, s%d, 5', sA, sG)
    A('s_add_u32 s%d, s%d, s%d', sA, sA, sT)
    A('v_mov_b32 v2, s%d', sA)
    A('v_mov_b32 v3, 0')
    A('ds_write_b32 v3, v2')
    A('s_waitcnt lgkmcnt(0)')
    A('s_mov_b64 exec, -1')
    A.label('L_tk_done')
    A('s_barrier')
    A('v_mov_b32 v3, 0')
    A('ds_read_b32 v2, v3')
    A('s_waitcnt lgkmcnt(0)')
    A('v_readfirstlane_b32 s%d, v2', sA)
    A('s_barrier')
    A('s_lshr_b32 s%d, s%d, 5', sG, sA)
    A('s_and_b32 s%d, s%d, 31', sT, sA)
    A('s_mov_b32 s%d, 0', sMODE)
    A('s_cmp_ge_u32 s%d, 8', sG)
    A('s_cbranch_scc1 L_end')
    A('s_cmp_ge_u32 s%d, 2', sG)
    A('s_cbranch_scc1 L_notR')
    A('s_cmp_lg_u32 s%d, s%d', sG, sC)
    A('s_cselect_b32 s%d, 1, %d', sMODE, OPT['force_slow'])
    A('s_and_b32 s%d, s%d, 15', sIDX, sT)
    A('s_lshl_b32 s%d, s%d, 4', sHEAD, sG)
    A('s_add_u32 s%d, s%d, s%d', sHEAD, sHEAD, sIDX)
    A('s_cmp_lt_u32 s%d, 16', sT)
    A('s_cbranch_scc1 L_RQ')
    A('s_branch L_RV')
    A.label('L_notR')
    A('s_sub_u32 s%d, s%d, 2', sG, sG)
    A('s_cmp_lt_u32 s%d, 8', sT)
    A('s_cbranch_scc1 L_F')
    A('s_sub_u32 s%d, s%d, 8', sA, sT)
    A('s_mul_i32 s%d, s%d, 6', sA, sA)
    A('s_add_u32 s%d, s%d, s%d', sIDX, sA, sG)
    A('s_cmp_lt_u32 s%d, 40', sIDX)
    A('s_cbranch_scc1 L_P2')
    A('s_sub_u32 s%d, s%d, 40', sIDX, sIDX)
    A('s_branch L_P1')


def role_off(name):
    if OPT['roles'] == 'all' or name in OPT['roles'].split(','):
        return False
    arrive_init(2)
    A('s_endpgm')
    return True


def finish_role(slot_reg_expr=None):
    L = A.newlabel('Lfin')
    A('s_cmp_lg_u32 s%d, 0', sBUD)
    A('s_cbranch_scc1 %s', L)
    A('s_mov_b64 exec, 1')
    A('v_mov_b32 v2, 1')
    A('v_mov_b32 v3, %d', D_FAIL)
    A('buffer_atomic_add v2, v3, %s, 0 offen', DBG)
    A('s_mov_b64 exec, -1')
    A.label(L)
    if OPT['stamp']:
        A('s_memtime s[98:99]')
        A('s_waitcnt lgkmcnt(0)')
        A('s_mov_b64 exec, 1')
        A('s_lshl_b32 s%d, s2, 2', sA)
        A('s_add_u32 s%d, s%d, s%d', sA, sA, sW)
        A('s_mul_i32 s%d, s%d, 48', sA, sA)
        A('s_add_u32 s%d, s%d, %d', sA, sA, 0xE0000)
        A('v_mov_b32 v3, 0')
        for i in range(10):
            A('v_mov_b32 v2, s%d', 80 + 2 * i)
            A('buffer_store_dword v2, v3, %s, s%d offen offset:%d', WS, sA, 4 * i)
        A('s_lshl_b32 s%d, s%d, 8', sB, sG)
        A('s_add_u32 s%d, s%d, s%d', sB, sB, sT)
        A('s_add_u32 s%d, s%d, %d', sB, sB, slot_reg_expr << 16)
        A('v_mov_b32 v2, s%d', sB)
        A('buffer_store_dword v2, v3, %s, s%d offen offset:40', WS, sA)
    A('s_endpgm')


def role_p1():
    A.label('L_P1')
    if role_off('P1'):
        return
    sRS, sCOL, sOUTB, sFLAG, sXN, sLB = s0_, s1_, s2_, s3_, s4_, s5_
    lane = 1
    A('s_lshr_b32 s%d, s%d, 5', sA, sIDX)
    A('s_and_b32 s%d, s%d, 31', sHEAD, sIDX)
    A('s_mov_b32 s%d, 12288', sRS)
    A('s_mul_i32 s%d, s%d, 384', sCOL, sHEAD)
    A('s_mov_b32 s%d, 0x80008000', s6_)
    A('s_cmp_eq_u32 s%d, 1', sA)
    A('s_cselect_b32 s16, s%d, s16', pWK)
    A('s_cselect_b32 s17, s%d, s%d', pWK + 1, pWQ + 1)
    A('s_cmp_eq_u32 s%d, 2', sA)
    A('s_cselect_b32 s16, s%d, s16', pWV)
    A('s_cselect_b32 s17, s%d, s17', pWV + 1)
    A('s_cmp_eq_u32 s%d, 3', sA)
    A('s_cselect_b32 s16, s%d, s16', pW1)
    A('s_cselect_b32 s17, s%d, s17', pW1 + 1)
    A('s_cselect_b32 s18, 0x%x, s18', 640 * 1536 * 2)
    A('s_cselect_b32 s%d, 3072, s%d', sRS, sRS)
    A('s_cselect_b32 s%d, 0, s%d', s6_, s6_)
    A('s_and_b32 s17, s17, 0xffff')
    assert KX - QX == 32 * 64 * 12288 and VX - KX == 32 * 64 * 12288
    A('s_mul_i32 s%d, s%d, %d', sOUTB, sIDX, 64 * 12288)
    A('s_mul_i32 s%d, s%d, 3072', sA, sW)
    A('s_add_u32 s%d, s%d, s%d', sOUTB, sOUTB, sA)
    A('s_add_u32 s%d, s%d, %d', sOUTB, sOUTB, QX - 12288)
    A('s_lshl_b32 s%d, s%d, 4', sFLAG, sIDX)
    A('s_lshl_b32 s%d, s%d, 2', sA, sW)
    A('s_add_u32 s%d, s%d, s%d', sFLAG, sFLAG, sA)
    A('s_add_u32 s%d, s%d, %d', sFLAG, sFLAG, FL_P1)
    zero_flag(2, sFLAG)
    run_stages(stages_n192(WA, sRS, sCOL, lambda w, st, kkl, j, t: a_(((2 * st + kkl) * 3 + t) * 4 + 2 * j, 2), lane),
               first_hook=lambda: arrive_init(2))
    stamp(1)
    wait_init(2)
    A('s_barrier')
    stamp(2)
    vL16, vLA, vFLOOR, vZ, vCNT = 2, 3, 4, 5, 6
    acc = [8, 20]
    o0, o1, o2 = 32, 36, 40
    ring, NR = 44, 8
    A('v_lshlrev_b32 v%d, 4, v%d', vL16, lane)
    A('v_mov_b32 v%d, v%d', vLA, vL16)
    A('v_mov_b32 v%d, s%d', vFLOOR, s6_)
    A('v_mov_b32 v%d, 0', vZ)
    A('s_mul_i32 s%d, s%d, 10240', sLB, sW)
    A('s_add_u32 s%d, s%d, %d', sXN, sLB, XN)
    A('s_mov_b32 s%d, 0', s7_)

    def dma_ops():
        ops = []
        for i in range(10):
            if i % 4 == 0:
                ops.append(['s_add_u32 s%d, s%d, s%d' % (sA, sLB, s7_),
                            's_add_u32 m0, s%d, %d' % (sA, i * 1024),
                            's_add_u32 s%d, s%d, %d' % (sB, sXN, i * 1024)])
            ops.append(['buffer_load_dwordx4 v%d, %s, s%d offen offset:%d lds' % (vL16, WS, sB, (i % 4) * 1024)])
        ops.append(['s_add_u32 s%d, s%d, 40960' % (sXN, sXN),
                    's_add_u32 s%d, s%d, 40960' % (s7_, s7_),
                    's_cmp_eq_u32 s%d, %d' % (s7_, 3 * 40960),
                    's_cselect_b32 s%d, 0, s%d' % (s7_, s7_)])
        return ops

    for _ in range(2):
        for op in dma_ops():
            for ln in op:
                A(ln)
    A('s_waitcnt vmcnt(10)')
    A('s_barrier')
    PRE = 6
    for f in range(PRE):
        A('ds_read_b128 %s, v%d offset:%d', v(ring + 4 * (f % NR), 4), vLA, f * 1024)
    A('s_mov_b32 s%d, 0', sSEG)
    A('s_mov_b32 s%d, 40960', s6_)

    def epi(tt):
        a0 = acc[tt]
        dst = o0 if tt == 0 else o1
        ops = []
        for i in range(4):
            ops.append(['v_cvt_pk_bf16_f32 v%d, v%d, v%d' % (dst + i, a0 + 2 * i, a0 + 2 * i + 1)])
        for i in range(2):
            ops.append(['v_cvt_pk_bf16_f32 v%d, v%d, v%d' % (o2 + 2 * tt + i, a0 + 8 + 2 * i, a0 + 9 + 2 * i)])
        for r in [dst + i for i in range(4)] + [o2 + 2 * tt, o2 + 2 * tt + 1]:
            ops.append(['v_pk_max_i16 v%d, v%d, v%d' % (r, r, vFLOOR)])
        ops.append(['buffer_store_dwordx4 %s, v%d, %s, s%d offen offset:%d sc1' % (v(dst, 4), vL16, WS, sOUTB, 1024 * tt)])
        if tt == 1:
            ops.append(['buffer_store_dwordx4 %s, v%d, %s, s%d offen offset:2048 sc1' % (v(o2, 4), vL16, WS, sOUTB)])
            ops.append(['s_add_u32 s%d, s%d, 12288' % (sOUTB, sOUTB)])
        return ops

    def flag_ops():
        return [['s_waitcnt vmcnt(0)', 'v_mov_b32 v%d, s%d' % (vCNT, sSEG)],
                ['s_mov_b64 exec, 1', 'buffer_store_dword v%d, v%d, %s, s%d offen sc1' % (vCNT, vZ, WS, sFLAG), 's_mov_b64 exec, -1']]

    def body(first):
        fill = {}

        def place(start, ops, step=1):
            k = start
            for op in ops:
                while k % 3 == 0 or k in fill:
                    k += 1
                fill[k] = op
                k += step
        if not first:
            place(4, epi(1))
            place(50, flag_ops())
        else:
            fill[50] = ['s_waitcnt vmcnt(0)', 's_add_u32 s%d, s%d, 12288' % (sOUTB, sOUTB)]
        place(64, epi(0))
        fill[95] = ['s_barrier']
        place(97, dma_ops())
        for f in range(40):
            tt, kk = divmod(f, 20)
            A('s_waitcnt lgkmcnt(%d)', PRE - 1)
            for t in range(3):
                m = 3 * f + t
                d = v(acc[tt] + 4 * t, 4)
                A('v_mfma_f32_16x16x32_bf16 %s, %s, %s, %s', d, a_((kk * 3 + t) * 4, 4), v(ring + 4 * (f % NR), 4),
                  '0' if kk == 0 else d)
                if t == 0:
                    g = f + PRE
                    if g == 40:
                        A('v_add_u32 v%d, s%d, v%d', vLA, s6_, vL16)
                    A('ds_read_b128 %s, v%d offset:%d', v(ring + 4 * (g % NR), 4), vLA, (g % 40) * 1024)
                for ln in fill.get(m, []):
                    A(ln)
        assert max(fill) < 120
        A('s_add_u32 s%d, s%d, 40960', s6_, s6_)
        A('s_cmp_eq_u32 s%d, %d', s6_, 3 * 40960)
        A('s_cselect_b32 s%d, 0, s%d', s6_, s6_)
        A('s_add_u32 s%d, s%d, 1', sSEG, sSEG)

    body(True)
    stamp(3)
    A.label('L_P1_loop')
    body(False)
    A('s_cmp_lt_u32 s%d, 64', sSEG)
    A('s_cbranch_scc1 L_P1_loop')
    for op in epi(1) + flag_ops():
        for ln in op:
            A(ln)
    finish_role(1)


def p2_frag(E):
    w, t = divmod(E, 3)
    return (w, t) if t < 2 else (4 + (w >> 1), w & 1)


def role_p2():
    A.label('L_P2')
    if role_off('P2'):
        return
    sBASE, sVIN, sOUTB, sFLAG, sSRC, sLB, sAV, sSLOT = s0_, s1_, s2_, s3_, s4_, s5_, s6_, s7_
    lane = 1
    A('s_cmp_lt_u32 s%d, 32', sIDX)
    A('s_cselect_b32 s16, s%d, s%d', pWO, pW2)
    A('s_cselect_b32 s17, s%d, s%d', pWO + 1, pW2 + 1)
    A('s_cselect_b32 s18, s18, 0x%x', 640 * 1536 * 2)
    A('s_and_b32 s17, s17, 0xffff')
    A('s_and_b32 s%d, s%d, 31', sA, sIDX)
    A('s_mul_i32 s%d, s%d, %d', sBASE, sA, 192 * 1280)
    A('s_lshl_b32 s%d, s%d, 4', sFLAG, sIDX)
    A('s_lshl_b32 s%d, s%d, 2', sA, sW)
    A('s_add_u32 s%d, s%d, s%d', sFLAG, sFLAG, sA)
    A('s_add_u32 s%d, s%d, %d', sSRC, sFLAG, FL_P1 + 64 * 16)
    A('s_add_u32 s%d, s%d, %d', sFLAG, sFLAG, FL_P2)
    zero_flag(2, sFLAG)

    def dest(E, T):
        kk, half = p2_frag(E)
        return a_((T * 6 + kk) * 4 + 2 * half, 2)
    run_stages(stages_k192(WA, sBASE, dest, lane), first_hook=lambda: arrive_init(2))
    stamp(1)
    wait_init(2)
    A('s_barrier')
    stamp(2)
    vL16, vLA, vZ, vCNT, vFL = 2, 3, 5, 6, 7
    acc = [8, 16]
    ob = [24, 28]
    vf = 32
    NS = 4
    A('v_lshlrev_b32 v%d, 4, v%d', vL16, lane)
    A('v_mov_b32 v%d, v%d', vLA, vL16)
    A('v_mov_b32 v%d, 0', vZ)
    A('s_mul_i32 s%d, s%d, 3072', sLB, sW)
    A('s_mul_i32 s%d, s%d, %d', sVIN, sIDX, 64 * 12288)
    A('s_add_u32 s%d, s%d, s%d', sVIN, sVIN, sLB)
    A('s_add_u32 s%d, s%d, %d', sVIN, sVIN, VX)
    A('s_mul_i32 s%d, s%d, 40960', sOUTB, sIDX)
    A('s_mul_i32 s%d, s%d, 10240', sA, sW)
    A('s_add_u32 s%d, s%d, s%d', sOUTB, sOUTB, sA)
    A('s_add_u32 s%d, s%d, %d', sOUTB, sOUTB, VO)
    A('s_mov_b32 s%d, 0', sAV)
    A('s_mov_b32 s%d, 0', sSLOT)
    sNEXT = 78
    sRD = 79
    A('s_mov_b32 s%d, 0', sNEXT)

    def need_avail():
        L, D = A.newlabel('Lp2w'), A.newlabel('Lp2d')
        A('s_min_u32 s%d, s%d, 63', sA, sNEXT)
        A('s_cmp_gt_u32 s%d, s%d', sAV, sA)
        A('s_cbranch_scc1 %s', D)
        A.label(L)
        A('buffer_load_dword v%d, v%d, %s, s%d offen sc1', vFL, vZ, WS, sSRC)
        A('s_waitcnt vmcnt(0)')
        A('v_readfirstlane_b32 s%d, v%d', sAV, vFL)
        A('s_cmp_gt_u32 s%d, s%d', sAV, sA)
        A('s_cbranch_scc1 %s', D)
        poll_tail(L, D, sleep=1)

    def dma():
        A('s_add_u32 m0, s%d, s%d', sLB, sSLOT)
        for i in range(3):
            A('buffer_load_dwordx4 v%d, %s, s%d offen offset:%d sc1 lds', vL16, WS, sVIN, i * 1024)
        A('s_add_u32 s%d, s%d, 12288', sVIN, sVIN)
        A('s_add_u32 s%d, s%d, 12288', sSLOT, sSLOT)
        A('s_cmp_eq_u32 s%d, %d', sSLOT, NS * 12288)
        A('s_cselect_b32 s%d, 0, s%d', sSLOT, sSLOT)
        A('s_add_u32 s%d, s%d, 1', sNEXT, sNEXT)

    def rd(tt, kk):
        d = vf + (kk * 2 + tt) * 4
        if kk < 4:
            return ['ds_read_b128 %s, v%d offset:%d' % (v(d, 4), vLA, kk * 3072 + tt * 1024)]
        return ['ds_read_b64 %s, v%d offset:%d' % (v(d + 2 * h, 2), vLA, (2 * (kk - 4) + h) * 3072 + 2048 + tt * 8) for h in range(2)]

    need_avail(); dma()
    A('s_waitcnt vmcnt(0)')
    A('s_barrier')
    for kk in range(6):
        for tt in range(2):
            for ln in rd(tt, kk):
                A(ln)
    A('s_mov_b32 s%d, 12288', sRD)
    A('s_mov_b32 s%d, 0', sSEG)

    def epi(T):
        a0 = acc[T & 1]
        o = ob[T & 1]
        ops = [['v_cvt_pk_bf16_f32 v%d, v%d, v%d' % (o + i, a0 + 2 * i, a0 + 2 * i + 1)] for i in range(4)]
        st = []
        if T % 4 == 0:
            st.append('s_add_u32 s%d, s%d, %d' % (sC, sOUTB, T * 1024))
        st.append('buffer_store_dwordx4 %s, v%d, %s, s%d offen offset:%d sc1' % (v(o, 4), vL16, WS, sC, (T % 4) * 1024))
        if T == 9:
            st.append('s_add_u32 s%d, s%d, %d' % (sOUTB, sOUTB, 40 * 40960))
        ops.append(st)
        return ops

    def flag_ops(n):
        return [['s_waitcnt vmcnt(%d)' % n, 'v_mov_b32 v%d, s%d' % (vCNT, sSEG)],
                ['s_mov_b64 exec, 1', 'buffer_store_dword v%d, v%d, %s, s%d offen sc1' % (vCNT, vZ, WS, sFLAG), 's_mov_b64 exec, -1']]

    def body(first):
        need_avail(); dma()
        A('s_waitcnt lgkmcnt(0)')
        for T in range(10):
            fill = {}
            if T > 0 or not first:
                for i, op in enumerate(epi((T - 1) % 10)):
                    fill[5 + i] = op
            if T == 5 and not first:
                f = flag_ops(4)
                fill[1], fill[2] = f
            if T == 8:
                fill[10] = ['s_waitcnt vmcnt(8)', 's_barrier', 'v_add_u32 v%d, s%d, v%d' % (vLA, sRD, vL16)]
            for kk in range(6):
                for tt in range(2):
                    m = kk * 2 + tt
                    d = v(acc[T & 1] + 4 * tt, 4)
                    A('v_mfma_f32_16x16x32_bf16 %s, %s, %s, %s', d, v(vf + m * 4, 4), a_((T * 6 + kk) * 4, 4), '0' if kk == 0 else d)
                    if T == 9:
                        for ln in rd(tt, kk):
                            A(ln)
                    for ln in fill.get(m, []):
                        A(ln)
        A('s_add_u32 s%d, s%d, 12288', sRD, sRD)
        A('s_cmp_eq_u32 s%d, %d', sRD, NS * 12288)
        A('s_cselect_b32 s%d, 0, s%d', sRD, sRD)
        A('s_add_u32 s%d, s%d, 1', sSEG, sSEG)

    body(True)
    stamp(3)
    A.label('L_P2_loop')
    body(False)
    A('s_cmp_lt_u32 s%d, 64', sSEG)
    A('s_cbranch_scc1 L_P2_loop')
    for op in epi(9) + flag_ops(0):
        for ln in op:
            A(ln)
    finish_role(2)


def allreduce8(x, t, op):
    A('%s_dpp v%d, v%d, v%d row_ror:8 row_mask:0xf bank_mask:0xf', op, x, x, x)
    A('v_mov_b32 v%d, v%d', t, x)
    A('v_permlane16_swap_b32 v%d, v%d', x, t)
    A('%s v%d, v%d, v%d', op, x, x, t)
    A('v_mov_b32 v%d, v%d', t, x)
    A('v_permlane32_swap_b32 v%d, v%d', x, t)
    A('%s v%d, v%d, v%d', op, x, x, t)


def layernorm():
    lane = 1
    vIN, vOUTA, t0, t1, vM, vS = 2, 3, 4, 5, 6, 7
    raw, f = 8, 48
    A('v_and_b32 v%d, 7, v%d', t0, lane)
    A('v_lshrrev_b32 v%d, 3, v%d', t1, lane)
    A('s_lshl_b32 s%d, s%d, 3', sA, sW)
    A('v_add_u32 v%d, s%d, v%d', vIN, sA, t0)
    A('v_mul_u32_u24 v%d, 1280, v%d', vIN, vIN)
    A('v_lshl_add_u32 v%d, v%d, 4, v%d', vIN, t1, vIN)
    A('s_and_b32 s%d, s%d, 1', sA, sW)
    A('s_lshl_b32 s%d, s%d, 7', sA, sA)
    A('s_lshr_b32 s%d, s%d, 1', sB, sW)
    A('s_mul_i32 s%d, s%d, 20480', sB, sB)
    A('s_add_u32 s%d, s%d, s%d', sA, sA, sB)
    A('v_lshlrev_b32 v%d, 8, v%d', vOUTA, t1)
    A('v_lshl_add_u32 v%d, v%d, 4, v%d', vOUTA, t0, vOUTA)
    A('v_add_u32 v%d, s%d, v%d', vOUTA, sA, vOUTA)
    A.label('L_ln_loop')
    A('s_mul_i32 s%d, s%d, 40960', sA, sSEG)
    for j in range(10):
        A('buffer_load_dwordx4 %s, v%d, %s, s%d offen offset:%d', v(raw + 4 * j, 4), vIN, XS, sA, 128 * j)
    A('v_mov_b32 v%d, 0', vM)
    A('v_mov_b32 v%d, 0', vS)
    for j in range(10):
        A('s_waitcnt vmcnt(%d)', 9 - j)
        for i in range(4):
            d = 4 * j + i
            A('v_lshlrev_b32 v%d, 16, v%d', f + 2 * d, raw + d)
            A('v_and_b32 v%d, 0xffff0000, v%d', f + 2 * d + 1, raw + d)
            A('v_add_f32 v%d, v%d, v%d', vM, vM, f + 2 * d)
            A('v_add_f32 v%d, v%d, v%d', vS, vS, f + 2 * d + 1)
    A('v_add_f32 v%d, v%d, v%d', vM, vM, vS)
    allreduce8(vM, t0, 'v_add_f32')
    A('v_mul_f32 v%d, 0x3acccccd, v%d', vM, vM)
    A('v_mov_b32 v%d, 0', vS)
    A('v_mov_b32 v%d, 0', t1)
    for e in range(0, 80, 2):
        A('v_sub_f32 v%d, v%d, v%d', raw, f + e, vM)
        A('v_sub_f32 v%d, v%d, v%d', raw + 1, f + e + 1, vM)
        A('v_fmac_f32 v%d, v%d, v%d', vS, raw, raw)
        A('v_fmac_f32 v%d, v%d, v%d', t1, raw + 1, raw + 1)
    A('v_add_f32 v%d, v%d, v%d', vS, vS, t1)
    allreduce8(vS, t0, 'v_add_f32')
    A('v_mul_f32 v%d, 0x3acccccd, v%d', vS, vS)
    A('v_cvt_pk_bf16_f32 v%d, v%d, v%d', t0, vM, vS)
    A('v_lshlrev_b32 v%d, 16, v%d', vM, t0)
    A('v_and_b32 v%d, 0xffff0000, v%d', vS, t0)
    A('v_add_f32 v%d, 0x3727c5ac, v%d', vS, vS)
    A('v_cvt_pk_bf16_f32 v%d, v%d, v%d', vS, vS, vS)
    A('v_and_b32 v%d, 0xffff0000, v%d', vS, vS)
    A('v_sqrt_f32 v%d, v%d', vS, vS)
    A('v_cvt_pk_bf16_f32 v%d, v%d, v%d', vS, vS, vS)
    A('v_and_b32 v%d, 0xffff0000, v%d', vS, vS)
    A('v_rcp_f32 v%d, v%d', vS, vS)
    A('s_add_u32 s%d, s%d, %d', sA, sA, XN)
    for j in range(10):
        for i in range(4):
            d = 4 * j + i
            A('v_sub_f32 v%d, v%d, v%d', f + 2 * d, f + 2 * d, vM)
            A('v_sub_f32 v%d, v%d, v%d', f + 2 * d + 1, f + 2 * d + 1, vM)
            A('v_cvt_pk_bf16_f32 v%d, v%d, v%d', t0, f + 2 * d, f + 2 * d + 1)
            A('v_lshlrev_b32 v%d, 16, v%d', t1, t0)
            A('v_and_b32 v%d, 0xffff0000, v%d', t0, t0)
            A('v_mul_f32 v%d, v%d, v%d', t1, t1, vS)
            A('v_mul_f32 v%d, v%d, v%d', t0, t0, vS)
            A('v_cvt_pk_bf16_f32 v%d, v%d, v%d', raw + d, t1, t0)
        A('buffer_store_dwordx4 %s, v%d, %s, s%d offen offset:%d sc1', v(raw + 4 * j, 4), vOUTA, WS, sA, 2048 * (j & 1))
        if j & 1:
            A('s_add_u32 s%d, s%d, 4096', sA, sA)
    A('s_add_u32 s%d, s%d, 48', sSEG, sSEG)
    A('s_cmp_lt_u32 s%d, 64', sSEG)
    A('s_cbranch_scc1 L_ln_loop')


from roles_r import role_rq, role_rv, role_f


def main():
    g = globals()
    entry()
    role_p1()
    role_p2()
    role_f(g)
    role_rq(g)
    role_rv(g)
    A.label('L_end')
    A('s_endpgm')
    body = A.finish()
    ref = open('cdna_kernels/%s.s.ref' % NAME).read().split('\n')
    head = [ln for ln in ref if ln.startswith(';') and '@launch' not in ln and 'Override' not in ln and 'grid=ceil' not in ln]
    txt = '\n'.join(head) + '\n; @launch grid=(256,1,1) block=(256,1,1) lds=163840\n'
    txt += '; generated by dev/gen.py (hand-written generator)\n'
    txt += '.amdgcn_target "amdgcn-amd-amdhsa--gfx950"\n.text\n.globl %s_kernel\n.p2align 8\n.type %s_kernel,@function\n%s_kernel:\n' % (NAME, NAME, NAME)
    txt += body
    txt += '''.section .rodata,"a"
.p2align 6
.amdhsa_kernel %s_kernel
  .amdhsa_next_free_vgpr 512
  .amdhsa_next_free_sgpr 102
  .amdhsa_accum_offset 256
  .amdhsa_group_segment_fixed_size 0
  .amdhsa_float_denorm_mode_32 3
  .amdhsa_kernarg_size 104
  .amdhsa_user_sgpr_count 2
  .amdhsa_user_sgpr_kernarg_segment_ptr 1
  .amdhsa_system_sgpr_workgroup_id_x 1
.end_amdhsa_kernel
''' % NAME
    open(sys.argv[1], 'w').write(txt)
    print('wrote', sys.argv[1], len(txt), 'bytes;', A.n_nops, 'hazard nops')


if __name__ == '__main__':
    main()
```

```python
import re

_REG = re.compile(r'^(-|abs\()?([vas])(?:(\d+)|\[(\d+):(\d+)\])\)?$')


def regs_of(tok):
    tok = tok.strip()
    if tok in ('vcc', 'vcc_lo', 'vcc_hi'):
        return {('s', 'vcc')}
    if tok in ('exec', 'exec_lo', 'exec_hi'):
        return {('s', 'exec')}
    if tok == 'm0':
        return {('s', 'm0')}
    m = _REG.match(tok)
    if not m:
        return set()
    f = m.group(2)
    if m.group(3) is not None:
        return {(f, int(m.group(3)))}
    return {(f, i) for i in range(int(m.group(4)), int(m.group(5)) + 1)}


TRANS = ('v_exp_f32', 'v_log_f32', 'v_rcp_f32', 'v_rsq_f32', 'v_sqrt_f32', 'v_sin_f32', 'v_cos_f32')


class Ins:
    def __init__(self, text):
        self.text = text
        t = text.split(';')[0].strip()
        self.label = t.endswith(':')
        self.directive = t.startswith('.') and not self.label
        self.op = '' if (self.label or self.directive or not t) else t.split()[0]
        rest = t[len(self.op):].strip() if self.op else ''
        rest = re.sub(r'quad_perm:\[[^\]]*\]', 'quad_perm', rest)
        parts = [p.strip() for p in rest.split(',')] if rest else []
        self.mods = ''
        if parts:
            sp = parts[-1].split()
            if len(sp) > 1:
                parts[-1] = sp[0]
                self.mods = ' '.join(sp[1:])
        self.ops = parts
        self.classify()

    def classify(self):
        op, o = self.op, self.ops
        R = regs_of
        self.wr, self.rd = set(), set()
        self.kind = 'other'
        self.A = self.B = self.C = set()
        allr = lambda lst: set().union(*[R(x) for x in lst]) if lst else set()
        if op.startswith('v_mfma'):
            self.kind = 'mfma'
            self.wr = R(o[0]); self.A = R(o[1]); self.B = R(o[2]); self.C = R(o[3])
            self.rd = self.A | self.B | self.C
            self.passes = 8 if '32x32' in op else 4
        elif op.startswith('v_smfmac'):
            self.kind = 'mfma'
            self.wr = R(o[0]); self.A = R(o[1]) | R(o[3]); self.B = R(o[2]); self.C = R(o[0])
            self.rd = self.A | self.B | self.C
            self.passes = 8 if '32x32' in op else 4
        elif op.startswith('v_permlane') and 'swap' in op:
            self.kind = 'valu'
            self.wr = R(o[0]) | R(o[1]); self.rd = set(self.wr)
        elif op.startswith('v_'):
            self.kind = 'valu'
            self.wr = R(o[0]); self.rd = allr(o[1:])
            if op.startswith(('v_add_co', 'v_sub_co', 'v_addc_co')):
                self.wr |= R(o[1]); self.rd = allr(o[2:])
            if op.startswith(('v_fmac', 'v_dot2c')) or 'dpp' in op or op.startswith('v_writelane'):
                self.rd |= R(o[0])
        elif op.startswith('ds_read'):
            self.kind = 'ds'
            self.wr = R(o[0]); self.rd = allr(o[1:])
        elif op.startswith('ds_'):
            self.kind = 'ds'
            self.rd = allr(o)
        elif op.startswith('buffer_load'):
            self.kind = 'vmem'
            if 'lds' in self.mods.split():
                self.rd = allr(o) | {('s', 'm0')}
                self.ldsdma = True
            else:
                self.wr = R(o[0]); self.rd = allr(o[1:])
        elif op.startswith('buffer_store'):
            self.kind = 'vmem'
            self.rd = allr(o)
            self.data = R(o[0])
        elif op.startswith('buffer_atomic'):
            self.kind = 'vmem'
            self.rd = allr(o)
            if 'sc0' in self.mods.split():
                self.wr = R(o[0])
        elif op.startswith('s_'):
            self.kind = 'salu'
            if op.startswith(('s_cmp', 's_cbranch', 's_branch', 's_waitcnt', 's_nop', 's_barrier', 's_endpgm',
                              's_sleep', 's_setprio', 's_bitcmp')):
                self.rd = allr(o)
            else:
                self.wr = R(o[0]) if o else set(); self.rd = allr(o[1:])
                if 'saveexec' in op:
                    self.wr |= {('s', 'exec')}

    def states(self):
        if self.label or self.directive or not self.op:
            return 0
        if self.op == 's_nop':
            return int(self.ops[0], 0) + 1
        return 1


def isv(s):
    return {r for r in s if r[0] in 'va'}


def iss(s):
    return {r for r in s if r[0] == 's'}


def need(p, c):
    n = 0
    if p.kind == 'valu':
        vw = isv(p.wr); sw = iss(p.wr)
        if c.kind == 'mfma' and vw & c.rd:
            n = max(n, 2)
        if c.kind == 'valu':
            if ('dpp' in c.op or c.op.startswith('v_permlane')) and vw & c.rd:
                n = max(n, 2)
            if c.op.startswith(('v_readfirstlane', 'v_readlane')) and vw & c.rd:
                n = max(n, 1)
            if p.op.startswith(TRANS) and not c.op.startswith(TRANS) and vw & c.rd:
                n = max(n, 1)
            if sw & c.rd:
                n = max(n, 4 if c.op.startswith(('v_readlane', 'v_writelane')) else 2)
            if 'sdwa' in p.op and vw & (c.rd | c.wr):
                n = max(n, 1)
            if p.op.startswith('v_dot') and p.op != c.op and vw & (c.rd | c.wr):
                n = max(n, 3)
        if c.kind == 'vmem' and sw & c.rd:
            n = max(n, 5)
        if c.kind == 'salu' and sw & c.rd:
            n = max(n, 1)
        if c.op.startswith('s_cbranch_vcc') and ('s', 'vcc') in sw:
            n = max(n, 1)
        if p.op.startswith('v_dot') and c.kind in ('mfma', 'ds', 'vmem') and vw & c.rd:
            n = max(n, 3)
    if p.kind == 'mfma':
        big = {4: 8, 8: 12}[p.passes]
        if c.kind == 'mfma':
            if p.wr & (c.A | c.B):
                n = max(n, big)
            if p.wr & c.C:
                if not (p.wr == c.C and p.passes == c.passes):
                    n = max(n, {4: 6, 8: 10}[p.passes])
            elif p.wr & c.wr:
                n = max(n, {4: 6, 8: 10}[p.passes])
        elif c.kind in ('valu', 'vmem', 'ds'):
            if p.wr & (c.rd | c.wr):
                n = max(n, big)
            if c.kind == 'valu' and p.C & c.wr:
                n = max(n, {4: 3, 8: 7}[p.passes])
    if p.kind == 'salu':
        if ('s', 'm0') in p.wr and getattr(c, 'ldsdma', False):
            n = max(n, 1)
    if p.kind == 'vmem' and hasattr(p, 'data') and len(p.data) >= 3:
        if p.data & c.wr:
            n = max(n, 2)
    return n


class Asm:
    def __init__(self):
        self.lines = []
        self.uid = 0

    def __call__(self, fmt, *a):
        for ln in (fmt % a if a else fmt).split('\n'):
            ln = ln.strip()
            if ln:
                self.lines.append(ln)

    def label(self, name):
        self.lines.append(name + ':')

    def newlabel(self, base='L'):
        self.uid += 1
        return '%s_%d' % (base, self.uid)

    def finish(self, window=14):
        out = []
        nins = 0
        for ln in self.lines:
            c = Ins(ln)
            if c.op:
                d = 0
                req = 0
                piv = None
                for k in range(len(out) - 1, -1, -1):
                    p = out[k]
                    if p.op in ('s_branch', 's_endpgm'):
                        break
                    if p.op:
                        r = need(p, c)
                        if r - d > 0 and piv is None:
                            piv = k
                        if r - d > req:
                            req = r - d
                    d += p.states()
                    if d >= window:
                        break
                if req > 0 and piv is not None and out[piv].kind == 'mfma':
                    k = len(out) - 1
                    while req > 0 and k >= piv:
                        nxt = out[k + 1] if k + 1 < len(out) else c
                        if out[k].op.startswith('v_smfmac') and nxt.kind in ('mfma', 'valu'):
                            n = min(req, 2)
                            out.insert(k + 1, Ins('s_nop %d' % (n - 1)))
                            req -= n
                            nins += 1
                        k -= 1
                if req > 0:
                    out.append(Ins('s_nop %d' % (req - 1)))
                    nins += 1
            out.append(c)
        pos = {i.text.split(';')[0].strip()[:-1]: k for k, i in enumerate(out) if i.label}
        errs = []
        for k, b in enumerate(out):
            if b.op.startswith(('s_cbranch', 's_branch')):
                t = pos[b.ops[0]]
                before = []
                d = 0
                j = k
                while j >= 0 and d < window:
                    if j < k and out[j].op in ('s_branch', 's_endpgm'):
                        break
                    before.append(out[j]); d += out[j].states(); j -= 1
                dd = 0
                j = t
                while j < len(out) and dd < window:
                    c = out[j]
                    if c.op:
                        d = dd
                        for p in before:
                            if p.op:
                                r = need(p, c)
                                if r > d:
                                    errs.append('branch hazard: %s -> %s (via %s) need %d have %d' % (p.text, c.text, b.text, r, d))
                            d += p.states()
                        if c.op in ('s_branch', 's_endpgm'):
                            break
                    dd += c.states(); j += 1
        if errs:
            raise RuntimeError('\n'.join(errs))
        self.n_nops = nins
        return '\n'.join((i.text if i.label else '    ' + i.text) for i in out) + '\n'


def v(a, n=1):
    return 'v%d' % a if n == 1 else 'v[%d:%d]' % (a, a + n - 1)


def a_(a, n=1):
    return 'a%d' % a if n == 1 else 'a[%d:%d]' % (a, a + n - 1)


def s(a, n=1):
    return 's%d' % a if n == 1 else 's[%d:%d]' % (a, a + n - 1)


class Stream:
    def __init__(self, asm):
        self.A = asm
        self.q = []

    def drain(self):
        if self.q:
            self.A('s_waitcnt lgkmcnt(0)')
        self.q = []

    def assume(self, lines):
        for ln in lines:
            self.q.append(Ins(ln).wr)

    def wait_writes(self):
        last = max([k for k, d in enumerate(self.q) if not d], default=-1)
        if last >= 0:
            left = len(self.q) - 1 - last
            self.A('s_waitcnt lgkmcnt(%d)', min(left, 15))
            self.q = self.q[last + 1:] if left <= 15 else self.q[-15:]

    def prewait(self, ln):
        i = Ins(ln)
        touch = i.rd | i.wr
        last = max([k for k, d in enumerate(self.q) if d & touch], default=-1)
        if last >= 0:
            left = len(self.q) - 1 - last
            self.A('s_waitcnt lgkmcnt(%d)', min(left, 15))
            self.q = self.q[last + 1:] if left <= 15 else self.q[-15:]
            return 1
        return 0

    def __call__(self, fmt, *a):
        ln = fmt % a if a else fmt
        if ln == '@ww':
            return self.wait_writes()
        i = Ins(ln)
        if i.op == 's_waitcnt' and 'lgkmcnt(0)' in ln:
            self.q = []
        touch = i.rd | i.wr
        last = -1
        for k, d in enumerate(self.q):
            if d & touch:
                last = k
        if last >= 0:
            left = len(self.q) - 1 - last
            self.A('s_waitcnt lgkmcnt(%d)', min(left, 15))
            self.q = self.q[last + 1:] if left <= 15 else self.q[-15:]
        self.A(ln)
        if i.kind == 'ds':
            self.q.append(i.wr)
```

```python
FL_P1 = 0x1000
FL_P2 = 0x5000
BELL = 0x9000
XTAG = 0x8800
PR = 0x10000
PXR = 0x28000
ZL = 0x5200000
STAMP = 0xF0000
XN = 0x100000
QX = 0x400000
KX = 0x1C00000
VX = 0x3400000
PO = 0x5600000
POG = 40960
VO = 0x6B00000
MG = 0xD400000
TRASH = 0xE000000
TRACE = 0xE100000
WS_BYTES = 0x10000000
NAME = 'parallel_sum__memory_aug_recurrent_mem_tr__dense_activation_relu__prompt'
COFF = [0, 2, 5, 7]
MSTEP = 131072
MGRP = 32768
MEMDBG = 0xD000000
PSLOT = 4 * 5120
NG = 4
GSLOT = 5 * 16384
```

```python
from asmlib import v, a_, s, Stream
from layout import *


def goff(dst, sg):
    A('s_lshr_b32 s%d, s%d, 1', sC, sIDX)
    A('s_lshl_b32 s%d, s%d, 14', sC, sC)
    A('s_and_b32 s%d, s%d, 1', sA, sIDX)
    A('s_lshl_b32 s%d, s%d, 12', sA, sA)
    A('s_add_u32 s%d, s%d, s%d', sC, sC, sA)
    A('s_add_u32 s%d, s%d, s%d', sA, sIDX, sg)
    A('s_and_b32 s%d, s%d, 3', sA, sA)
    A('s_lshl_b32 s%d, s%d, 2', sA, sA)
    A('s_add_u32 s%d, s%d, s%d', sA, sA, sW)
    A('s_lshl_b32 s%d, s%d, 8', sA, sA)
    A('s_add_u32 s%d, s%d, s%d', dst, sC, sA)


def loff(dst):
    A('s_lshl_b32 s%d, s%d, 15', dst, sG)
    A('s_lshl_b32 s%d, s%d, 8', sA, sHEAD)
    A('s_add_u32 s%d, s%d, s%d', dst, dst, sA)
    A('s_cmp_ge_u32 s%d, 5', sIDX)
    A('s_cselect_b32 s%d, %d, 0', sA, 16384 - 5120)
    A('s_add_u32 s%d, s%d, s%d', dst, dst, sA)


def probe():
    A('v_mov_b32 v2, 0')
    A('v_mov_b32 v3, %d', MG + 0x1C0000)
    A('s_mov_b32 s%d, -1', s0_)
    A('s_mov_b32 s%d, -1', s1_)
    A('s_mov_b64 exec, 1')
    for r in range(4):
        for par in range(2):
            A('s_mov_b32 s%d, %d', sB, 8192 * par)
            A('v_mov_b32 v2, 0')
            A('s_memtime s[72:73]')
            A('s_waitcnt lgkmcnt(0)')
            A('buffer_atomic_or v2, v3, %s, s%d offen sc0', WS, sB)
            A('s_waitcnt vmcnt(0)')
            A('s_memtime s[74:75]')
            A('s_waitcnt lgkmcnt(0)')
            A('s_sub_u32 s%d, s74, s72', sA)
            A('s_min_u32 s%d, s%d, s%d', s0_ + par, s0_ + par, sA)
    A('s_mov_b64 exec, -1')
    A('s_cmp_lt_u32 s%d, s%d', s1_, s0_)
    A('s_cselect_b32 s%d, 256, 0', sA)
    if 'par' in OPT:
        A('s_xor_b32 s%d, s%d, %d', sA, sA, 256 * OPT['par'])
    A('s_or_b32 s%d, s%d, s%d', sMODE, sMODE, sA)


def emit():
    sROLE = 3
    lane = 1
    sOWN = 53
    A.label('L_F')
    A('s_mov_b32 s%d, 1', sROLE)
    A('s_lshl_b32 s%d, s%d, 1', sSEG, sG)
    A('s_add_u32 s%d, s%d, s%d', sSEG, sSEG, sT)
    A('s_mov_b32 s%d, s%d', sIDX, sSEG)
    A('s_branch L_LN')
    A.label('L_C')
    A('s_mov_b32 s%d, 0', sROLE)
    A('s_sub_u32 s%d, s%d, 16', sIDX, sT)
    A('s_lshl_b32 s%d, s%d, 2', sSEG, sIDX)
    A('s_add_u32 s%d, s%d, s%d', sSEG, sSEG, sG)
    A('s_add_u32 s%d, s%d, 8', sSEG, sSEG)
    A('s_cmp_lg_u32 s%d, 47', sSEG)
    A('s_cbranch_scc1 L_LN')
    probe()
    A.label('L_LN')
    layernorm()
    A('s_cmp_eq_u32 s%d, 1', sROLE)
    A('s_cbranch_scc1 L_C_nop')
    A('s_lshl_b32 s%d, s%d, 2', sHEAD, sIDX)
    A('s_add_u32 s%d, s%d, s%d', sHEAD, sHEAD, sW)
    A('v_mov_b32 v4, -1')
    A('v_lshlrev_b32 v9, 2, v%d', lane)
    loff(sB)
    for k in range(8):
        A('s_add_u32 s%d, s%d, %d', sA, sB, MG + MSTEP * (k >> 1) + 8192 * (k & 1))
        A('buffer_store_dword v4, v9, %s, s%d offen sc1', WS, sA)
    goff(sB, sG)
    for k in range(40):
        A('s_add_u32 s%d, s%d, %d', sA, sB, MG + GSLOT * (k >> 1) + 8192 * (k & 1))
        A('buffer_store_dword v4, v9, %s, s%d offen sc1', WS, sA)
    A('s_cmp_ge_u32 s%d, 20', sHEAD)
    A('s_cbranch_scc1 L_C_nop')
    A('s_mul_i32 s%d, s%d, 5120', sB, sG)
    A('s_lshl_b32 s%d, s%d, 8', sA, sHEAD)
    A('s_add_u32 s%d, s%d, s%d', sB, sB, sA)
    for k in range(3):
        A('s_add_u32 s%d, s%d, %d', sA, sB, PR + PSLOT * k)
        A('buffer_store_dword v4, v9, %s, s%d offen sc1', WS, sA)
    A.label('L_C_nop')
    A('s_waitcnt vmcnt(0)')
    A('s_barrier')
    arrive_init(2)
    stamp(1)
    A('s_cmp_eq_u32 s%d, 1', sROLE)
    A('s_cbranch_scc1 L_F_go')
    role_c(sOWN)
    role_f()


def tsa(i):
    if not OPT.get('cst'):
        ts(i)


def tsb(i, mode=1):
    if OPT.get('cst') == mode:
        ts(i)


def role_c(sOWN):
    lane = 1
    PL, XL = 0, 8192
    vL16, vIDX2, vZLD, vPMX, vL4, vFL, vFA, vTG, vTA, vPW, vPW1, vT4, vG, vGP, vNEG, vBA = range(2, 18)
    TT = 20
    POH = 28
    PA = 32
    ACCC = 40
    XACC = 44
    PF = 52
    XF = 72
    XCH = 104
    BT = 116
    vGR = 120
    XL_ = 168
    Z = 128
    sLP, sGP, sS1, sS2, sP0, sP1, sZ0, sZ1 = s0_, s1_, s2_, s3_, s4_, s5_, s6_, s7_
    sX0, sX1, sVO, sPO, sP2, sX2, sXT, sNEED, sS3, sZ2, sGS, sXW, sEV = 78, 79, 100, 101, 64, 65, 40, 69, 41, 42, 43, 44, 46
    sL0 = 45
    r_, g_, t0, t1 = range(TT, TT + 4)
    A('v_lshlrev_b32 v%d, 4, v%d', vL16, lane)
    A('v_lshlrev_b32 v%d, 2, v%d', vL4, lane)
    A('v_and_b32 v%d, 8, v%d', t0, lane)
    A('v_cmp_eq_u32 vcc, 0, v%d', t0)
    A('v_mov_b32 v%d, 0xe4e4', t0)
    A('v_mov_b32 v%d, 0x4e4e', t1)
    A('v_cndmask_b32 v%d, v%d, v%d, vcc', vIDX2, t0, t1)
    A('v_and_b32 v%d, 15, v%d', r_, lane)
    A('v_lshrrev_b32 v%d, 4, v%d', g_, lane)
    A('v_mul_u32_u24 v%d, 10240, v%d', t0, g_)
    A('v_lshl_add_u32 v%d, v%d, 4, v%d', vZLD, r_, t0)
    A('v_mul_u32_u24 v%d, 2560, v%d', t0, g_)
    A('v_lshl_add_u32 v%d, v%d, 4, v%d', vPMX, r_, t0)
    A('v_and_b32 v%d, 1, v%d', t0, g_)
    A('v_lshlrev_b32 v%d, 2, v%d', t0, t0)
    A('v_and_b32 v%d, 2, v%d', t1, g_)
    A('v_add_u32 v%d, v%d, v%d', t0, t0, t1)
    A('v_and_b32 v%d, 1, v%d', t1, r_)
    A('v_cmp_eq_u32 s[%d:%d], 0, v%d', sEV, sEV + 1, t1)
    A('v_add_u32 v%d, v%d, v%d', t0, t0, t1)
    A('v_bfe_u32 v%d, v%d, 1, 1', t1, r_)
    A('v_lshl_add_u32 v%d, v%d, 3, v%d', t0, t1, t0)
    A('v_lshrrev_b32 v%d, 2, v%d', t1, r_)
    A('v_lshlrev_b32 v%d, 2, v%d', t1, t1)
    A('v_lshl_add_u32 v%d, v%d, 4, v%d', vT4, t0, t1)
    A('v_and_b32 v%d, 7, v%d', t0, lane)
    A('s_mul_i32 s%d, s%d, 26', sA, sHEAD)
    A('s_lshr_b32 s%d, s%d, 8', sA, sA)
    A('s_lshl_b32 s%d, s%d, 2', sA, sA)
    A('s_lshl_b32 s%d, s%d, 10', sB, sG)
    A('s_add_u32 s%d, s%d, s%d', sA, sA, sB)
    A('s_add_u32 s%d, s%d, %d', sA, sA, FL_P2)
    A('v_lshl_add_u32 v%d, v%d, 7, s%d', vFA, t0, sA)
    A('v_lshlrev_b32 v%d, 2, v%d', vTA, t0)
    A('s_lshl_b32 s%d, s%d, 2', sA, sG)
    A('s_add_u32 s%d, s%d, s%d', sA, sA, sW)
    A('s_lshl_b32 s%d, s%d, 5', sA, sA)
    A('s_add_u32 s%d, s%d, %d', sXT, sA, XTAG)
    A('s_lshl_b32 s%d, s%d, 8', sA, sG)
    A('s_add_u32 s%d, s%d, %d', sA, sA, BELL)
    A('v_add_u32 v%d, s%d, v%d', vBA, sA, vTA)
    A('v_mov_b32 v%d, 0', vFL)
    A('v_mov_b32 v%d, 0', vTG)
    A('v_mov_b32 v%d, -1', vNEG)
    A('s_lshl_b32 s%d, s%d, 10', sA, sW)
    A('v_add_u32 v%d, s%d, v%d', vPW, sA, vL16)
    A('s_lshl_b32 s%d, s%d, 8', sA, sW)
    A('s_add_u32 s%d, s%d, 4096', sA, sA)
    A('v_add_u32 v%d, s%d, v%d', vPW1, sA, vL4)
    A('v_bfe_u32 v%d, v%d, 2, 3', t0, lane)
    A('v_mul_u32_u24 v%d, 1280, v%d', t0, t0)
    A('v_and_b32 v%d, 3, v%d', t1, lane)
    A('v_lshl_add_u32 v%d, v%d, 3, v%d', t0, t1, t0)
    A('v_lshrrev_b32 v%d, 5, v%d', t1, lane)
    A('v_lshl_add_u32 v%d, v%d, 2, v%d', t0, t1, t0)
    A('s_lshl_b32 s%d, s%d, 5', sA, sHEAD)
    A('buffer_load_dword v%d, v%d, %s, s%d offen', POH, t0, MEM0, sA)
    wait_init(TT)
    stamp(2)
    A('s_bfe_u32 s%d, s%d, 0x10018', sGS, sA)
    A('s_lshl_b32 s%d, s%d, 13', sGS, sGS)
    for k, r in enumerate((sGP, sS1, sS2, sS3)):
        A('s_add_u32 s%d, s%d, %d', sB, sG, k)
        goff(r, sB)
        A('s_add_u32 s%d, s%d, s%d', r, r, sGS)
        A('s_add_u32 s%d, s%d, %d', r, r, MG)
    loff(sL0)
    A('s_xor_b32 s%d, s%d, 8192', sA, sGS)
    A('s_add_u32 s%d, s%d, s%d', sL0, sL0, sA)
    A('s_add_u32 s%d, s%d, %d', sL0, sL0, MG)
    A('v_min_u32 v%d, -2, v%d', POH, POH)
    A('buffer_store_dword v%d, v%d, %s, s%d offen sc1', POH, vL4, WS, sL0)
    A('s_lshl_b32 s%d, s%d, 8', sB, sHEAD)
    A('s_mul_i32 s%d, s%d, 5120', sP0, sG)
    A('s_add_u32 s%d, s%d, %d', sP0, sP0, PR)
    A('s_add_u32 s%d, s%d, %d', sP1, sP0, PSLOT)
    A('s_add_u32 s%d, s%d, %d', sP2, sP0, 2 * PSLOT)
    A('s_mul_i32 s%d, s%d, 81920', sZ0, sG)
    A('s_add_u32 s%d, s%d, s%d', sZ0, sZ0, sB)
    A('s_add_u32 s%d, s%d, %d', sZ0, sZ0, ZL)
    A('s_add_u32 s%d, s%d, %d', sZ1, sZ0, 32 * 10240)
    A('s_add_u32 s%d, s%d, %d', sZ2, sZ0, 64 * 10240)
    A('s_mul_i32 s%d, s%d, 5120', sXW, sW)
    A('s_mul_i32 s%d, s%d, 20480', sX2, sG)
    A('s_add_u32 s%d, s%d, s%d', sX2, sX2, sXW)
    A('s_add_u32 s%d, s%d, %d', sX2, sX2, PXR)
    A('s_add_u32 s%d, s%d, %d', sX0, sX2, 32 * 2560)
    A('s_add_u32 s%d, s%d, %d', sX1, sX2, 64 * 2560)
    A('s_mul_i32 s%d, s%d, %d', sVO, sG, 8 * 40960)
    A('s_lshl_b32 s%d, s%d, 10', sA, sHEAD)
    A('s_add_u32 s%d, s%d, s%d', sVO, sVO, sA)
    A('s_add_u32 s%d, s%d, %d', sVO, sVO, VO)
    A('s_mul_i32 s%d, s%d, %d', sPO, sG, POG)
    A('s_add_u32 s%d, s%d, s%d', sPO, sPO, sA)
    A('s_add_u32 s%d, s%d, %d', sPO, sPO, PO - 3 * NG * POG)
    assert PO - 3 * NG * POG >= ZL + 96 * 10240 and PO + 64 * NG * POG <= VO
    A('s_mov_b32 s%d, 0', sSEG)
    A('s_cmp_lg_u32 s%d, 0', sMODE)
    A('s_cbranch_scc1 L_C_slow')

    def xcombine(ab, mid=(), valu=()):
        A('s_add_u32 m0, s%d, %d', sXW, XL)
        for i in range(4):
            A('buffer_load_dwordx4 v%d, %s, s%d offen offset:%d sc1 lds', vL16, WS, sX0, 1024 * i)
        A('s_add_u32 m0, s%d, %d', sXW, XL + 4096)
        A('s_add_u32 s%d, s%d, 4096', sA, sX0)
        A('buffer_load_dwordx4 v%d, %s, s%d offen sc1 lds', vL16, WS, sA)
        for op in mid:
            for ln in op:
                A(ln)
        A('s_waitcnt vmcnt(%d)', len(mid))
        A('s_barrier')
        tsb(1)
        S = Stream(A)
        rd = ['ds_read_b128 %s, v%d offset:%d' % (v(XF + 4 * (n % 8), 4), vL16, XL + 2560 * (n >> 1) + 1024 * (n & 1)) for n in range(16)]
        rd += ['ds_read_b128 %s, v%d offset:%d' % (v(XF + 4 * (n % 8), 4), vPMX, XL + 10240 * ((n >> 1) & 1) + 2048 + 256 * (n & 1)) for n in range(16, 20)]
        for ln in rd[:6]:
            S(ln)
        valu = list(valu)
        for n in range(20):
            d = v(XACC + 4 * (n & 1), 4)
            S('v_mfma_f32_16x16x32_bf16 %s, %s, %s, %s', d, a_(ab + 4 * (n >> 1), 4), v(XF + 4 * (n % 8), 4), '0' if n < 2 else d)
            if n + 6 < 20:
                S(rd[n + 6])
            if valu:
                A(valu.pop(0))
        assert not valu
        rot3(sX0, sX1, sX2)
        for i in range(4):
            A('v_cvt_pk_bf16_f32 v%d, v%d, v%d', POH + i, XACC + 2 * i, XACC + 2 * i + 1)

    def po_store():
        A('buffer_store_dwordx4 %s, v%d, %s, s%d offen sc1', v(POH, 4), vL16, WS, sPO)
        A('s_add_u32 s%d, s%d, %d', sPO, sPO, NG * POG)

    late = []

    def bookkeeping():
        rot3(sP0, sP1, sP2)
        rot3(sZ0, sZ1, sZ2)
        if not OPT.get('fixvo'):
            A('s_add_u32 s%d, s%d, %d', sVO, sVO, 40 * 40960)

    def body(ab, sc):
        ND = OPT.get('nd', 2)
        A('s_add_u32 s%d, s%d, 1', sNEED, sSEG)
        gate(vFL, vFA, '0', sNEED)
        vo = [['s_add_u32 s%d, s%d, %d' % (sB, sVO, 40960 * j),
               'buffer_load_dwordx4 %s, v%d, %s, s%d offen sc1' % (v(Z + 4 * j, 4), vL16, WS, sB)] for j in range(8)]
        mem_slot(sLP, sL0, 2)
        vo.insert(0, ['buffer_store_dword v%d, v%d, %s, s%d offen%s' % (vNEG, vL4, WS, sLP, sc)])
        vo.append(['buffer_store_dwordx4 %s, v%d, %s, s%d offen sc1' % (v(POH, 4), vL16, WS, sPO),
                   's_add_u32 s%d, s%d, %d' % (sPO, sPO, NG * POG)])
        ts(0)
        valu = ['v_mov_b32 v%d, 0' % r for r in list(range(ACCC, ACCC + 4)) + list(range(XCH, XCH + 3 * ND))]
        assert ND <= 3
        NR = OPT.get('nr', 3)
        RSTR = 4 * GSLOT
        valu.append('s_add_u32 s%d, s%d, 1\ns_and_b32 s%d, s%d, 3\ns_mul_i32 s%d, s%d, %d\nv_add_u32 v%d, s%d, v%d' %
                    (sA, sSEG, sA, sA, sA, sA, GSLOT, vG, sA, vL4))
        valu += ['v_add_u32 v%d, %d, v%d' % (vGR + r, RSTR * (r + 1), vG) for r in range(NR)]
        A('s_add_u32 s%d, s%d, 2', sA, sSEG)
        A('s_and_b32 s%d, s%d, 3', sA, sA)
        A('s_mul_i32 s%d, s%d, %d', sA, sA, GSLOT)
        A('v_add_u32 v%d, s%d, v%d', vGP, sA, vL4)
        for r in range(NR + 1):
            vo.append(['s_add_u32 s%d, s%d, %d' % (sB, sGP, RSTR * r), 'buffer_store_dword v%d, v%d, %s, s%d offen sc1' % (vNEG, vGP, WS, sB)])
        xcombine(ab, vo, valu)
        tsa(1)
        tsb(2)
        if OPT.get('cst') == 1:
            A('s_waitcnt vmcnt(0)')
            ts(3)
        mem_slot(sLP, sL0, 1)
        A('s_add_u32 s%d, s%d, 40960', sB, sZ0)
        zl = ['buffer_load_dwordx4 %s, v%d, %s, s%d offen sc1' % (v(Z + 32 + 4 * h, 4), vZLD, WS, (sZ0, sB)[h]) for h in range(2)]
        pl = ['buffer_load_dwordx4 %s, v%d, %s, s%d offen sc1' % (v(PA, 4), vPW, WS, sP0),
              'buffer_load_dword v%d, v%d, %s, s%d offen sc1' % (PA + 4, vPW1, WS, sP0)]
        if OPT.get('bell'):
            nb = 3
            L, D = A.newlabel('Lcb'), A.newlabel('Lcbd')
            ld = lambda k: A('buffer_load_dword v%d, v%d, %s, 0 offen sc1', BT + k, vBA, WS)
            A('s_mov_b64 exec, 0xff')
            for k in range(nb - 1):
                ld(k)
                A('s_sleep 1')
            A.label(L)
            for k in range(nb):
                ld((k + nb - 1) % nb)
                A('s_waitcnt vmcnt(%d)', nb - 1)
                A('v_cmp_gt_u32 vcc, s%d, v%d', sNEED, BT + k)
                A('s_cbranch_vccz %s', D)
            poll_tail(L, D)
            A('s_mov_b64 exec, -1')
        tsb(4)
        if OPT.get('zp', 0):
            late.append(masked_poll(zl + pl, [Z + 32, Z + 36, PA, [PA + 4]], TT, 56))
            tsa(2)
        else:
            late.append(masked_poll(zl, [Z + 32, Z + 36], TT, 56))
            tsa(2)
            late.append(masked_poll(pl, [PA, [PA + 4]], TT, 56))
        tsa(3)
        tsb(5)
        A('ds_write_b128 v%d, %s offset:%d', vPW, v(PA, 4), PL)
        A('ds_write_b32 v%d, v%d offset:%d', vPW1, PA + 4, PL)
        A('s_mov_b64 vcc, s[%d:%d]', sEV, sEV + 1)
        A('s_waitcnt lgkmcnt(0)')
        tsa(4)
        A('s_barrier')
        tsa(5)
        for f in range(5):
            A('ds_read_b128 %s, v%d offset:%d', v(PF + 4 * f, 4), vL16, PL + 1024 * f)
        for f in range(5):
            A('s_waitcnt lgkmcnt(%d)', 4 - f)
            A('v_smfmac_f32_16x16x64_bf16 %s, %s, %s, v%d', v(ACCC, 4), v(PF + 4 * f, 4), v(Z + 8 * f, 8), vIDX2)
        A('v_permlane32_swap_b32 v%d, v%d', ACCC, ACCC + 2)
        A('v_permlane32_swap_b32 v%d, v%d', ACCC + 1, ACCC + 3)
        A('v_pk_add_f32 %s, %s, %s', v(ACCC, 2), v(ACCC, 2), v(ACCC + 2, 2))
        dpp = 'quad_perm:[1,0,3,2] row_mask:0xf bank_mask:0xf'
        A('v_cndmask_b32_dpp v%d, v%d, v%d, vcc %s', ACCC + 2, ACCC + 1, ACCC, dpp)
        A('s_not_b64 vcc, vcc')
        A('v_cndmask_b32_dpp v%d, v%d, v%d, vcc %s', ACCC + 3, ACCC, ACCC + 1, dpp)
        A('v_cvt_pk_bf16_f32 v%d, v%d, v%d', ACCC, ACCC + 2, ACCC + 3)
        for r in range(NR):
            A('buffer_store_dword v%d, v%d, %s, s%d offen sc1', ACCC, vGR + r, WS, sGP)
        ts(6)
        A('buffer_store_dword v%d, v%d, %s, s%d offen sc1', ACCC, vG, WS, sGP)
        mv = ['v_accvgpr_write_b32 a%d, v%d' % (ab + i, Z + i) for i in range(40)]

        def x_issue(k):
            for h, so in enumerate((sS1, sS2, sS3)):
                A('buffer_atomic_or v%d, v%d, %s, s%d offen sc0', XCH + 3 * k + h, vG, WS, so)
        xp = [int(x) for x in OPT.get('xp', '40,75,120').split(',')]
        work = list(mv)
        pos = 0
        done_bk = False
        for r in range(NR):
            while pos < xp[r]:
                if work:
                    A(work.pop(0)); pos += 1
                elif not done_bk:
                    bookkeeping(); done_bk = True; pos += 9
                elif xp[r] - pos >= 16:
                    n = (xp[r] - pos) // 16
                    A('s_sleep %d', n); pos += 16 * n
                else:
                    break
            for h, so in enumerate((sS1, sS2, sS3)):
                A('buffer_load_dword v%d, v%d, %s, s%d offen sc1', XL_ + 3 * r + h, vGR + r, WS, so)
            pos += 6
        for ln in work:
            A(ln)
        if not done_bk:
            bookkeeping()
        L, J, R = A.newlabel('Lc3'), A.newlabel('Lc3j'), A.newlabel('Lc3r')
        DL = [A.newlabel('Lc3l') for _ in range(max(NR, 1))]
        DD = [A.newlabel('Lc3d') for _ in range(ND)]

        def unpack(x):
            for h in range(3):
                A('v_lshlrev_b32 v%d, 16, v%d', TT + 2 * h, x + h)
                A('v_and_b32 v%d, 0xffff0000, v%d', TT + 2 * h + 1, x + h)

        def check(x, n):
            A('s_waitcnt vmcnt(%d)', n)
            A('v_max3_u32 v%d, v%d, v%d, v%d', TT, x, x + 1, x + 2)
            A('v_cmp_eq_u32 vcc, -1, v%d', TT)
        x0 = XL_ if NR else XCH
        check(x0, 3 * (NR - 1) if NR else 0)
        A('s_cbranch_vccnz %s', R)
        unpack(x0)
        A.label(J)

        def rest():
            A.label(R)
            if NR == 0:
                for h in range(3):
                    A('v_mov_b32 v%d, 0', XCH + h)
            for r in range(1, NR):
                extra = 0
                if r == NR - 1:
                    x_issue(0)
                    extra = 3
                check(XL_ + 3 * r, 3 * (NR - 1 - r) + extra)
                A('s_cbranch_vccz %s', DL[r])
            for k in range(0 if NR < 2 else 1, ND):
                if k:
                    A('s_sleep %d', OPT.get('asl', 3))
                x_issue(k)
            A.label(L)
            for k in range(ND):
                check(XCH + 3 * k, 3 * ND - 3)
                A('s_cbranch_vccz %s', DD[k])
                for h in range(3):
                    A('v_mov_b32 v%d, 0', XCH + 3 * k + h)
                x_issue(k)
            A('s_sub_u32 s%d, s%d, 1', sBUD, sBUD)
            A('s_cbranch_scc0 %s', L)
            A('s_mov_b32 s%d, 0', sBUD)
            for lab, x in [(DD[k], XCH + 3 * k) for k in range(ND)] + [(DL[r], XL_ + 3 * r) for r in range(1, NR)]:
                A.label(lab)
                unpack(x)
                A('s_branch %s', J)
        late.append(rest)
        ts(7)
        A('v_pk_add_f32 %s, %s, %s', v(TT, 2), v(TT, 2), v(TT + 2, 2))
        A('v_pk_add_f32 %s, %s, %s', v(ACCC + 2, 2), v(ACCC + 2, 2), v(TT + 4, 2))
        A('v_pk_add_f32 %s, %s, %s', v(TT, 2), v(TT, 2), v(ACCC + 2, 2))
        A('v_cvt_pk_bf16_f32 v%d, v%d, v%d', ACCC, TT, TT + 1)
        A('buffer_store_dword v%d, v%d, %s, s%d offen%s', ACCC, vT4, WS, sLP, sc)
        ts(8)
        ts(9)
        A('s_barrier')
        if OPT['memdbg']:
            A('s_mul_i32 s%d, s%d, 40960', sA, sSEG)
            A('s_mul_i32 s%d, s%d, 10240', sB, sG)
            A('s_add_u32 s%d, s%d, s%d', sA, sA, sB)
            A('s_lshl_b32 s%d, s%d, 8', sB, sHEAD)
            A('s_add_u32 s%d, s%d, s%d', sA, sA, sB)
            A('s_add_u32 s%d, s%d, %d', sA, sA, MEMDBG)
            A('buffer_store_dword v%d, v%d, %s, s%d offen', ACCC, vT4, WS, sA)
        trace_dump(TT + 6)
        A('s_add_u32 s%d, s%d, 1', sSEG, sSEG)

    for tag, sc in (('fast', ''), ('slow', ' sc1')):
        A.label('L_C_%s' % tag)
        body(0, sc)
        body(40, sc)
        A('s_cmp_lt_u32 s%d, 64', sSEG)
        A('s_cbranch_scc1 L_C_%s', tag)
        A('s_branch L_C_fin')
        while late:
            late.pop()()
    A.label('L_C_fin')
    po_store()
    xcombine(0)
    po_store()
    gate(vTG, vTA, 's%d' % sXT, sSEG, sleep=0)
    A('s_barrier')
    xcombine(40)
    po_store()
    r_finish(TT)
    finish_role(6)


def role_f():
    A.label('L_F_go')
    lane = 1
    vL16, vFA1, vFA2, vFL1, vFL2, vXO = 0, 4, 5, 6, 7, 8
    ID = 12
    TT = 18
    XR = 24
    ACC = 40
    POR = 64
    FO = 128
    sVO, sPO, sNEED, sOUT, sT0, sCU = s0_, s1_, s3_, s4_, s5_, s6_
    sOF = 40
    identity(lane, ID, None)
    A('v_mov_b32 v%d, 0', ID + 2)
    A('v_mov_b32 v%d, 0', ID + 3)
    A('v_mov_b32 v%d, v%d', ID + 4, ID)
    A('v_mov_b32 v%d, v%d', ID + 5, ID + 1)
    A('v_lshlrev_b32 v%d, 4, v%d', vL16, lane)
    A('s_and_b32 s%d, s%d, 3', sCU, sIDX)
    A('v_and_b32 v2, 7, v%d', lane)
    A('s_lshl_b32 s%d, s%d, 2', sA, sCU)
    A('s_add_u32 s%d, s%d, %d', sA, sA, FL_P2 + 32 * 128)
    A('v_lshl_add_u32 v%d, v2, 7, s%d', vFA1, sA)
    A('v_mov_b32 v%d, %d', vFA2, D_PROG)
    A('v_mov_b32 v%d, 0', vFL1)
    A('v_mov_b32 v%d, 0', vFL2)
    A('s_mul_i32 s%d, s%d, 5', sA, sW)
    A('s_lshr_b32 s%d, s%d, 1', sA, sA)
    A('s_mul_i32 s%d, s%d, 10', sT0, sCU)
    A('s_add_u32 s%d, s%d, s%d', sT0, sT0, sA)
    A('v_lshrrev_b32 v2, 4, v%d', lane)
    A('v_and_b32 v3, 15, v%d', lane)
    A('v_mul_u32_u24 v%d, 1280, v3', vXO)
    A('v_lshl_add_u32 v%d, v2, 3, v%d', vXO, vXO)
    A('s_lshl_b32 s%d, s%d, 5', sA, sT0)
    A('v_add_u32 v%d, s%d, v%d', vXO, sA, vXO)
    A('s_lshl_b32 s%d, s%d, 10', sT0, sT0)
    wait_init(TT)
    A('s_lshr_b32 s%d, s%d, 2', sSEG, sIDX)
    A.label('L_F_loop')
    A('s_add_u32 s%d, s%d, 1', sNEED, sSEG)
    A('s_mul_i32 s%d, s%d, %d', sVO, sSEG, 40 * 40960)
    A('s_add_u32 s%d, s%d, s%d', sVO, sVO, sT0)
    A('s_add_u32 s%d, s%d, %d', sVO, sVO, VO + 32 * 40960)
    A('s_mul_i32 s%d, s%d, %d', sPO, sSEG, NG * POG)
    A('s_add_u32 s%d, s%d, s%d', sPO, sPO, sT0)
    A('s_add_u32 s%d, s%d, %d', sPO, sPO, PO)
    A('s_mul_i32 s%d, s%d, 40960', sOUT, sSEG)
    A('s_add_u32 s%d, s%d, 20480', sB, sOUT)
    gate(vFL1, vFA1, '0', sNEED, sleep=8)
    for j in range(8):
        A('s_add_u32 s%d, s%d, %d', sA, sVO, j * 40960)
        for t in range(3):
            A('buffer_load_dwordx4 %s, v%d, %s, s%d offen offset:%d sc1', v(FO + (3 * j + t) * 4, 4), vL16, WS, sA, 1024 * t)
    for t in range(3):
        for qt in range(2):
            A('buffer_load_dwordx2 %s, v%d, %s, s%d offen offset:%d', v(XR + 4 * t + 2 * qt, 2), vXO, XS, sB if qt else sOUT, 32 * t)
    for j in range(8):
        A('s_waitcnt vmcnt(%d)', 6 + 3 * (7 - j))
        for t in range(3):
            for qt in range(2):
                d = v(ACC + (2 * t + qt) * 4, 4)
                A('v_mfma_f32_16x16x32_bf16 %s, %s, %s, %s', d, v(FO + (3 * j + t) * 4, 4), v(ID + 2 * qt, 4), '0' if j == 0 else d)
    A('s_waitcnt vmcnt(0)')
    for t in range(3):
        for qt in range(2):
            d = v(ACC + (2 * t + qt) * 4, 4)
            A('v_mfma_f32_16x16x16_bf16 %s, %s, %s, %s', d, v(ID, 2), v(XR + 4 * t + 2 * qt, 2), d)
    gate(vFL2, vFA2, '0', sNEED, sleep=4, buf=DBG)
    stamp(3)
    for x in range(NG):
        A('s_add_u32 s%d, s%d, %d', sC, sPO, x * POG)
        for t in range(3):
            A('buffer_load_dwordx4 %s, v%d, %s, s%d offen offset:%d sc1', v(POR + (3 * x + t) * 4, 4), vL16, WS, sC, 1024 * t)
    for x in range(NG):
        A('s_waitcnt vmcnt(%d)', 3 * (NG - 1 - x))
        for t in range(3):
            for qt in range(2):
                d = v(ACC + (2 * t + qt) * 4, 4)
                A('v_mfma_f32_16x16x16_bf16 %s, %s, %s, %s', d, v(ID, 2), v(POR + (3 * x + t) * 4 + 2 * qt, 2), d)
    for t in range(3):
        for qt in range(2):
            a = ACC + (2 * t + qt) * 4
            o = XR + 4 * t + 2 * qt
            A('v_cvt_pk_bf16_f32 v%d, v%d, v%d', o, a, a + 1)
            A('v_cvt_pk_bf16_f32 v%d, v%d, v%d', o + 1, a + 2, a + 3)
            A('buffer_store_dwordx2 %s, v%d, %s, s%d offen offset:%d', v(o, 2), vXO, OUT, sB if qt else sOUT, 32 * t)
    stamp(4)
    A('s_add_u32 s%d, s%d, 2', sSEG, sSEG)
    A('s_cmp_lt_u32 s%d, 64', sSEG)
    A('s_cbranch_scc1 L_F_loop')
    finish_role(5)
```

```python
from asmlib import v, a_, s, Stream
from layout import *


def emit():
    A.label('L_RQ')
    if role_off('RQ'):
        return
    lane = 1
    NL, NB = 14, 3
    MEM, EX, EXM, EXX, WL = 0, 10240, 14336, 16384, 40960
    assert WL + 4 * NL * 2048 <= 163840
    vCH, vXX, vL4, SPARE, vR = 0, 1, 2, 3, 4
    vIDX, vL16, vWL, vPX, vPM, vFL, vFA, vXS, vEXW, vEXR, vMW = range(7, 18)
    SEL = 18
    _, Y, ACC, AR, STG, XA, KC, QR, VW = 20, 22, 28, 52, 92, 116, 120, 132, 144
    assert QR + 12 == VW
    SM, SX = AR, AR + 4
    XS_ = AR + 12
    TT = AR + 32
    sLB, sG1, sG2, sP0, sP1, sKN, sQC, sX0 = s0_, s1_, s2_, s3_, s4_, s5_, s6_, s7_
    sX1, sXT, sNEED, sJJ, sCS, sX2, sP2 = 78, 79, 69, 100, 101, 54, 55
    sBL, sEX = 53, 48
    sMK = [40, 42, 44, 46]
    seq = [(t, i) for i in range(3) for t in range(6)]
    for p in range(3):
        for i in range(3, 10):
            seq += [(p, i), (3 + p, i)]
    loc = plan(seq, NL, VW)

    A('s_lshl_b32 s%d, s%d, 4', sXT, sHEAD)
    A('s_lshl_b32 s%d, s%d, 2', sA, sW)
    A('s_add_u32 s%d, s%d, s%d', sXT, sXT, sA)
    A('s_add_u32 s%d, s%d, %d', sXT, sXT, XTAG)
    zero_flag(2, sXT)
    A('s_mov_b32 s%d, s%d', sJJ, sIDX)
    A('s_mul_i32 s%d, s%d, 5120', sP0, sG)
    A('s_add_u32 s%d, s%d, %d', sP0, sP0, PR)
    A('s_add_u32 s%d, s%d, %d', sP1, sP0, PSLOT)
    A('s_add_u32 s%d, s%d, %d', sP2, sP0, 2 * PSLOT)
    A('s_mov_b32 s%d, 12288', sKN)
    A('s_mul_i32 s%d, s%d, 384', sQC, sHEAD)

    def dest(off):
        return lambda w, st, kkl, j, t: wpair(loc, (off + t, (st - COFF[w]) % 10), 2 * kkl + j)
    run_stages(stages_n192(WA, sKN, sQC, dest(0), lane) + stages_n192(WB, sKN, sQC, dest(3), lane, setup=False),
               first_hook=lambda: arrive_init(2), wsel=True)
    A('s_mul_i32 s%d, s%d, %d', sA, sW, NL * 2048)
    A('v_lshlrev_b32 v%d, 4, v%d', vWL, lane)
    A('s_add_u32 s%d, s%d, %d', sA, sA, WL)
    A('v_add_u32 v%d, s%d, v%d', vWL, sA, vWL)
    park_to_lds(NL, vWL)
    stamp(1)
    common_consts(lane, vCH, vR, vIDX, TT, vL16)
    fold_matrix(lane, SEL, TT, TT + 1)
    oob, m_, u_, g_, t0, t1 = range(TT, TT + 6)
    A('v_mov_b32 v%d, 0x%x', oob, OOB)
    A('v_lshlrev_b32 v%d, 2, v%d', vL4, lane)
    A('v_and_b32 v%d, 7, v%d', m_, lane)
    A('v_bfe_u32 v%d, v%d, 3, 1', u_, lane)
    A('v_lshrrev_b32 v%d, 4, v%d', g_, lane)
    A('v_lshl_add_u32 v%d, v%d, 1, v%d', t0, g_, u_)
    A('v_add_u32 v%d, v%d, v%d', t0, t0, m_)
    A('v_and_b32 v%d, 7, v%d', t0, t0)
    A('v_lshl_add_u32 v%d, v%d, 3, v%d', t0, m_, t0)
    A('s_lshl_b32 s%d, s%d, 10', sA, sW)
    A('s_add_u32 s%d, s%d, %d', sA, sA, EX)
    A('v_lshl_add_u32 v%d, v%d, 4, s%d', vEXW, t0, sA)
    A('v_and_b32 v%d, 1, v%d', t0, g_)
    A('v_lshl_add_u32 v%d, v%d, 1, v%d', t0, t0, u_)
    A('v_lshl_add_u32 v%d, v%d, 2, v%d', t0, m_, t0)
    A('v_lshlrev_b32 v%d, 3, v%d', t0, t0)
    A('v_lshrrev_b32 v%d, 1, v%d', t1, g_)
    A('v_xor_b32 v%d, 1, v%d', t1, t1)
    A('v_lshl_add_u32 v%d, v%d, 8, v%d', t0, t1, t0)
    A('s_lshl_b32 s%d, s%d, 9', sA, sW)
    A('s_add_u32 s%d, s%d, %d', sA, sA, EXM)
    A('v_add_u32 v%d, s%d, v%d', vMW, sA, t0)
    A('v_lshrrev_b32 v%d, 3, v%d', m_, lane)
    A('v_and_b32 v%d, 1, v%d', u_, lane)
    A('v_bfe_u32 v%d, v%d, 1, 2', g_, lane)
    A('v_add_u32 v%d, v%d, v%d', t0, lane, m_)
    A('v_and_b32 v%d, 7, v%d', t0, t0)
    A('v_lshl_add_u32 v%d, v%d, 3, v%d', t0, m_, t0)
    A('v_lshlrev_b32 v%d, 4, v%d', vEXR, t0)
    A('v_lshl_add_u32 v%d, v%d, 3, v%d', t0, u_, m_)
    A('v_lshlrev_b32 v%d, 4, v%d', vPX, t0)
    A('v_lshrrev_b32 v%d, 1, v%d', t0, g_)
    A('v_lshl_add_u32 v%d, v%d, 8, v%d', vPX, t0, vPX)
    A('v_and_b32 v%d, 1, v%d', t0, g_)
    A('v_lshl_add_u32 v%d, v%d, 3, v%d', vPX, t0, vPX)
    A('s_lshl_b32 s%d, s%d, 9', sA, sJJ)
    A('v_add_u32 v%d, s%d, v%d', vPX, sA, vPX)
    A('v_lshlrev_b32 v%d, 4, v%d', t0, m_)
    A('v_lshl_add_u32 v%d, v%d, 2, v%d', t0, g_, t0)
    A('v_cmp_eq_u32 vcc, 0, v%d', u_)
    A('v_cndmask_b32 v%d, v%d, v%d, vcc', t0, oob, t0)
    A('s_lshl_b32 s%d, s%d, 7', sA, sW)
    A('s_add_u32 s%d, s%d, 2048', sA, sA)
    A('v_add_u32 v%d, s%d, v%d', vXS, sA, t0)
    A('v_lshrrev_b32 v%d, 1, v%d', t0, g_)
    A('v_xor_b32 v%d, v%d, v%d', t1, t0, g_)
    A('v_and_b32 v%d, 1, v%d', t1, t1)
    A('v_xor_b32 v%d, 1, v%d', t1, t1)
    A('v_lshl_add_u32 v%d, v%d, 3, v%d', t1, t1, m_)
    A('v_lshlrev_b32 v%d, 4, v%d', t1, t1)
    A('v_lshl_add_u32 v%d, v%d, 2, v%d', t1, t0, t1)
    A('v_cndmask_b32 v%d, v%d, v%d, vcc', t1, oob, t1)
    A('s_lshr_b32 s%d, s%d, 1', sA, sJJ)
    A('s_lshl_b32 s%d, s%d, 8', sA, sA)
    A('s_and_b32 s%d, s%d, 1', sB, sJJ)
    A('s_lshl_b32 s%d, s%d, 3', sB, sB)
    A('s_add_u32 s%d, s%d, s%d', sA, sA, sB)
    A('s_add_u32 s%d, s%d, 4096', sA, sA)
    A('v_add_u32 v%d, s%d, v%d', vPM, sA, t1)
    A('s_cmp_eq_u32 s%d, 0', sW)
    A('s_cselect_b64 vcc, -1, 0')
    A('v_cndmask_b32 v%d, v%d, v%d, vcc', vPX, oob, vPX)
    A('v_cndmask_b32 v%d, v%d, v%d, vcc', vPM, oob, vPM)
    A('s_lshl_b32 s%d, s%d, 3', sA, sW)
    A('v_add_u32 v%d, s%d, v%d', t0, sA, m_)
    A('v_lshlrev_b32 v%d, 4, v%d', t1, u_)
    A('v_lshl_add_u32 v%d, v%d, 2, v%d', t1, g_, t1)
    A('v_sub_u32 v%d, v%d, v%d', t0, t0, t1)
    for i in range(4):
        A('v_cmp_le_i32 s[%d:%d], %d, v%d', sMK[i], sMK[i] + 1, i, t0)
    A('s_lshl_b32 s%d, s%d, 7', sA, sHEAD)
    A('s_lshl_b32 s%d, s%d, 2', sB, sW)
    A('s_add_u32 s%d, s%d, s%d', sA, sA, sB)
    A('s_add_u32 s%d, s%d, %d', sA, sA, FL_P1)
    A('v_lshl_add_u32 v%d, v%d, 12, s%d', vFA, u_, sA)
    A('v_mov_b32 v%d, 0', vFL)
    A('v_lshl_add_u32 v%d, v%d, 4, v%d', t0, g_, m_)
    A('v_lshlrev_b32 v%d, 4, v%d', t0, t0)
    A('v_lshl_add_u32 v%d, v%d, 3, v%d', t0, u_, t0)
    A('s_lshr_b32 s%d, s%d, 1', sA, sW)
    A('s_lshl_b32 s%d, s%d, 10', sA, sA)
    A('s_and_b32 s%d, s%d, 1', sB, sW)
    A('s_lshl_b32 s%d, s%d, 7', sB, sB)
    A('s_add_u32 s%d, s%d, s%d', sA, sA, sB)
    A('v_add_u32 v%d, s%d, v%d', vXX, sA, t0)
    A('s_mov_b32 s%d, 0x%x', sCS, SCALE_LOG2E)
    wait_init(TT)
    stamp(2)
    mem_bases(sLB)
    A('s_mul_i32 s%d, s%d, %d', sQC, sHEAD, 64 * 12288)
    A('s_mul_i32 s%d, s%d, 3072', sA, sW)
    A('s_add_u32 s%d, s%d, s%d', sQC, sQC, sA)
    A('s_add_u32 s%d, s%d, %d', sKN, sQC, KX)
    A('s_add_u32 s%d, s%d, %d', sQC, sQC, QX)
    A('s_mul_i32 s%d, s%d, 2560', sX0, sHEAD)
    A('s_add_u32 s%d, s%d, %d', sX0, sX0, PXR)
    A('s_add_u32 s%d, s%d, %d', sX1, sX0, 32 * 2560)
    A('s_add_u32 s%d, s%d, %d', sX2, sX0, 64 * 2560)
    A('s_mov_b32 s%d, 0', sSEG)
    A('s_mov_b32 s%d, 1', sNEED)
    gate(vFL, vFA, '0', sNEED)

    def kq_loads():
        for i in range(3):
            A('buffer_load_dwordx4 %s, v%d, %s, s%d offen offset:%d sc1', v(KC + 4 * i, 4), vL16, WS, sKN, 1024 * i)
        for i in range(3):
            A('buffer_load_dwordx4 %s, v%d, %s, s%d offen offset:%d sc1', v(QR + 4 * i, 4), vL16, WS, sQC, 1024 * i)
        if not OPT.get('fixqk'):
            A('s_add_u32 s%d, s%d, 12288', sKN, sKN)
            A('s_add_u32 s%d, s%d, 12288', sQC, sQC)
    kq_loads()
    A('s_cmp_lg_u32 s%d, 0', sMODE)
    A('s_cbranch_scc1 L_RQ_slow')

    def xtag(sc):
        A('v_mov_b32 v%d, s%d', SPARE, sSEG)
        A('s_mov_b64 exec, 1')
        A('buffer_store_dword v%d, off, %s, s%d%s', SPARE, WS, sXT, sc)
        A('s_mov_b64 exec, -1')

    def loop(tag, sc):
        S = Stream(A)
        A.label('L_RQ_%s' % tag)
        for li in range(NB):
            for ln in w_reads(li, STG, NB, vWL):
                S(ln)
        for i in range(24):
            A('v_mov_b32 v%d, 0', ACC + i)
        mem_slot(sG1, sLB, 0)
        ts(0)
        ts(1)
        retry = arrival('q', sG1, AR, vCH, AR + 36)
        ts(2)
        ts(9)
        fill = {}
        S('ds_write_b128 v%d, %s offset:%d', vCH, v(AR, 4), MEM)
        fill[0] = ['ds_write_b128 v%d, %s offset:%d' % (vCH, v(AR + 4, 4), MEM + 1024)]
        fill[1] = ['ds_write_b128 v%d, %s offset:%d' % (vCH, v(AR + 8, 4), MEM + 2048)]
        fill.setdefault(8, []).extend(['@ww', 's_barrier'])
        spread(fill, 9, [a_read(i, AR, vR) for i in range(3, 10)])
        accr = lambda t: ACC + 8 * (t % 3) + 4 * (t // 3)

        def post(p):
            a = ACC + 8 * p
            ops = ['v_cvt_pk_bf16_f32 v%d, v%d, v%d' % (a + i, a + 2 * i, a + 2 * i + 1) for i in range(4)]
            mf = 'v_mfma_f32_16x16x32_bf16 %s, %s, %s, 0' % (v(a + 4, 4), v(a, 4), v(SEL, 4))
            fin = ['v_cvt_pk_bf16_f32 v%d, v%d, v%d' % (Y + 2 * p + i, a + 4 + 2 * i, a + 5 + 2 * i) for i in range(2)]
            return ops, mf, fin
        for p in range(2):
            ops, mf, fin = post(p)
            spread(fill, 18 + 14 * (p + 1) + 6, ops)
        if OPT.get('trace'):
            for i, gp in enumerate(OPT.get('sq', '9,18,40').split(',')):
                fill.setdefault(int(gp), []).insert(0, tstamp(3 + i))
        run_stream(S, seq, lambda key, b: 'v_smfmac_f32_16x16x64_bf16 %s, %s, %s, v%d' % (v(accr(key[0]), 4), v(AR + 4 * key[1], 4), b, vIDX),
                   loc, NL, STG, NB, vWL, fill)
        assert max(fill) < 60, max(fill)
        ts(6)
        _, mf0, fin0 = post(0)
        _, mf1, fin1 = post(1)
        ops2, mf2, fin2 = post(2)
        A(mf0)
        A(mf1)
        for ln in ops2:
            A(ln)
        for ln in fin0:
            A(ln)
        A(mf2)
        for ln in fin1:
            A(ln)
        A('v_mfma_f32_16x16x32_bf16 %s, %s, %s, 0', v(SM, 4), v(Y, 4), v(Y, 4))
        A('v_mfma_f32_16x16x32_bf16 %s, %s, %s, 0', v(SX, 4), v(KC, 4), v(Y, 4))
        A('v_mfma_f32_16x16x32_bf16 %s, %s, %s, 0', v(SX + 4, 4), v(KC + 4, 4), v(Y, 4))
        for ln in fin2:
            A(ln)
        A('v_mfma_f32_16x16x16_bf16 %s, %s, %s, %s', v(SX, 4), v(KC + 8, 2), v(Y + 4, 2), v(SX, 4))
        A('v_mfma_f32_16x16x16_bf16 %s, %s, %s, %s', v(SX + 4, 4), v(KC + 10, 2), v(Y + 4, 2), v(SX + 4, 4))
        A('v_mfma_f32_16x16x16_bf16 %s, %s, %s, %s', v(SM, 4), v(Y + 4, 2), v(Y + 4, 2), v(SM, 4))
        dpp = 'v_mov_b32_dpp v%d, v%d row_ror:8 row_mask:0xf bank_mask:0xc'
        A(dpp, SX + 2, SX)
        A(dpp, SX + 3, SX + 1)
        A(dpp, SX + 4, SX + 6)
        A(dpp, SX + 5, SX + 7)
        A('ds_write_b128 v%d, %s', vEXW, v(SX + 2, 4))
        A(dpp, SM, SM + 2)
        A(dpp, SM + 1, SM + 3)
        A('ds_write_b64 v%d, %s', vMW, v(SM, 2))
        A('s_cmp_lg_u32 s%d, 0', sW)
        A('s_waitcnt lgkmcnt(0)')
        A('s_barrier')
        skip = A.newlabel('Lqs')
        A('s_cbranch_scc1 %s', skip)

        def gather(vq, offq, strq, vm_, offm, strm):
            for w in range(4):
                A('ds_read_b128 %s, v%d offset:%d', v(ACC + 4 * w, 4), vq, offq + strq * w)
            for h in range(2):
                A('ds_read2st64_b32 %s, v%d offset0:%d offset1:%d', v(ACC + 16 + 2 * h, 2), vm_,
                  (offm + strm * 2 * h) // 256, (offm + strm * (2 * h + 1)) // 256)
            A('s_waitcnt lgkmcnt(4)')
            for i in (0, 2):
                A('v_pk_add_f32 %s, %s, %s', v(ACC + i, 2), v(ACC + i, 2), v(ACC + 4 + i, 2))
            A('s_waitcnt lgkmcnt(2)')
            for i in (0, 2):
                A('v_pk_add_f32 %s, %s, %s', v(ACC + 8 + i, 2), v(ACC + 8 + i, 2), v(ACC + 12 + i, 2))
            A('s_waitcnt lgkmcnt(0)')
            A('v_pk_add_f32 %s, %s, %s', v(ACC + 16, 2), v(ACC + 16, 2), v(ACC + 18, 2))
            for i in (0, 2):
                A('v_pk_add_f32 %s, %s, %s', v(ACC + i, 2), v(ACC + i, 2), v(ACC + 8 + i, 2))
            A('v_add_f32 v%d, v%d, v%d', ACC + 16, ACC + 16, ACC + 17)
        gather(vEXR, EX, 1024, vL4, EXM, 512)
        last = softmax8(ACC, ACC + 16, ACC + 18, sCS, ACC, ACC + 16)
        A('buffer_store_dwordx2 %s, v%d, %s, s%d offen%s', v(ACC, 2), vPX, WS, sP0, sc)
        A(last)
        A('buffer_store_dword v%d, v%d, %s, s%d offen%s', ACC + 16, vPM, WS, sP0, sc)
        ts(7)
        A('v_mov_b32 v%d, -1', ACC + 2)
        A('v_mov_b32 v%d, -1', ACC + 3)
        A('buffer_store_dwordx2 %s, v%d, %s, s%d offen%s', v(ACC + 2, 2), vPX, WS, sP2, sc)
        A('buffer_store_dword v%d, v%d, %s, s%d offen%s', ACC + 2, vPM, WS, sP2, sc)
        A.label(skip)
        if OPT.get('trace'):
            K = A.newlabel('Lqk')
            A('s_cbranch_scc0 %s', K)
            ts(7)
            A.label(K)
        tiles = [(Y, Y + 4, 0), (Y, Y + 4, 1), (KC, KC + 8, 0), (KC, KC + 8, 1), (KC + 4, KC + 10, 1)]
        for i, (k4, k2, qt) in enumerate(tiles):
            A('v_mfma_f32_16x16x32_bf16 %s, %s, %s, 0', v(XS_ + 4 * i, 4), v(k4, 4), v(QR + 4 * qt, 4))
        r_, g2, x0, x1, mw = range(TT, TT + 5)
        A('s_mul_i32 s%d, s%d, 6144', sA, sW)
        A('v_bfe_u32 v%d, v%d, 4, 4', r_, vL16)
        A('v_lshrrev_b32 v%d, 8, v%d', g2, vL16)
        A('v_lshl_add_u32 v%d, v%d, 1, v%d', x0, g2, r_)
        A('v_add_u32 v%d, 1, v%d', x1, x0)
        for i, (k4, k2, qt) in enumerate(tiles):
            A('v_mfma_f32_16x16x16_bf16 %s, %s, %s, %s', v(XS_ + 4 * i, 4), v(k2, 2), v(QR + 8 + 2 * qt, 2), v(XS_ + 4 * i, 4))
        for x in (x0, x1):
            A('v_and_b32 v%d, 7, v%d', x, x)
            A('v_lshl_add_u32 v%d, v%d, 3, v%d', x, r_, x)
            A('v_lshl_add_u32 v%d, v%d, 4, s%d', x, x, sA)
        A('v_and_b32 v%d, 1, v%d', mw, g2)
        A('v_lshl_add_u32 v%d, v%d, 1, v%d', mw, r_, mw)
        A('v_lshl_add_u32 v%d, v%d, 4, s%d', mw, mw, sA)
        A('v_lshrrev_b32 v%d, 1, v%d', g2, g2)
        A('v_xor_b32 v%d, 1, v%d', g2, g2)
        A('v_lshl_add_u32 v%d, v%d, 9, v%d', mw, g2, mw)
        for i, (ad, off) in enumerate(((mw, 2048), (mw, 3072 + 2048), (x0, 0), (x0, 3072), (x1, 3072))):
            A('ds_write_b128 v%d, %s offset:%d', ad, v(XS_ + 4 * i, 4), EXX + off)
        A('s_lshr_b32 s%d, s%d, 1', sA, sW)
        A('s_mul_i32 s%d, s%d, 3072', sA, sA)
        A('s_and_b32 s%d, s%d, 1', sB, sW)
        A('s_lshl_b32 s%d, s%d, 8', sB, sB)
        A('s_add_u32 s%d, s%d, s%d', sC, sA, sB)
        A('v_add_u32 v%d, s%d, v%d', r_, sC, vL4)
        A('s_lshl_b32 s%d, s%d, 2', sB, sB)
        A('s_add_u32 s%d, s%d, s%d', sC, sA, sB)
        A('v_add_u32 v%d, s%d, v%d', g2, sC, vEXR)
        A('v_mov_b32 v%d, 0x%x', TT + 5, NEG_MASK)
        A('s_waitcnt lgkmcnt(0)')
        A('s_barrier')
        A('s_add_u32 s%d, s%d, 2', sNEED, sSEG)
        A('s_min_u32 s%d, s%d, 64', sNEED, sNEED)
        gate(vFL, vFA, '0', sNEED)
        kq_loads()
        gather(g2, EXX, 6144, r_, EXX + 2048, 6144)
        for i in range(4):
            A('v_cndmask_b32 v%d, v%d, v%d, s[%d:%d]', ACC + i, TT + 5, ACC + i, sMK[i], sMK[i] + 1)
        last = softmax8(ACC, ACC + 16, ACC + 18, sCS, ACC, ACC + 16)
        A('buffer_store_dwordx2 %s, v%d, %s, s%d offen%s', v(ACC, 2), vXX, WS, sX0, sc)
        A(last)
        A('buffer_store_dword v%d, v%d, %s, s%d offen%s', ACC + 16, vXS, WS, sX0, sc)
        rot3(sP0, sP1, sP2)
        rot3(sX0, sX1, sX2)
        ts(8)
        trace_dump(TT)
        A('s_add_u32 s%d, s%d, 1', sSEG, sSEG)
        A('s_cmp_lt_u32 s%d, 64', sSEG)
        A('s_cbranch_scc1 L_RQ_%s', tag)
        A('s_waitcnt vmcnt(0)')
        xtag(sc)
        A('s_branch L_RQ_fin')
        retry()

    loop('fast', '')
    loop('slow', ' sc1')
    A.label('L_RQ_fin')
    finish_role(3)
```

```python
from asmlib import v, a_, s, Stream
from layout import *


def emit():
    A.label('L_RV')
    if role_off('RV'):
        return
    lane = 1
    NL, NB = 15, 3
    MEM, VM, WL = 0, 10240, 16384
    assert WL + 4 * NL * 2048 <= 163840
    vCH, vHA, vI, vR = 0, 1, 2, 4
    vIDX, vL16, vWL, vVMW, vVMR, vZST = range(7, 13)
    vZS4, SEL = 15, 124
    NEG, ACC1, ACC2, AR, A2, STG, VW = 16, 20, 32, 72, 112, 128, 152
    TT = A2
    acc2 = lambda T: ACC2 + 4 * T
    sLB, sG1, sG2, sZ0, sZ1, sW25, sFLG, sHN = s0_, s1_, s2_, s3_, s4_, s5_, s6_, s7_
    sZ2, sVOP, sBL, sEX = 78, 79, 69, 40
    vPF = 2
    seq = [('v', t, i) for i in range(3) for t in range(3)]
    seq += [('v', t, i) for t in range(3) for i in range(3, 10)]
    seq += [('o', T, 0) for T in range(10)]
    seq += [('o', T, 1) for T in range(10)] + [('o', T, 2) for T in range(10)]
    loc = plan(seq, NL, VW)

    srd(16, pWV, 640 * 6144 * 2)
    srd(20, pWO, 640 * 6144 * 2)
    A('s_lshl_b32 s%d, s%d, 2', sA, sHEAD)
    A('s_add_u32 s%d, s%d, s%d', sA, sA, sW)
    A('s_cmp_eq_u32 s%d, 3', sA)
    A('s_cselect_b32 s%d, %d, 0', sFLG, OOB - D_PROG)
    A('s_sub_u32 s%d, 0x%x, s%d', sFLG, OOB, sFLG)
    bell_addr(sBL)
    A('s_mul_i32 s%d, s%d, 10240', sZ0, sHEAD)
    A('s_add_u32 s%d, s%d, %d', sZ0, sZ0, ZL)
    A('s_add_u32 s%d, s%d, %d', sZ1, sZ0, 32 * 10240)
    A('s_add_u32 s%d, s%d, %d', sZ2, sZ0, 64 * 10240)
    for i in range(4):
        A('v_mov_b32 v%d, -1', 4 + i)
    A('v_lshlrev_b32 v8, 4, v%d', lane)
    A('s_mul_i32 s%d, s%d, 2560', sW25, sW)
    for z in (sZ0, sZ1):
        A('s_add_u32 s%d, s%d, s%d', sA, sW25, z)
        for off in (0, 1024, 1536):
            A('buffer_store_dwordx4 v[4:7], v8, %s, s%d offen offset:%d sc1', WS, sA, off)
    A('s_mov_b32 s%d, 12288', sLB)
    A('s_mul_i32 s%d, s%d, 384', sG1, sHEAD)
    A('s_mul_i32 s%d, s%d, %d', sG2, sHEAD, 192 * 1280)
    st1 = stages_n192(WA, sLB, sG1, lambda w, st, kkl, j, t: wpair(loc, ('v', t, (st - COFF[w]) % 10), 2 * kkl + j), lane)
    st2 = stages_k192(WB, sG2, lambda E, T: wpair(loc, ('o', T, E % 3), E // 3), lane)
    run_stages(st1 + st2, first_hook=lambda: arrive_init(2), wsel=True)
    A('s_mul_i32 s%d, s%d, %d', sA, sW, NL * 2048)
    A('v_lshlrev_b32 v%d, 4, v%d', vWL, lane)
    A('s_add_u32 s%d, s%d, %d', sA, sA, WL)
    A('v_add_u32 v%d, s%d, v%d', vWL, sA, vWL)
    park_to_lds(NL, vWL)
    stamp(1)
    common_consts(lane, vCH, vR, vIDX, TT, vL16)
    r_, g_, g0, g1, t0, t1 = range(TT, TT + 6)
    A('v_and_b32 v%d, 15, v%d', r_, lane)
    A('v_lshrrev_b32 v%d, 4, v%d', g_, lane)
    A('v_and_b32 v%d, 1, v%d', g0, g_)
    A('v_lshrrev_b32 v%d, 1, v%d', g1, g_)
    A('v_lshrrev_b32 v%d, 2, v%d', t0, r_)
    A('v_and_b32 v%d, 3, v%d', t1, r_)
    A('v_lshl_add_u32 v%d, v%d, 3, v%d', t0, t0, t1)
    A('v_lshlrev_b32 v%d, 4, v%d', vVMW, t0)
    A('v_lshl_add_u32 v%d, v%d, 3, v%d', vVMW, g0, vVMW)
    A('v_lshl_add_u32 v%d, v%d, 2, v%d', vVMW, g1, vVMW)
    A('s_lshr_b32 s%d, s%d, 1', sA, sW)
    A('s_lshl_b32 s%d, s%d, 9', sA, sA)
    A('s_and_b32 s%d, s%d, 1', sB, sW)
    A('s_lshl_b32 s%d, s%d, 6', sB, sB)
    A('s_add_u32 s%d, s%d, s%d', sA, sA, sB)
    A('s_add_u32 s%d, s%d, %d', sA, sA, VM)
    A('v_add_u32 v%d, s%d, v%d', vVMW, sA, vVMW)
    A('v_lshlrev_b32 v%d, 8, v%d', vVMR, g_)
    A('v_bfe_u32 v%d, v%d, 3, 1', t0, lane)
    A('v_lshl_add_u32 v%d, v%d, 6, v%d', vVMR, t0, vVMR)
    A('v_bfe_u32 v%d, v%d, 2, 1', t0, lane)
    A('v_lshl_add_u32 v%d, v%d, 4, v%d', vVMR, t0, vVMR)
    A('v_bfe_u32 v%d, v%d, 1, 1', t0, lane)
    A('v_lshl_add_u32 v%d, v%d, 5, v%d', vVMR, t0, vVMR)
    A('v_and_b32 v%d, 1, v%d', t0, lane)
    A('v_lshl_add_u32 v%d, v%d, 3, v%d', vVMR, t0, vVMR)
    A('v_add_u32 v%d, %d, v%d', vVMR, VM, vVMR)
    A('v_lshlrev_b32 v%d, 4, v%d', t1, r_)
    A('v_lshl_add_u32 v%d, v%d, 8, v%d', vZST, g1, t1)
    A('v_lshl_add_u32 v%d, v%d, 3, v%d', vZST, g0, vZST)
    A('v_add_u32 v%d, s%d, v%d', vZST, sW25, vZST)
    A('v_lshl_add_u32 v%d, v%d, 1, v%d', t0, g0, g1)
    A('v_lshl_add_u32 v%d, v%d, 8, v%d', vZS4, t0, t1)
    A('v_add_u32 v%d, s%d, v%d', vZS4, sW25, vZS4)
    fold_matrix(lane, SEL, t0, t1)
    for i in range(4):
        A('v_mov_b32 v%d, -1', NEG + i)
    A('v_mov_b32 v14, s%d', sFLG)
    A('v_min_u32 v%d, 39, v%d', vPF, lane)
    A('v_lshlrev_b32 v%d, 7, v%d', vPF, vPF)
    A('s_mul_i32 s%d, s%d, 40960', sVOP, sHEAD)
    A('s_lshl_b32 s%d, s%d, 2', sA, sW25)
    A('s_add_u32 s%d, s%d, s%d', sVOP, sVOP, sA)
    A('s_add_u32 s%d, s%d, %d', sVOP, sVOP, VO + 40 * 40960)
    wait_init(TT)
    stamp(2)
    mem_bases(sLB)
    A('s_cmp_eq_u32 s%d, 0', sW)
    A('s_cselect_b64 s[%d:%d], 1, 0', sEX, sEX + 1)
    A('s_mov_b32 s%d, 0', sSEG)
    A('s_cmp_lg_u32 s%d, 0', sMODE)
    A('s_cbranch_scc1 L_RV_slow')
    TT = AR + 36

    def loop(tag, sc):
        S = Stream(A)
        A.label('L_RV_%s' % tag)
        for li in range(NB):
            for ln in w_reads(li, STG, NB, vWL):
                S(ln)
        for i in range(52):
            A('v_mov_b32 v%d, 0', ACC1 + i)
        A('s_add_u32 s%d, s%d, 1', sA, sSEG)
        A('v_mov_b32 v1, s%d', sA)
        if OPT.get('rvsl', 0):
            A('s_sleep %d', OPT.get('rvsl', 0))
        mem_slot(sG1, sLB, 0)
        ts(0)
        ts(1)
        retry = arrival('v', sG1, AR, vCH, TT)
        ts(2)
        ts(9)
        fill = {}
        S('ds_write_b128 v%d, %s offset:%d', vCH, v(AR, 4), MEM)
        fill[0] = ['ds_write_b128 v%d, %s offset:%d' % (vCH, v(AR + 4, 4), MEM + 1024)]
        fill[1] = ['ds_write_b128 v%d, %s offset:%d' % (vCH, v(AR + 8, 4), MEM + 2048)]
        b1 = OPT.get('vb1', 5)
        fill.setdefault(b1, []).extend(['@ww', 's_barrier'])
        rd = [a_read(i, AR, vR) for i in range(3, 10)]
        spread(fill, b1, rd, per=-(-7 // max(1, 8 - b1)))

        bell = ['s_mov_b64 exec, s[%d:%d]' % (sEX, sEX + 1), 'buffer_store_dword v1, off, %s, s%d%s' % (WS, sBL, sc), 's_mov_b64 exec, -1']
        zb = OPT.get('zb', 50)
        if not OPT.get('bell'):
            bell = []
        if zb < 60:
            fill.setdefault(zb, []).extend(bell)
        pf = OPT.get('pf', 2)
        tch = [['buffer_load_dword v%d, v%d, %s, s%d offen' % (vPF + 1, vPF, WS, sVOP)],
               ['s_add_u32 s%d, s%d, 5120' % (sA, sVOP), 'buffer_load_dword v%d, v%d, %s, s%d offen' % (vPF + 1, vPF, WS, sA)]]
        if pf == 1:
            fill.setdefault(10, []).extend(tch.pop(0))

        def post1(j):
            a = ACC1 + 4 * j
            return ['v_permlane32_swap_b32 v%d, v%d' % (a, a + 2), 'v_permlane32_swap_b32 v%d, v%d' % (a + 1, a + 3),
                    'v_add_f32 v%d, v%d, v%d' % (a, a, a + 2), 'v_add_f32 v%d, v%d, v%d' % (a + 1, a + 1, a + 3),
                    'v_cvt_pk_bf16_f32 v%d, v%d, v%d' % (a, a, a + 1)]
        for j in range(3):
            e = spread(fill, (17, 25, 32)[j], post1(j), per=2 if j == 0 else 1)
            fill.setdefault(e, []).insert(0, 'ds_write_b32 v%d, v%d offset:%d' % (vVMW, ACC1 + 4 * j, 1024 * j))
            bb = (24, 35, 43)[j]
            fill.setdefault(bb, [])[0:0] = ['@ww', 's_barrier', 'ds_read_b64_tr_b16 %s, v%d offset:%d' % (v(A2 + 4 * j, 2), vVMR, 1024 * j)]
            fill.setdefault(bb + 1, []).insert(0, 'ds_read_b64_tr_b16 %s, v%d offset:%d' % (v(A2 + 4 * j + 2, 2), vVMR, 1024 * j + 128))

        OUTR = AR
        cv1 = lambda p: ['v_cvt_pk_bf16_f32 v%d, v%d, v%d' % (acc2(2 * p) + i, acc2(2 * p) + 2 * i, acc2(2 * p) + 2 * i + 1) for i in range(4)]
        mf = lambda p: 'v_mfma_f32_16x16x32_bf16 %s, %s, %s, 0' % (v(acc2(2 * p) + 4, 4), v(SEL, 4), v(acc2(2 * p), 4))
        cv2 = lambda p: ['v_cvt_pk_bf16_f32 v%d, v%d, v%d' % (OUTR + 2 * p + i, acc2(2 * p) + 4 + 2 * i, acc2(2 * p) + 5 + 2 * i) for i in range(2)]
        st4 = lambda q: ['v_permlane16_swap_b32 v%d, v%d' % (OUTR + 4 * q, OUTR + 4 * q + 2), 'v_permlane16_swap_b32 v%d, v%d' % (OUTR + 4 * q + 1, OUTR + 4 * q + 3),
                         'buffer_store_dwordx4 %s, v%d, %s, s%d offen offset:%d%s' % (v(OUTR + 4 * q, 4), vZS4, WS, sZ0, 1024 * q, sc)]
        spread(fill, 53, cv1(0) + cv1(1)[:3])
        tail = [mf(0)] + cv1(1)[3:] + cv1(2)[:2] + [mf(1)] + cv1(2)[2:] + cv1(3)[:2] + [mf(2)] + cv1(3)[2:] + cv2(0) + [mf(3)] + cv1(4) + cv2(1) + [mf(4)]
        tail += st4(0) + cv2(2) + cv2(3) + st4(1) + cv2(4)
        tail += ['buffer_store_dwordx2 %s, v%d, %s, s%d offen offset:2048%s' % (v(OUTR + 8, 2), vZST, WS, sZ0, sc)]

        def mk(key, b):
            if key[0] == 'v':
                return 'v_smfmac_f32_16x16x64_bf16 %s, %s, %s, v%d' % (v(ACC1 + 4 * key[1], 4), v(AR + 4 * key[2], 4), b, vIDX)
            return 'v_smfmac_f32_16x16x64_bf16 %s, %s, %s, v%d' % (v(acc2(key[1]), 4), v(A2 + 4 * key[2], 4), b, vIDX)
        if OPT.get('trace'):
            for i, gp in enumerate(OPT.get('sv', '9,22,30,41').split(',')):
                fill.setdefault(int(gp), []).insert(0, tstamp(3 + i))
        run_stream(S, seq, mk, loc, NL, STG, NB, vWL, fill)
        assert max(fill) < 60, max(fill)
        ts(7)
        if zb >= 60:
            tail[zb - 60:zb - 60] = bell
        for ln in tail:
            S(ln)
        if OPT.get('cst') == 3:
            ts(7)
            A('s_waitcnt vmcnt(0)')
        ts(8)
        A('s_barrier')
        if pf:
            for op in tch:
                for ln in op:
                    A(ln)
        A('s_add_u32 s%d, s%d, %d', sVOP, sVOP, 40 * 40960)
        A('s_add_u32 s%d, s%d, s%d', sA, sZ2, sW25)
        for off in (0, 1024, 1536):
            A('buffer_store_dwordx4 %s, v%d, %s, s%d offen offset:%d%s', v(NEG, 4), vL16, WS, sA, off, sc)
        A('s_max_u32 s%d, s%d, 3', sA, sSEG)
        A('s_sub_u32 s%d, s%d, 3', sA, sA)
        A('v_mov_b32 v13, s%d', sA)
        A('s_mov_b64 exec, 1')
        A('buffer_atomic_umax v13, v14, %s, 0 offen', DBG)
        A('s_mov_b64 exec, -1')
        rot3(sZ0, sZ1, sZ2)
        trace_dump(TT)
        A('s_add_u32 s%d, s%d, 1', sSEG, sSEG)
        A('s_cmp_lt_u32 s%d, 64', sSEG)
        A('s_cbranch_scc1 L_RV_%s', tag)
        A('s_branch L_RV_fin')
        retry()

    loop('fast', '')
    loop('slow', ' sc1')
    A.label('L_RV_fin')
    finish_role(4)
```

```python
from asmlib import v, a_, s, Stream
from layout import *

OOB = 0x70000000
SCALE_LOG2E = 0x3dd53b95
import struct
assert abs(struct.unpack('<f', struct.pack('<I', SCALE_LOG2E))[0] - 192 ** -0.5 * 1.4426950408889634) < 1e-8
NEG_MASK = struct.unpack('<I', struct.pack('<f', -1e9 * 192 ** 0.5))[0]
NEG_BIG = 0xff7fffff


def plan(seq, n_lds, vbase, first=10):
    pos = [first + int(i * (len(seq) - 1 - first) / (n_lds - 1) + 0.5) for i in range(n_lds)]
    assert len(set(pos)) == n_lds
    loc = {}
    na = nv = 0
    for n, key in enumerate(seq):
        if n in pos:
            loc[key] = ('l', pos.index(n))
        elif na < 32:
            loc[key] = ('a', 8 * na); na += 1
        else:
            loc[key] = ('v', vbase + 8 * nv); nv += 1
    assert vbase + 8 * nv == 256, (vbase, nv)
    return loc


TMPW = 24


def wpair(loc, key, half):
    kind, b = loc[key]
    if kind == 'a':
        return a_(b + 2 * half, 2)
    if kind == 'v':
        return v(b + 2 * half, 2)
    return v(TMPW + 8 * b + 2 * half, 2)


def park_to_lds(n_lds, vWL):
    A('s_barrier')
    for i in range(n_lds):
        A('ds_write_b128 v%d, %s offset:%d', vWL, v(TMPW + 8 * i, 4), 2048 * i)
        A('ds_write_b128 v%d, %s offset:%d', vWL, v(TMPW + 8 * i + 4, 4), 2048 * i + 1024)
    A('s_waitcnt lgkmcnt(0)')


def common_consts(lane, vCH, vR, vIDX, vI, vL16):
    A('s_mul_i32 s%d, s%d, 5', sA, sW)
    A('s_lshr_b32 s%d, s%d, 1', sA, sA)
    A('v_lshlrev_b32 v%d, 4, v%d', vL16, lane)
    A('s_lshl_b32 s%d, s%d, 10', sB, sA)
    A('v_add_u32 v%d, s%d, v%d', vCH, sB, vL16)
    for i, d in enumerate((3, 5, 8)):
        A('s_add_u32 s%d, s%d, %d', sB, sA, d)
        A('s_cmp_ge_u32 s%d, 10', sB)
        A('s_cselect_b32 s%d, 10, 0', sC)
        A('s_sub_u32 s%d, s%d, s%d', sB, sB, sC)
        A('s_lshl_b32 s%d, s%d, 10', sB, sB)
        A('v_add_u32 v%d, s%d, v%d', vR + i, sB, vL16)
    A('v_and_b32 v%d, 8, v%d', vIDX, lane)
    A('v_cmp_eq_u32 vcc, 0, v%d', vIDX)
    A('v_mov_b32 v%d, 0xeeee', vIDX)
    A('v_mov_b32 v%d, 0x4444', vI)
    A('v_cndmask_b32 v%d, v%d, v%d, vcc', vIDX, vIDX, vI)


def identity(lane, vI, _):
    A('v_lshrrev_b32 v2, 4, v%d', lane)
    A('v_lshlrev_b32 v2, 2, v2')
    A('v_and_b32 v3, 15, v%d', lane)
    A('v_sub_u32 v2, v3, v2')
    for j in range(2):
        A('v_mov_b32 v%d, 0', vI + j)
        A('v_mov_b32 v3, 0x3f80')
        A('v_cmp_eq_u32 vcc, %d, v2', 2 * j)
        A('v_cndmask_b32 v%d, v%d, v3, vcc', vI + j, vI + j)
        A('v_mov_b32 v3, 0x3f800000')
        A('v_cmp_eq_u32 vcc, %d, v2', 2 * j + 1)
        A('v_cndmask_b32 v%d, v%d, v3, vcc', vI + j, vI + j)


def fold_matrix(lane, dst, t0, t1):
    A('v_bfe_u32 v%d, v%d, 4, 1', t0, lane)
    A('v_lshlrev_b32 v%d, 2, v%d', t0, t0)
    A('v_and_b32 v%d, 15, v%d', t1, lane)
    A('v_sub_u32 v%d, v%d, v%d', t0, t1, t0)
    for j in range(4):
        base = (0, 2, 8, 10)[j]
        A('v_mov_b32 v%d, 0', dst + j)
        A('v_mov_b32 v%d, 0x3f80', t1)
        A('v_cmp_eq_u32 vcc, %d, v%d', base, t0)
        A('v_cndmask_b32 v%d, v%d, v%d, vcc', dst + j, dst + j, t1)
        A('v_mov_b32 v%d, 0x3f800000', t1)
        A('v_cmp_eq_u32 vcc, %d, v%d', base + 1, t0)
        A('v_cndmask_b32 v%d, v%d, v%d, vcc', dst + j, dst + j, t1)


def check_sentinel(regs, t):
    regs = list(regs)
    cur = regs.pop(0)
    while regs:
        a = regs.pop(0)
        b = regs.pop(0) if regs else a
        A('v_max3_u32 v%d, v%d, v%d, v%d', t, cur, a, b)
        cur = t
    A('v_cmp_eq_u32 vcc, -1, v%d', cur)


def a_read(i, Areg, vR):
    k = 0 if i < 5 else (1 if i < 8 else 2)
    return 'ds_read_b128 %s, v%d offset:%d' % (v(Areg + 4 * i, 4), vR + k, (i - (3, 5, 8)[k]) * 1024)


def w_reads(li, stg, nb, vWL):
    b = stg + 8 * (li % nb)
    return ['ds_read_b128 %s, v%d offset:%d' % (v(b, 4), vWL, 2048 * li),
            'ds_read_b128 %s, v%d offset:%d' % (v(b + 4, 4), vWL, 2048 * li + 1024)]


def wop(loc, key, stg, nb):
    kind, b = loc[key]
    if kind == 'a':
        return a_(b, 8)
    if kind == 'v':
        return v(b, 8)
    return v(stg + 8 * (b % nb), 8)


def masked_poll(loads, quads, t, smask, issued=0):
    L, D, R = A.newlabel('Lmp'), A.newlabel('Lmpd'), A.newlabel('Lmpr')
    for ln in loads[issued:]:
        A(ln)
    A.label(L)
    A('s_waitcnt vmcnt(0)')
    quads = [q if isinstance(q, list) else [q + i for i in range(4)] for q in quads]
    check_sentinel([r for q in quads for r in q], t)
    A('s_cbranch_vccnz %s', R)
    A.label(D)

    def out():
        A.label(R)
        for k, q in enumerate(quads):
            if len(q) == 4:
                A('v_max3_u32 v%d, v%d, v%d, v%d', t, q[0], q[1], q[2])
                A('v_max_u32 v%d, v%d, v%d', t, t, q[3])
            A('v_cmp_eq_u32 s[%d:%d], -1, v%d', smask + 2 * k, smask + 2 * k + 1, t if len(q) == 4 else q[0])
        for k, ln in enumerate(loads):
            A('s_mov_b64 exec, s[%d:%d]', smask + 2 * k, smask + 2 * k + 1)
            A(ln)
        A('s_mov_b64 exec, -1')
        A('s_sub_u32 s%d, s%d, 1', sBUD, sBUD)
        A('s_cbranch_scc0 %s', L)
        A('s_mov_b32 s%d, 0', sBUD)
        A('s_waitcnt vmcnt(0)')
        A('s_branch %s', D)
    return out


def arrival(tag, sL, AR, vCH, t):
    lds = ['buffer_load_dwordx4 %s, v%d, %s, s%d offen offset:%d sc1' % (v(AR + 4 * i, 4), vCH, WS, sL, 1024 * i) for i in range(3)]
    return masked_poll(lds, [AR, AR + 4, AR + 8], t, 56)


def retry_later(L, D):
    R = A.newlabel('Lrt')
    A('s_cbranch_vccnz %s', R)
    A.label(D)

    def out():
        A.label(R)
        A('s_sub_u32 s%d, s%d, 1', sBUD, sBUD)
        A('s_cbranch_scc0 %s', L)
        A('s_mov_b32 s%d, 0', sBUD)
        A('s_branch %s', D)
    return out


def rot3(r0, r1, r2):
    A('s_mov_b32 s%d, s%d', sA, r0)
    A('s_mov_b32 s%d, s%d', r0, r1)
    A('s_mov_b32 s%d, s%d', r1, r2)
    A('s_mov_b32 s%d, s%d', r2, sA)


def bell_addr(dst):
    A('s_lshl_b32 s%d, s%d, 8', sA, sG)
    A('s_lshl_b32 s%d, s%d, 2', sB, sIDX)
    A('s_add_u32 s%d, s%d, s%d', sA, sA, sB)
    A('s_add_u32 s%d, s%d, %d', dst, sA, BELL)
    zero_flag(2, dst)


def mem_bases(sL0):
    A('s_bfe_u32 s%d, s%d, 0x10018', sA, sA)
    A('s_xor_b32 s%d, s%d, 1', sA, sA)
    A('s_lshl_b32 s%d, s%d, 13', sA, sA)
    A('s_lshl_b32 s%d, s%d, 15', sL0, sG)
    A('s_add_u32 s%d, s%d, s%d', sL0, sL0, sA)
    A('s_cmp_ge_u32 s%d, 2', sW)
    A('s_cselect_b32 s%d, %d, 0', sA, 16384 - 5120)
    A('s_add_u32 s%d, s%d, s%d', sL0, sL0, sA)
    A('s_add_u32 s%d, s%d, %d', sL0, sL0, MG)


def mem_slot(dst, sL0, d):
    A('s_add_u32 s%d, s%d, %d', sA, sSEG, d)
    A('s_and_b32 s%d, s%d, 3', sA, sA)
    A('s_lshl_b32 s%d, s%d, 17', sA, sA)
    A('s_add_u32 s%d, s%d, s%d', dst, sL0, sA)


def gate(vFL, vt, ssoff, sNEED, sleep=1, buf=None):
    L, D = A.newlabel('Lfg'), A.newlabel('Lfgd')
    A('v_cmp_gt_u32 vcc, s%d, v%d', sNEED, vFL)
    A('s_cbranch_vccz %s', D)
    A.label(L)
    A('buffer_load_dword v%d, v%d, %s, %s offen sc1', vFL, vt, buf or WS, ssoff)
    A('s_waitcnt vmcnt(0)')
    A('v_cmp_gt_u32 vcc, s%d, v%d', sNEED, vFL)
    A('s_cbranch_vccz %s', D)
    poll_tail(L, D, sleep=sleep)


def swap(x0, x1):
    A('s_mov_b32 s%d, s%d', sA, x0)
    A('s_mov_b32 s%d, s%d', x0, x1)
    A('s_mov_b32 s%d, s%d', x1, sA)


def ring4(sR):
    A('s_add_u32 s%d, s%d, 20480', sR, sR)
    A('s_cmp_eq_u32 s%d, %d', sR, 4 * 20480)
    A('s_cselect_b32 s%d, 0, s%d', sR, sR)


def softmax8(X, MM, t, sCS, out2, out1):
    def red(op, x):
        for ctl in ('quad_perm:[1,0,3,2]', 'quad_perm:[2,3,0,1]', 'row_half_mirror'):
            A('%s_dpp v%d, v%d, v%d %s row_mask:0xf bank_mask:0xf', op, x, x, x, ctl)
    MX, SU = t, t + 1
    A('v_max3_f32 v%d, v%d, v%d, v%d', MX, X, X + 1, MM)
    A('v_max3_f32 v%d, v%d, v%d, v%d', MX, X + 2, X + 3, MX)
    red('v_max_f32', MX)
    A('v_mul_f32 v%d, s%d, v%d', MX, sCS, MX)
    vals = [X, X + 1, X + 2, X + 3, MM]
    for r in vals:
        A('v_fma_f32 v%d, v%d, s%d, -v%d', r, r, sCS, MX)
    for r in vals:
        A('v_exp_f32 v%d, v%d', r, r)
    A('v_add_f32 v%d, v%d, v%d', SU, X, X + 1)
    A('v_add_f32 v%d, v%d, v%d', MX, X + 2, X + 3)
    A('v_add_f32 v%d, v%d, v%d', SU, SU, MM)
    A('v_add_f32 v%d, v%d, v%d', SU, SU, MX)
    red('v_add_f32', SU)
    A('v_rcp_f32 v%d, v%d', SU, SU)
    for r in [MM] + vals[:4]:
        A('v_mul_f32 v%d, v%d, v%d', r, r, SU)
    A('v_mov_b32_dpp v%d, v%d quad_perm:[1,0,3,2] row_mask:0xf bank_mask:0xf', MX, MM)
    A('v_cvt_pk_bf16_f32 v%d, v%d, v%d', out2, X, X + 1)
    A('v_cvt_pk_bf16_f32 v%d, v%d, v%d', out2 + 1, X + 2, X + 3)
    return 'v_cvt_pk_bf16_f32 v%d, v%d, v%d' % (out1, MM, MX)


def run_stream(S, seq, mk, loc, n_lds, stg, nb, vWL, fill):
    pend = []
    ins = [mk(key, wop(loc, key, stg, nb)) for key in seq]
    for n, key in enumerate(seq):
        S(ins[n])
        if n + 1 < len(seq):
            S.prewait(ins[n + 1])
        if loc[key][0] == 'l' and loc[key][1] + nb < n_lds:
            pend += w_reads(loc[key][1] + nb, stg, nb, vWL)
        lines = list(fill.get(n, []))
        if pend and (len(pend) > 2 or not any(l.startswith(('ds_', 'buffer_', 's_barrier')) for l in lines)):
            S(pend.pop(0))
        for ln in lines:
            S(ln)
    assert not pend


def spread(fill, start, ops, per=1):
    k = start
    for i, op in enumerate(ops):
        fill.setdefault(k, []).extend(op if isinstance(op, list) else [op])
        if (i + 1) % per == 0:
            k += 1
    return k + (1 if len(ops) % per else 0)


def emit(g):
    import role_rq, role_rv, role_c
    globals().update({k: g[k] for k in g if not k.startswith('__')})
    for m in (role_c, role_rq, role_rv):
        m.__dict__.update({k: x for k, x in globals().items() if not k.startswith('__') and k != 'emit'})
        m.emit()
```

```python
import sys
from asmlib import Asm, Stream, v, a_, s
from layout import *

OPT = dict(stamp=0, force_slow=0, roles='all', memdbg=0)
for arg in sys.argv[2:]:
    k, val = arg.split('=')
    OPT[k] = val if k in ('roles', 'sq', 'sv', 'qp', 'xc', 'xp') else int(val)

A = Asm()
sW, sT, sG, sMODE = 4, 5, 6, 7
WS, XS, WA, WB, OUT, DBG, MEM0 = 's[8:11]', 's[12:15]', 's[16:19]', 's[20:23]', 's[24:27]', 's[28:31]', 's[32:35]'
sBUD = 36
sA, sB, sC = 37, 38, 39
pX, pMEM0, pWQ, pWK, pWV, pWO, pW1, pW2, pOUT, pDBG, pWS = 40, 42, 44, 46, 48, 50, 56, 58, 60, 62, 64
sSEG, sIDX, sHEAD = 66, 67, 68
s0_, s1_, s2_, s3_, s4_, s5_, s6_, s7_ = range(70, 78)
BUDGET = 1 << 16
D_INIT = 40
D_FAIL = 44
D_FIN = 48
D_PROG = 128


def srd(base, ptr, nbytes):
    A('s_mov_b32 s%d, s%d', base, ptr)
    A('s_and_b32 s%d, s%d, 0xffff', base + 1, ptr + 1)
    A('s_mov_b32 s%d, 0x%x', base + 2, nbytes)
    A('s_mov_b32 s%d, 0x20000', base + 3)


def poll_tail(loop, done, sleep=0):
    if sleep:
        A('s_sleep %d', sleep)
    A('s_sub_u32 s%d, s%d, 1', sBUD, sBUD)
    A('s_cbranch_scc0 %s', loop)
    A('s_mov_b32 s%d, 0', sBUD)
    A.label(done)


def stamp(idx, vt=None):
    if OPT['stamp']:
        A('s_memtime s[%d:%d]', 80 + 2 * idx, 81 + 2 * idx)


def tstamp(idx):
    if OPT.get('trace'):
        return '%s s[%d:%d]' % ('s_memrealtime' if idx == 9 else 's_memtime', 80 + 2 * idx, 81 + 2 * idx)
    return None


def ts(idx):
    t = tstamp(idx)
    if t:
        A(t)


def trace_dump(vt):
    if not OPT.get('trace'):
        return
    A('s_waitcnt lgkmcnt(0)')
    for i in range(10):
        A('v_writelane_b32 v%d, s%d, %d', vt, 80 + 2 * i, i)
    A('v_mbcnt_lo_u32_b32 v%d, -1, 0', vt + 1)
    A('v_lshlrev_b32 v%d, 2, v%d', vt + 1, vt + 1)
    A('s_lshl_b32 s%d, s%d, 5', sA, sG)
    A('s_add_u32 s%d, s%d, s%d', sA, sA, sT)
    A('s_lshl_b32 s%d, s%d, 2', sA, sA)
    A('s_add_u32 s%d, s%d, s%d', sA, sA, sW)
    A('s_lshl_b32 s%d, s%d, 6', sA, sA)
    A('s_add_u32 s%d, s%d, s%d', sA, sA, sSEG)
    A('s_lshl_b32 s%d, s%d, 6', sA, sA)
    A('s_add_u32 s%d, s%d, %d', sA, sA, TRACE)
    A('s_mov_b64 exec, 0x3ff')
    A('buffer_store_dword v%d, v%d, %s, s%d offen', vt, vt + 1, WS, sA)
    A('s_mov_b64 exec, -1')


def arrive_init(vt):
    L = A.newlabel('Larr')
    A('s_cmp_lg_u32 s%d, 0', sW)
    A('s_cbranch_scc1 %s', L)
    A('s_lshl_b32 s%d, s%d, 16', sA, sMODE)
    A('s_add_u32 s%d, s%d, 1', sA, sA)
    A('s_mov_b64 exec, 1')
    A('v_mov_b32 v%d, s%d', vt, sA)
    A('v_mov_b32 v%d, %d', vt + 1, D_INIT)
    A('buffer_atomic_add v%d, v%d, %s, 0 offen', vt, vt + 1, DBG)
    A('s_mov_b64 exec, -1')
    A.label(L)


def wait_init(vt):
    L, D = A.newlabel('Lwi'), A.newlabel('Lwid')
    A('v_mov_b32 v%d, %d', vt + 1, D_INIT)
    A.label(L)
    A('buffer_load_dword v%d, v%d, %s, 0 offen sc1', vt, vt + 1, DBG)
    A('s_waitcnt vmcnt(0)')
    A('v_readfirstlane_b32 s%d, v%d', sA, vt)
    A('s_and_b32 s%d, s%d, 0xffff', sB, sA)
    A('s_cmp_ge_u32 s%d, 256', sB)
    A('s_cbranch_scc1 %s', D)
    poll_tail(L, D, sleep=4)
    A('s_bfe_u32 s%d, s%d, 0x80010', sMODE, sA)


def zero_flag(vt, sflag):
    A('s_mov_b64 exec, 1')
    A('v_mov_b32 v%d, 0', vt)
    A('buffer_store_dword v%d, v%d, %s, s%d offen sc1', vt, vt, WS, sflag)
    A('s_mov_b64 exec, -1')


SLOT = 24576
NT = ['']
NSLOT = 6
sLW6, sLW5, sSTR = 90, 91, 92


def stages_n192(srdname, srs, scol, dest, lane, setup=True):
    vo, va, vb = 4, 10, 13
    t0, t1, t2 = 16, 17, 18
    if setup:
        for i in range(6):
            A('v_add_u32 v%d, %d, v%d', t0, 64 * i, lane)
            A('v_mul_u32_u24 v%d, 2731, v%d', t1, t0)
            A('v_lshrrev_b32 v%d, 16, v%d', t1, t1)
            A('v_mul_u32_u24 v%d, 24, v%d', t2, t1)
            A('v_sub_u32 v%d, v%d, v%d', t0, t0, t2)
            A('v_and_b32 v%d, 2, v%d', t2, t1)
            A('v_xor_b32 v%d, v%d, v%d', t0, t0, t2)
            A('v_and_b32 v%d, 8, v%d', t2, t1)
            A('v_lshrrev_b32 v%d, 1, v%d', t2, t2)
            A('v_xor_b32 v%d, v%d, v%d', t0, t0, t2)
            A('s_lshl_b32 s%d, s%d, 4', sA, sW)
            A('v_add_u32 v%d, s%d, v%d', t1, sA, t1)
            A('v_mul_lo_u32 v%d, v%d, s%d', t1, t1, srs)
            A('v_lshl_add_u32 v%d, v%d, 4, v%d', t0, t0, t1)
            A('v_add_u32 v%d, s%d, v%d', vo + i, scol, t0)
        A('v_lshrrev_b32 v%d, 4, v%d', t0, lane)
        A('v_bfe_u32 v%d, v%d, 2, 2', t1, lane)
        A('v_lshl_add_u32 v%d, v%d, 3, v%d', t2, t0, t1)
        A('v_mul_u32_u24 v%d, 384, v%d', vb, t2)
        A('v_and_b32 v%d, 1, v%d', vb + 1, lane)
        A('v_lshl_add_u32 v%d, v%d, 3, v%d', vb, vb + 1, vb)
        A('v_and_b32 v%d, 2, v%d', t1, t1)
        A('v_and_b32 v%d, 1, v%d', t0, t0)
        A('v_lshl_or_b32 v%d, v%d, 2, v%d', t1, t0, t1)
        A('v_bfe_u32 v%d, v%d, 1, 1', t0, lane)
        A('s_mul_i32 s%d, s%d, 6', sA, sW)
        for t in range(3):
            A('v_add_u32 v%d, s%d, v%d', t2, sA, t0)
            A('v_add_u32 v%d, %d, v%d', t2, 2 * t, t2)
            A('v_xor_b32 v%d, v%d, v%d', t2, t2, t1)
            A('v_lshl_add_u32 v%d, v%d, 4, v%d', va + t, t2, vb)
        A('s_mul_i32 s%d, s%d, 6144', sLW6, sW)
        A('s_lshl_b32 s%d, s%d, 6', sSTR, srs)

    def mk(st):
        def issue(base):
            A('s_mul_i32 s%d, s%d, %d', sA, sSTR, st)
            for i in range(6):
                A('s_add_u32 m0, s%d, %d', sLW6, base + i * 1024)
                A('buffer_load_dwordx4 v%d, %s, s%d offen%s lds', vo + i, srdname, sA, NT[0])

        def consume(w, base):
            for t in range(3):
                A('v_add_u32 v%d, %d, v%d', vb + t, base, va + t)
            for kkl in range(2):
                for j in range(2):
                    for t in range(3):
                        A('ds_read_b64_tr_b16 %s, v%d offset:%d', dest(w, st, kkl, j, t), vb + t, (32 * kkl + 4 * j) * 384)
        return (issue, consume, 6)
    return [mk(st) for st in range(10)]


def stages_k192(srdname, sbase, dest, lane):
    vo, va = 19, 4
    t0, t1, t2, t3 = 2, 3, 16, 17
    A('s_lshl_b32 s%d, s%d, 2', sA, sW)
    for i in range(5):
        A('v_add_u32 v%d, %d, v%d', t0, 64 * i, lane)
        A('v_mul_u32_u24 v%d, 820, v%d', t1, t0)
        A('v_lshrrev_b32 v%d, 16, v%d', t1, t1)
        A('v_mul_u32_u24 v%d, 80, v%d', t2, t1)
        A('v_sub_u32 v%d, v%d, v%d', t0, t0, t2)
        A('v_add_u32 v%d, s%d, v%d', t1, sA, t1)
        A('v_and_b32 v%d, 7, v%d', t2, t1)
        A('v_lshlrev_b32 v%d, 1, v%d', t2, t2)
        A('v_xor_b32 v%d, v%d, v%d', t0, t0, t2)
        A('v_mul_u32_u24 v%d, 1280, v%d', t1, t1)
        A('v_lshl_add_u32 v%d, v%d, 4, v%d', vo + i, t0, t1)
    A('s_mul_i32 s%d, s%d, 5120', sLW5, sW)
    state = {}

    def late_setup():
        u0, u1 = 14, 15
        A('v_lshrrev_b32 v%d, 2, v%d', u0, lane)
        A('v_mul_u32_u24 v%d, 1280, v%d', t3, u0)
        A('v_and_b32 v%d, 1, v%d', u1, lane)
        A('v_lshl_add_u32 v%d, v%d, 3, v%d', t3, u1, t3)
        A('v_and_b32 v%d, 7, v%d', u0, u0)
        A('v_lshlrev_b32 v%d, 1, v%d', u0, u0)
        A('v_bfe_u32 v%d, v%d, 1, 1', u1, lane)
        A('s_mul_i32 s%d, s%d, 20', sA, sW)
        A('v_add_u32 v%d, s%d, v%d', u1, sA, u1)
        for T in range(10):
            A('v_add_u32 v%d, %d, v%d', t2, 2 * T, u1)
            A('v_xor_b32 v%d, v%d, v%d', t2, t2, u0)
            A('v_lshl_add_u32 v%d, v%d, 4, v%d', va + T, t2, t3)

    def mk(st):
        def issue(base):
            A('s_add_u32 s%d, s%d, %d', sA, sbase, st * 20480)
            for i in range(5):
                A('s_add_u32 m0, s%d, %d', sLW5, base + i * 1024)
                A('buffer_load_dwordx4 v%d, %s, s%d offen%s lds', vo + i, srdname, sA, NT[0])

        def consume(w, base):
            if st == 0:
                late_setup()
                state['cur'] = 0
            hi = (base // 49152) * 49152
            if hi != state['cur']:
                for T in range(10):
                    A('v_add_u32 v%d, %d, v%d', va + T, hi - state['cur'], va + T)
                state['cur'] = hi
            for T in range(10):
                A('ds_read_b64_tr_b16 %s, v%d offset:%d', dest(st, T), va + T, base - hi)
        return (issue, consume, 5)
    return [mk(st) for st in range(12)]


def per_wave(body):
    done = A.newlabel('Lpw')
    labs = [A.newlabel('Lpw') for _ in range(4)]
    for w in range(1, 4):
        A('s_cmp_eq_u32 s%d, %d', sW, w)
        A('s_cbranch_scc1 %s', labs[w])
    for w in range(4):
        A.label(labs[w])
        body(w)
        if w < 3:
            A('s_branch %s', done)
    A.label(done)


def run_stages(stages, first_hook=None, wsel=False):
    n = len(stages)

    def body(w):
        for st in range(n):
            out = sum(stages[k][2] for k in range(st + 1, min(n, st + NSLOT)))
            A('s_waitcnt vmcnt(%d)', out)
            A('s_barrier')
            stages[st][1](w, (st % NSLOT) * SLOT)
            A('s_waitcnt lgkmcnt(0)')
            if st + NSLOT < n:
                A('s_barrier')
                stages[st + NSLOT][0]((st % NSLOT) * SLOT)
    for st in range(min(NSLOT, n)):
        stages[st][0](st * SLOT)
        if st == 1 and first_hook:
            A('s_waitcnt vmcnt(%d)', stages[0][2] + stages[1][2])
            A('s_barrier')
            first_hook()
    if wsel:
        per_wave(body)
    else:
        body(0)


def entry():
    A('s_cmp_ge_u32 s2, 256')
    A('s_cbranch_scc1 L_end')
    A('s_load_dwordx16 s[40:55], s[0:1], 0')
    A('s_load_dwordx8 s[56:63], s[0:1], 64')
    A('s_load_dwordx2 s[64:65], s[0:1], 96')
    A('v_lshrrev_b32 v2, 6, v0')
    A('v_and_b32 v1, 63, v0')
    A('v_readfirstlane_b32 s%d, v2', sW)
    A('s_mov_b32 s%d, %d', sBUD, BUDGET)
    A('s_getreg_b32 s%d, hwreg(HW_REG_XCC_ID)', sC)
    A('s_and_b32 s%d, s%d, 15', sC, sC)
    A('s_waitcnt lgkmcnt(0)')
    srd(8, pWS, WS_BYTES)
    srd(12, pX, 2048 * 640 * 2)
    srd(16, pWQ, 640 * 6144 * 2)
    srd(20, pWK, 640 * 6144 * 2)
    srd(24, pOUT, 2048 * 640 * 2)
    srd(28, pDBG, 256)
    srd(32, pMEM0, 8 * 640 * 2)
    stamp(0)
    A('s_cmp_lg_u32 s%d, 0', sW)
    A('s_cbranch_scc1 L_tk_done')
    A('s_mov_b64 exec, 1')
    A('s_and_b32 s%d, s%d, 7', sG, sC)
    A('s_mov_b32 s%d, 8', sB)
    A.label('L_tk_try')
    A('s_lshl_b32 s%d, s%d, 2', sA, sG)
    A('v_mov_b32 v2, 1')
    A('v_mov_b32 v3, s%d', sA)
    A('buffer_atomic_add v2, v3, %s, 0 offen sc0', DBG)
    A('s_waitcnt vmcnt(0)')
    A('v_readfirstlane_b32 s%d, v2', sT)
    A('s_cmp_lt_u32 s%d, 32', sT)
    A('s_cbranch_scc1 L_tk_got')
    A('s_sub_u32 s%d, s%d, 1', sB, sB)
    A('s_mov_b32 s%d, s%d', sG, sB)
    A('s_cbranch_scc0 L_tk_try')
    A('s_mov_b32 s%d, 8', sG)
    A('s_mov_b32 s%d, 0', sT)
    A.label('L_tk_got')
    A('s_lshl_b32 s%d, s%d, 5', sA, sG)
    A('s_add_u32 s%d, s%d, s%d', sA, sA, sT)
    A('v_mov_b32 v2, s%d', sA)
    A('v_mov_b32 v3, 0')
    A('ds_write_b32 v3, v2')
    A('s_waitcnt lgkmcnt(0)')
    A('s_mov_b64 exec, -1')
    A.label('L_tk_done')
    A('s_barrier')
    A('v_mov_b32 v3, 0')
    A('ds_read_b32 v2, v3')
    A('s_waitcnt lgkmcnt(0)')
    A('v_readfirstlane_b32 s%d, v2', sA)
    A('s_barrier')
    A('s_lshr_b32 s%d, s%d, 5', sG, sA)
    A('s_and_b32 s%d, s%d, 31', sT, sA)
    A('s_mov_b32 s%d, 0', sMODE)
    A('s_cmp_ge_u32 s%d, 8', sG)
    A('s_cbranch_scc1 L_end')
    A('s_cmp_ge_u32 s%d, 4', sG)
    A('s_cbranch_scc1 L_notR')
    A('s_mul_i32 s%d, s%d, 6', sIDX, sG)
    A('s_add_u32 s%d, s%d, s%d', sIDX, sIDX, sT)
    A('s_sub_u32 s%d, s%d, 26', sIDX, sIDX)
    A('s_cmp_ge_u32 s%d, 26', sT)
    A('s_cbranch_scc1 L_P1')
    A('s_cmp_lg_u32 s%d, s%d', sG, sC)
    A('s_cselect_b32 s%d, 1, %d', sMODE, OPT['force_slow'])
    A('s_cmp_ge_u32 s%d, 16', sT)
    A('s_cbranch_scc1 L_C')
    A('s_and_b32 s%d, s%d, 7', sIDX, sT)
    A('s_lshl_b32 s%d, s%d, 3', sHEAD, sG)
    A('s_add_u32 s%d, s%d, s%d', sHEAD, sHEAD, sIDX)
    A('s_cmp_lt_u32 s%d, 8', sT)
    A('s_cbranch_scc1 L_RQ')
    A('s_branch L_RV')
    A.label('L_notR')
    A('s_sub_u32 s%d, s%d, 4', sG, sG)
    A('s_cmp_lt_u32 s%d, 2', sT)
    A('s_cbranch_scc1 L_F')
    A('s_mul_i32 s%d, s%d, 10', sA, sG)
    A('s_add_u32 s%d, s%d, s%d', sIDX, sA, sT)
    A('s_sub_u32 s%d, s%d, 2', sIDX, sIDX)
    A('s_cmp_lt_u32 s%d, 12', sT)
    A('s_cbranch_scc1 L_P2')
    A('s_add_u32 s%d, s%d, s%d', sIDX, sIDX, sA)
    A('s_add_u32 s%d, s%d, 14', sIDX, sIDX)
    A('s_branch L_P1')


def r_finish(vt):
    L = A.newlabel('Lrf')
    A('s_waitcnt vmcnt(0)')
    A('s_barrier')
    A('s_cmp_lg_u32 s%d, 0', sW)
    A('s_cbranch_scc1 %s', L)
    A('s_mov_b64 exec, 1')
    A('v_mov_b32 v%d, 1', vt)
    A('v_mov_b32 v%d, %d', vt + 1, D_FIN)
    A('buffer_atomic_add v%d, v%d, %s, 0 offen sc0', vt, vt + 1, DBG)
    A('s_waitcnt vmcnt(0)')
    A('v_readfirstlane_b32 s%d, v%d', sA, vt)
    A('s_mov_b64 exec, -1')
    A('s_cmp_lg_u32 s%d, 39', sA)
    A('s_cbranch_scc1 %s', L)
    A('s_mov_b64 exec, 1')
    A('v_mov_b32 v%d, 64', vt)
    A('v_mov_b32 v%d, %d', vt + 1, D_PROG)
    A('buffer_atomic_umax v%d, v%d, %s, 0 offen', vt, vt + 1, DBG)
    A('s_mov_b64 exec, -1')
    A.label(L)


def role_off(name):
    if OPT['roles'] == 'all' or name in OPT['roles'].split(','):
        return False
    arrive_init(2)
    A('s_endpgm')
    return True


def finish_role(slot_reg_expr=None):
    L = A.newlabel('Lfin')
    A('s_waitcnt vmcnt(0)')
    A('s_cmp_lg_u32 s%d, 0', sBUD)
    A('s_cbranch_scc1 %s', L)
    A('s_mov_b64 exec, 1')
    A('v_mov_b32 v2, 1')
    A('v_mov_b32 v3, %d', D_FAIL)
    A('buffer_atomic_add v2, v3, %s, 0 offen', DBG)
    A('s_mov_b64 exec, -1')
    A.label(L)
    if OPT['stamp']:
        A('s_memtime s[98:99]')
        A('s_waitcnt lgkmcnt(0)')
        A('s_mov_b64 exec, 1')
        A('s_lshl_b32 s%d, s2, 2', sA)
        A('s_add_u32 s%d, s%d, s%d', sA, sA, sW)
        A('s_mul_i32 s%d, s%d, 48', sA, sA)
        A('s_add_u32 s%d, s%d, %d', sA, sA, STAMP)
        A('v_mov_b32 v3, 0')
        for i in range(10):
            A('v_mov_b32 v2, s%d', 80 + 2 * i)
            A('buffer_store_dword v2, v3, %s, s%d offen offset:%d', WS, sA, 4 * i)
        A('s_lshl_b32 s%d, s%d, 8', sB, sG)
        A('s_add_u32 s%d, s%d, s%d', sB, sB, sT)
        A('s_add_u32 s%d, s%d, %d', sB, sB, slot_reg_expr << 16)
        A('v_mov_b32 v2, s%d', sB)
        A('buffer_store_dword v2, v3, %s, s%d offen offset:40', WS, sA)
    A('s_endpgm')


def role_p1():
    NT[0] = ' nt' if OPT.get('nt', 0) & 1 else ''
    A.label('L_P1')
    if role_off('P1'):
        return
    sRS, sCOL, sOUTB, sFLAG, sXN, sLB = s0_, s1_, s2_, s3_, s4_, s5_
    lane = 1
    A('s_lshr_b32 s%d, s%d, 5', sA, sIDX)
    A('s_and_b32 s%d, s%d, 31', sHEAD, sIDX)
    A('s_mov_b32 s%d, 12288', sRS)
    A('s_mul_i32 s%d, s%d, 384', sCOL, sHEAD)
    A('s_mov_b32 s%d, 0x80008000', s6_)
    A('s_cmp_eq_u32 s%d, 1', sA)
    A('s_cselect_b32 s16, s%d, s16', pWK)
    A('s_cselect_b32 s17, s%d, s%d', pWK + 1, pWQ + 1)
    A('s_cmp_eq_u32 s%d, 2', sA)
    A('s_cselect_b32 s16, s%d, s16', pWV)
    A('s_cselect_b32 s17, s%d, s17', pWV + 1)
    A('s_cmp_eq_u32 s%d, 3', sA)
    A('s_cselect_b32 s16, s%d, s16', pW1)
    A('s_cselect_b32 s17, s%d, s17', pW1 + 1)
    A('s_cselect_b32 s18, 0x%x, s18', 640 * 1536 * 2)
    A('s_cselect_b32 s%d, 3072, s%d', sRS, sRS)
    A('s_cselect_b32 s%d, 0, s%d', s6_, s6_)
    A('s_and_b32 s17, s17, 0xffff')
    assert KX - QX == 32 * 64 * 12288 and VX - KX == 32 * 64 * 12288
    A('s_mul_i32 s%d, s%d, %d', sOUTB, sIDX, 64 * 12288)
    A('s_mul_i32 s%d, s%d, 3072', sA, sW)
    A('s_add_u32 s%d, s%d, s%d', sOUTB, sOUTB, sA)
    A('s_add_u32 s%d, s%d, %d', sOUTB, sOUTB, QX - 12288)
    A('s_lshl_b32 s%d, s%d, 7', sFLAG, sIDX)
    A('s_lshl_b32 s%d, s%d, 2', sA, sW)
    A('s_add_u32 s%d, s%d, s%d', sFLAG, sFLAG, sA)
    A('s_add_u32 s%d, s%d, %d', sFLAG, sFLAG, FL_P1)
    zero_flag(2, sFLAG)
    run_stages(stages_n192(WA, sRS, sCOL, lambda w, st, kkl, j, t: a_(((2 * st + kkl) * 3 + t) * 4 + 2 * j, 2), lane),
               first_hook=lambda: arrive_init(2))
    stamp(1)
    wait_init(2)
    A('s_barrier')
    stamp(2)
    vL16, vLA, vFLOOR, vZ, vCNT = 2, 3, 4, 5, 6
    acc = [8, 20]
    o0, o1, o2 = 32, 36, 40
    ring, NR = 44, 8
    A('v_lshlrev_b32 v%d, 4, v%d', vL16, lane)
    A('v_mov_b32 v%d, v%d', vLA, vL16)
    A('v_mov_b32 v%d, s%d', vFLOOR, s6_)
    A('v_mov_b32 v%d, 0', vZ)
    A('s_mul_i32 s%d, s%d, 10240', sLB, sW)
    A('s_add_u32 s%d, s%d, %d', sXN, sLB, XN)
    A('s_mov_b32 s%d, 0', s7_)

    def dma_ops():
        ops = []
        for i in range(10):
            if i % 4 == 0:
                ops.append(['s_add_u32 s%d, s%d, s%d' % (sA, sLB, s7_),
                            's_add_u32 m0, s%d, %d' % (sA, i * 1024),
                            's_add_u32 s%d, s%d, %d' % (sB, sXN, i * 1024)])
            ops.append(['buffer_load_dwordx4 v%d, %s, s%d offen offset:%d lds' % (vL16, WS, sB, (i % 4) * 1024)])
        ops.append(['s_add_u32 s%d, s%d, 40960' % (sXN, sXN),
                    's_add_u32 s%d, s%d, 40960' % (s7_, s7_),
                    's_cmp_eq_u32 s%d, %d' % (s7_, 3 * 40960),
                    's_cselect_b32 s%d, 0, s%d' % (s7_, s7_)])
        return ops

    for _ in range(2):
        for op in dma_ops():
            for ln in op:
                A(ln)
    A('s_waitcnt vmcnt(10)')
    A('s_barrier')
    PRE = 6
    for f in range(PRE):
        A('ds_read_b128 %s, v%d offset:%d', v(ring + 4 * (f % NR), 4), vLA, f * 1024)
    A('s_mov_b32 s%d, 0', sSEG)
    A('s_mov_b32 s%d, 40960', s6_)

    def epi(tt):
        a0 = acc[tt]
        dst = o0 if tt == 0 else o1
        ops = []
        for i in range(4):
            ops.append(['v_cvt_pk_bf16_f32 v%d, v%d, v%d' % (dst + i, a0 + 2 * i, a0 + 2 * i + 1)])
        for i in range(2):
            ops.append(['v_cvt_pk_bf16_f32 v%d, v%d, v%d' % (o2 + 2 * tt + i, a0 + 8 + 2 * i, a0 + 9 + 2 * i)])
        for r in [dst + i for i in range(4)] + [o2 + 2 * tt, o2 + 2 * tt + 1]:
            ops.append(['v_pk_max_i16 v%d, v%d, v%d' % (r, r, vFLOOR)])
        ops.append(['buffer_store_dwordx4 %s, v%d, %s, s%d offen offset:%d sc1' % (v(dst, 4), vL16, WS, sOUTB, 1024 * tt)])
        if tt == 1:
            ops.append(['buffer_store_dwordx4 %s, v%d, %s, s%d offen offset:2048 sc1' % (v(o2, 4), vL16, WS, sOUTB)])
            ops.append(['s_add_u32 s%d, s%d, 12288' % (sOUTB, sOUTB)])
        return ops

    def flag_ops():
        return [['s_waitcnt vmcnt(0)', 'v_mov_b32 v%d, s%d' % (vCNT, sSEG)],
                ['s_mov_b64 exec, 1', 'buffer_store_dword v%d, v%d, %s, s%d offen sc1' % (vCNT, vZ, WS, sFLAG), 's_mov_b64 exec, -1']]

    def body(first):
        fill = {}

        def place(start, ops, step=1):
            k = start
            for op in ops:
                while k % 3 == 0 or k in fill:
                    k += 1
                fill[k] = op
                k += step
        if not first:
            place(4, epi(1))
            place(50, flag_ops())
        else:
            fill[50] = ['s_waitcnt vmcnt(0)', 's_add_u32 s%d, s%d, 12288' % (sOUTB, sOUTB)]
        place(64, epi(0))
        fill[95] = ['s_barrier']
        place(97, dma_ops())
        for f in range(40):
            tt, kk = divmod(f, 20)
            A('s_waitcnt lgkmcnt(%d)', PRE - 1)
            for t in range(3):
                m = 3 * f + t
                d = v(acc[tt] + 4 * t, 4)
                A('v_mfma_f32_16x16x32_bf16 %s, %s, %s, %s', d, a_((kk * 3 + t) * 4, 4), v(ring + 4 * (f % NR), 4),
                  '0' if kk == 0 else d)
                if t == 0:
                    g = f + PRE
                    if g == 40:
                        A('v_add_u32 v%d, s%d, v%d', vLA, s6_, vL16)
                    A('ds_read_b128 %s, v%d offset:%d', v(ring + 4 * (g % NR), 4), vLA, (g % 40) * 1024)
                for ln in fill.get(m, []):
                    A(ln)
        assert max(fill) < 120
        A('s_add_u32 s%d, s%d, 40960', s6_, s6_)
        A('s_cmp_eq_u32 s%d, %d', s6_, 3 * 40960)
        A('s_cselect_b32 s%d, 0, s%d', s6_, s6_)
        A('s_add_u32 s%d, s%d, 1', sSEG, sSEG)

    body(True)
    stamp(3)
    A.label('L_P1_loop')
    body(False)
    A('s_cmp_lt_u32 s%d, 64', sSEG)
    A('s_cbranch_scc1 L_P1_loop')
    for op in epi(1) + flag_ops():
        for ln in op:
            A(ln)
    finish_role(1)


def p2_frag(E):
    w, t = divmod(E, 3)
    return (w, t) if t < 2 else (4 + (w >> 1), w & 1)


def role_p2():
    A.label('L_P2')
    if role_off('P2'):
        return
    sBASE, sVIN, sOUTB, sFLAG, sSRC, sLB, sAV, sSLOT = s0_, s1_, s2_, s3_, s4_, s5_, s6_, s7_
    lane = 1
    A('s_cmp_lt_u32 s%d, 32', sIDX)
    A('s_cselect_b32 s16, s%d, s%d', pWO, pW2)
    A('s_cselect_b32 s17, s%d, s%d', pWO + 1, pW2 + 1)
    A('s_cselect_b32 s18, s18, 0x%x', 640 * 1536 * 2)
    A('s_and_b32 s17, s17, 0xffff')
    A('s_and_b32 s%d, s%d, 31', sA, sIDX)
    A('s_mul_i32 s%d, s%d, %d', sBASE, sA, 192 * 1280)
    A('s_lshl_b32 s%d, s%d, 7', sFLAG, sIDX)
    A('s_lshl_b32 s%d, s%d, 2', sA, sW)
    A('s_add_u32 s%d, s%d, s%d', sFLAG, sFLAG, sA)
    A('s_add_u32 s%d, s%d, %d', sSRC, sFLAG, FL_P1 + 64 * 128)
    A('s_add_u32 s%d, s%d, %d', sFLAG, sFLAG, FL_P2)
    zero_flag(2, sFLAG)

    def dest(E, T):
        kk, half = p2_frag(E)
        return a_((T * 6 + kk) * 4 + 2 * half, 2)
    run_stages(stages_k192(WA, sBASE, dest, lane), first_hook=lambda: arrive_init(2))
    stamp(1)
    wait_init(2)
    A('s_barrier')
    stamp(2)
    vL16, vLA, vZ, vCNT, vFL = 2, 3, 5, 6, 7
    acc = [8, 16]
    ob = [24, 28]
    vf = 32
    NS = 4
    A('v_lshlrev_b32 v%d, 4, v%d', vL16, lane)
    A('v_mov_b32 v%d, v%d', vLA, vL16)
    A('v_mov_b32 v%d, 0', vZ)
    A('s_mul_i32 s%d, s%d, 3072', sLB, sW)
    A('s_mul_i32 s%d, s%d, %d', sVIN, sIDX, 64 * 12288)
    A('s_add_u32 s%d, s%d, s%d', sVIN, sVIN, sLB)
    A('s_add_u32 s%d, s%d, %d', sVIN, sVIN, VX)
    A('s_mul_i32 s%d, s%d, 40960', sOUTB, sIDX)
    A('s_mul_i32 s%d, s%d, 10240', sA, sW)
    A('s_add_u32 s%d, s%d, s%d', sOUTB, sOUTB, sA)
    A('s_add_u32 s%d, s%d, %d', sOUTB, sOUTB, VO)
    A('s_mov_b32 s%d, 0', sAV)
    A('s_mov_b32 s%d, 0', sSLOT)
    sNEXT = 78
    sRD = 79
    A('s_mov_b32 s%d, 0', sNEXT)

    def need_avail():
        L, D = A.newlabel('Lp2w'), A.newlabel('Lp2d')
        A('s_min_u32 s%d, s%d, 63', sA, sNEXT)
        A('s_cmp_gt_u32 s%d, s%d', sAV, sA)
        A('s_cbranch_scc1 %s', D)
        A.label(L)
        A('buffer_load_dword v%d, v%d, %s, s%d offen sc1', vFL, vZ, WS, sSRC)
        A('s_waitcnt vmcnt(0)')
        A('v_readfirstlane_b32 s%d, v%d', sAV, vFL)
        A('s_cmp_gt_u32 s%d, s%d', sAV, sA)
        A('s_cbranch_scc1 %s', D)
        poll_tail(L, D, sleep=1)

    def dma():
        A('s_add_u32 m0, s%d, s%d', sLB, sSLOT)
        for i in range(3):
            A('buffer_load_dwordx4 v%d, %s, s%d offen offset:%d sc1 lds', vL16, WS, sVIN, i * 1024)
        A('s_add_u32 s%d, s%d, 12288', sVIN, sVIN)
        A('s_add_u32 s%d, s%d, 12288', sSLOT, sSLOT)
        A('s_cmp_eq_u32 s%d, %d', sSLOT, NS * 12288)
        A('s_cselect_b32 s%d, 0, s%d', sSLOT, sSLOT)
        A('s_add_u32 s%d, s%d, 1', sNEXT, sNEXT)

    def rd(tt, kk):
        d = vf + (kk * 2 + tt) * 4
        if kk < 4:
            return ['ds_read_b128 %s, v%d offset:%d' % (v(d, 4), vLA, kk * 3072 + tt * 1024)]
        return ['ds_read_b64 %s, v%d offset:%d' % (v(d + 2 * h, 2), vLA, (2 * (kk - 4) + h) * 3072 + 2048 + tt * 8) for h in range(2)]

    need_avail(); dma()
    A('s_waitcnt vmcnt(0)')
    A('s_barrier')
    for kk in range(6):
        for tt in range(2):
            for ln in rd(tt, kk):
                A(ln)
    A('s_mov_b32 s%d, 12288', sRD)
    A('s_mov_b32 s%d, 0', sSEG)

    def epi(T):
        a0 = acc[T & 1]
        o = ob[T & 1]
        ops = [['v_cvt_pk_bf16_f32 v%d, v%d, v%d' % (o + i, a0 + 2 * i, a0 + 2 * i + 1)] for i in range(4)]
        st = []
        if T % 4 == 0:
            st.append('s_add_u32 s%d, s%d, %d' % (sC, sOUTB, T * 1024))
        st.append('buffer_store_dwordx4 %s, v%d, %s, s%d offen offset:%d sc1' % (v(o, 4), vL16, WS, sC, (T % 4) * 1024))
        if T == 9:
            st.append('s_add_u32 s%d, s%d, %d' % (sOUTB, sOUTB, 40 * 40960))
        ops.append(st)
        return ops

    def flag_ops(n):
        return [['s_waitcnt vmcnt(%d)' % n, 'v_mov_b32 v%d, s%d' % (vCNT, sSEG)],
                ['s_mov_b64 exec, 1', 'buffer_store_dword v%d, v%d, %s, s%d offen sc1' % (vCNT, vZ, WS, sFLAG), 's_mov_b64 exec, -1']]

    def body(first):
        need_avail(); dma()
        A('s_waitcnt lgkmcnt(0)')
        for T in range(10):
            fill = {}
            if T > 0 or not first:
                for i, op in enumerate(epi((T - 1) % 10)):
                    fill[5 + i] = op
            if T == 5 and not first:
                f = flag_ops(4)
                fill[1], fill[2] = f
            if T == 8:
                fill[10] = ['s_waitcnt vmcnt(8)', 's_barrier', 'v_add_u32 v%d, s%d, v%d' % (vLA, sRD, vL16)]
            for kk in range(6):
                for tt in range(2):
                    m = kk * 2 + tt
                    d = v(acc[T & 1] + 4 * tt, 4)
                    A('v_mfma_f32_16x16x32_bf16 %s, %s, %s, %s', d, v(vf + m * 4, 4), a_((T * 6 + kk) * 4, 4), '0' if kk == 0 else d)
                    if T == 9:
                        for ln in rd(tt, kk):
                            A(ln)
                    for ln in fill.get(m, []):
                        A(ln)
        A('s_add_u32 s%d, s%d, 12288', sRD, sRD)
        A('s_cmp_eq_u32 s%d, %d', sRD, NS * 12288)
        A('s_cselect_b32 s%d, 0, s%d', sRD, sRD)
        A('s_add_u32 s%d, s%d, 1', sSEG, sSEG)

    body(True)
    stamp(3)
    A.label('L_P2_loop')
    body(False)
    A('s_cmp_lt_u32 s%d, 64', sSEG)
    A('s_cbranch_scc1 L_P2_loop')
    for op in epi(9) + flag_ops(0):
        for ln in op:
            A(ln)
    finish_role(2)


def allreduce8(x, t, op):
    A('%s_dpp v%d, v%d, v%d row_ror:8 row_mask:0xf bank_mask:0xf', op, x, x, x)
    A('v_mov_b32 v%d, v%d', t, x)
    A('v_permlane16_swap_b32 v%d, v%d', x, t)
    A('%s v%d, v%d, v%d', op, x, x, t)
    A('v_mov_b32 v%d, v%d', t, x)
    A('v_permlane32_swap_b32 v%d, v%d', x, t)
    A('%s v%d, v%d, v%d', op, x, x, t)


def layernorm():
    lane = 1
    vIN, vOUTA, t0, t1, vM, vS = 2, 3, 4, 5, 6, 7
    raw, f = 8, 48
    A('v_and_b32 v%d, 7, v%d', t0, lane)
    A('v_lshrrev_b32 v%d, 3, v%d', t1, lane)
    A('s_lshl_b32 s%d, s%d, 3', sA, sW)
    A('v_add_u32 v%d, s%d, v%d', vIN, sA, t0)
    A('v_mul_u32_u24 v%d, 1280, v%d', vIN, vIN)
    A('v_lshl_add_u32 v%d, v%d, 4, v%d', vIN, t1, vIN)
    A('s_and_b32 s%d, s%d, 1', sA, sW)
    A('s_lshl_b32 s%d, s%d, 7', sA, sA)
    A('s_lshr_b32 s%d, s%d, 1', sB, sW)
    A('s_mul_i32 s%d, s%d, 20480', sB, sB)
    A('s_add_u32 s%d, s%d, s%d', sA, sA, sB)
    A('v_lshlrev_b32 v%d, 8, v%d', vOUTA, t1)
    A('v_lshl_add_u32 v%d, v%d, 4, v%d', vOUTA, t0, vOUTA)
    A('v_add_u32 v%d, s%d, v%d', vOUTA, sA, vOUTA)
    A.label('L_ln_loop')
    A('s_mul_i32 s%d, s%d, 40960', sA, sSEG)
    for j in range(10):
        A('buffer_load_dwordx4 %s, v%d, %s, s%d offen offset:%d', v(raw + 4 * j, 4), vIN, XS, sA, 128 * j)
    A('v_mov_b32 v%d, 0', vM)
    A('v_mov_b32 v%d, 0', vS)
    for j in range(10):
        A('s_waitcnt vmcnt(%d)', 9 - j)
        for i in range(4):
            d = 4 * j + i
            A('v_lshlrev_b32 v%d, 16, v%d', f + 2 * d, raw + d)
            A('v_and_b32 v%d, 0xffff0000, v%d', f + 2 * d + 1, raw + d)
            A('v_add_f32 v%d, v%d, v%d', vM, vM, f + 2 * d)
            A('v_add_f32 v%d, v%d, v%d', vS, vS, f + 2 * d + 1)
    A('v_add_f32 v%d, v%d, v%d', vM, vM, vS)
    allreduce8(vM, t0, 'v_add_f32')
    A('v_mul_f32 v%d, 0x3acccccd, v%d', vM, vM)
    A('v_mov_b32 v%d, 0', vS)
    A('v_mov_b32 v%d, 0', t1)
    for e in range(0, 80, 2):
        A('v_sub_f32 v%d, v%d, v%d', raw, f + e, vM)
        A('v_sub_f32 v%d, v%d, v%d', raw + 1, f + e + 1, vM)
        A('v_fmac_f32 v%d, v%d, v%d', vS, raw, raw)
        A('v_fmac_f32 v%d, v%d, v%d', t1, raw + 1, raw + 1)
    A('v_add_f32 v%d, v%d, v%d', vS, vS, t1)
    allreduce8(vS, t0, 'v_add_f32')
    A('v_mul_f32 v%d, 0x3acccccd, v%d', vS, vS)
    A('v_cvt_pk_bf16_f32 v%d, v%d, v%d', t0, vM, vS)
    A('v_lshlrev_b32 v%d, 16, v%d', vM, t0)
    A('v_and_b32 v%d, 0xffff0000, v%d', vS, t0)
    A('v_add_f32 v%d, 0x3727c5ac, v%d', vS, vS)
    A('v_cvt_pk_bf16_f32 v%d, v%d, v%d', vS, vS, vS)
    A('v_and_b32 v%d, 0xffff0000, v%d', vS, vS)
    A('v_sqrt_f32 v%d, v%d', vS, vS)
    A('v_cvt_pk_bf16_f32 v%d, v%d, v%d', vS, vS, vS)
    A('v_and_b32 v%d, 0xffff0000, v%d', vS, vS)
    A('v_rcp_f32 v%d, v%d', vS, vS)
    A('s_add_u32 s%d, s%d, %d', sA, sA, XN)
    for j in range(10):
        for i in range(4):
            d = 4 * j + i
            A('v_sub_f32 v%d, v%d, v%d', f + 2 * d, f + 2 * d, vM)
            A('v_sub_f32 v%d, v%d, v%d', f + 2 * d + 1, f + 2 * d + 1, vM)
            A('v_cvt_pk_bf16_f32 v%d, v%d, v%d', t0, f + 2 * d, f + 2 * d + 1)
            A('v_lshlrev_b32 v%d, 16, v%d', t1, t0)
            A('v_and_b32 v%d, 0xffff0000, v%d', t0, t0)
            A('v_mul_f32 v%d, v%d, v%d', t1, t1, vS)
            A('v_mul_f32 v%d, v%d, v%d', t0, t0, vS)
            A('v_cvt_pk_bf16_f32 v%d, v%d, v%d', raw + d, t1, t0)
        A('buffer_store_dwordx4 %s, v%d, %s, s%d offen offset:%d sc1', v(raw + 4 * j, 4), vOUTA, WS, sA, 2048 * (j & 1))
        if j & 1:
            A('s_add_u32 s%d, s%d, 4096', sA, sA)
    A('s_add_u32 s%d, s%d, 48', sSEG, sSEG)
    A('s_cmp_lt_u32 s%d, 64', sSEG)
    A('s_cbranch_scc1 L_ln_loop')


import roles_r


def main():
    g = globals()
    entry()
    role_p1()
    role_p2()
    NT[0] = ' nt' if OPT.get('nt', 0) & 2 else ''
    roles_r.emit(g)
    A.label('L_end')
    A('s_endpgm')
    body = A.finish()
    ref = open('cdna_kernels/%s.s.ref' % NAME).read().split('\n')
    head = [ln for ln in ref if ln.startswith(';') and '@launch' not in ln and 'Override' not in ln and 'grid=ceil' not in ln]
    txt = '\n'.join(head) + '\n; @launch grid=(256,1,1) block=(256,1,1) lds=163840\n'
    txt += '; generated by dev/gen.py (hand-written generator)\n'
    txt += '.amdgcn_target "amdgcn-amd-amdhsa--gfx950"\n.text\n.globl %s_kernel\n.p2align 8\n.type %s_kernel,@function\n%s_kernel:\n' % (NAME, NAME, NAME)
    txt += body
    txt += '''.section .rodata,"a"
.p2align 6
.amdhsa_kernel %s_kernel
  .amdhsa_next_free_vgpr 512
  .amdhsa_next_free_sgpr 102
  .amdhsa_accum_offset 256
  .amdhsa_group_segment_fixed_size 0
  .amdhsa_float_denorm_mode_32 3
  .amdhsa_kernarg_size 104
  .amdhsa_user_sgpr_count 2
  .amdhsa_user_sgpr_kernarg_segment_ptr 1
  .amdhsa_system_sgpr_workgroup_id_x 1
.end_amdhsa_kernel
''' % NAME
    open(sys.argv[1], 'w').write(txt)
    print('wrote', sys.argv[1], len(txt), 'bytes;', A.n_nops, 'hazard nops')


if __name__ == '__main__':
    main()
```

```python
from asmlib import v, a_, s, Stream
from layout import *


def goff(dst, sg):
    A('s_lshr_b32 s%d, s%d, 1', sC, sIDX)
    A('s_lshl_b32 s%d, s%d, 14', sC, sC)
    A('s_and_b32 s%d, s%d, 1', sA, sIDX)
    A('s_lshl_b32 s%d, s%d, 12', sA, sA)
    A('s_add_u32 s%d, s%d, s%d', sC, sC, sA)
    A('s_add_u32 s%d, s%d, s%d', sA, sIDX, sg)
    A('s_and_b32 s%d, s%d, 3', sA, sA)
    A('s_lshl_b32 s%d, s%d, 2', sA, sA)
    A('s_add_u32 s%d, s%d, s%d', sA, sA, sW)
    A('s_lshl_b32 s%d, s%d, 8', sA, sA)
    A('s_add_u32 s%d, s%d, s%d', dst, sC, sA)


def loff(dst):
    A('s_lshl_b32 s%d, s%d, 15', dst, sG)
    A('s_lshl_b32 s%d, s%d, 8', sA, sHEAD)
    A('s_add_u32 s%d, s%d, s%d', dst, dst, sA)
    A('s_cmp_ge_u32 s%d, 5', sIDX)
    A('s_cselect_b32 s%d, %d, 0', sA, 16384 - 5120)
    A('s_add_u32 s%d, s%d, s%d', dst, dst, sA)


def probe():
    A('v_mov_b32 v3, %d', MG + 0x1C0000)
    A('s_mov_b32 s%d, -1', s0_)
    A('s_mov_b32 s%d, -1', s1_)
    A('s_mov_b32 s%d, %d', sC, OPT.get('npr', 10))
    A('s_mov_b64 exec, 1')
    A.label('L_probe')
    for par in range(2):
        A('s_mov_b32 s%d, %d', sB, 8192 * par)
        A('v_mov_b32 v2, 0')
        A('s_memtime s[72:73]')
        A('s_waitcnt lgkmcnt(0)')
        A('buffer_atomic_or v2, v3, %s, s%d offen sc0', WS, sB)
        A('s_waitcnt vmcnt(0)')
        A('s_memtime s[74:75]')
        A('s_waitcnt lgkmcnt(0)')
        A('s_sub_u32 s%d, s74, s72', sA)
        A('s_min_u32 s%d, s%d, s%d', s0_ + par, s0_ + par, sA)
    A('s_sub_u32 s%d, s%d, 1', sC, sC)
    A('s_cbranch_scc0 L_probe')
    A('s_cmp_lt_u32 s%d, s%d', s1_, s0_)
    A('s_cselect_b32 s%d, 3, 2', sA)
    if 'par' in OPT:
        A('s_xor_b32 s%d, s%d, %d', sA, sA, OPT['par'])
    A('s_lshl_b32 s%d, s%d, 24', sA, sA)
    A('v_mov_b32 v2, s%d', sA)
    A('v_mov_b32 v3, %d', D_INIT)
    A('buffer_atomic_add v2, v3, %s, 0 offen', DBG)
    A('s_mov_b64 exec, -1')


def emit():
    sROLE = 3
    lane = 1
    sOWN = 53
    A.label('L_F')
    A('s_mov_b32 s%d, 1', sROLE)
    A('s_add_u32 s%d, s%d, 40', sSEG, sIDX)
    A('s_branch L_LN')
    A.label('L_C')
    A('s_mov_b32 s%d, 0', sROLE)
    A('s_sub_u32 s%d, s%d, 16', sIDX, sT)
    A('s_lshl_b32 s%d, s%d, 2', sSEG, sIDX)
    A('s_add_u32 s%d, s%d, s%d', sSEG, sSEG, sG)
    A.label('L_LN')
    layernorm()
    A('s_cmp_ge_u32 s%d, 48', sSEG)
    A('s_cbranch_scc1 L_LN2')
    A('v_mov_b32 v128, v2')
    A('v_mov_b32 v129, v3')
    A('s_cmp_eq_u32 s%d, 1', sROLE)
    A('s_cbranch_scc1 L_C_nop')
    A('s_lshl_b32 s%d, s%d, 2', sHEAD, sIDX)
    A('s_add_u32 s%d, s%d, s%d', sHEAD, sHEAD, sW)
    A('v_mov_b32 v4, -1')
    A('v_lshlrev_b32 v9, 2, v%d', lane)
    loff(sB)
    for k in range(8):
        A('s_add_u32 s%d, s%d, %d', sA, sB, MG + MSTEP * (k >> 1) + 8192 * (k & 1))
        A('buffer_store_dword v4, v9, %s, s%d offen sc1', WS, sA)
    goff(sB, sG)
    for k in range(40):
        A('s_add_u32 s%d, s%d, %d', sA, sB, MG + GSLOT * (k >> 1) + 8192 * (k & 1))
        A('buffer_store_dword v4, v9, %s, s%d offen sc1', WS, sA)
    A('s_cmp_ge_u32 s%d, 20', sHEAD)
    A('s_cbranch_scc1 L_C_nop')
    A('s_mul_i32 s%d, s%d, 5120', sB, sG)
    A('s_lshl_b32 s%d, s%d, 8', sA, sHEAD)
    A('s_add_u32 s%d, s%d, s%d', sB, sB, sA)
    for k in range(3):
        A('s_add_u32 s%d, s%d, %d', sA, sB, PR + PSLOT * k)
        A('buffer_store_dword v4, v9, %s, s%d offen sc1', WS, sA)
    A.label('L_C_nop')
    A('s_waitcnt vmcnt(0)')
    A('s_barrier')
    arrive_init(2)
    stamp(1)
    A('s_add_u32 s%d, s%d, 16', sSEG, sSEG)
    A('v_mov_b32 v2, v128')
    A('v_mov_b32 v3, v129')
    A('s_cmp_ge_u32 s%d, 48', sSEG)
    A('s_cbranch_scc1 L_ln_loop')
    A('s_lshl_b32 s%d, s%d, 2', sA, sSEG)
    A('s_add_u32 s%d, s%d, s%d', sA, sA, sW)
    A('s_cmp_lg_u32 s%d, 64', sA)
    A('s_cbranch_scc1 L_LN3')
    probe()
    A('s_branch L_LN3')
    A.label('L_LN2')
    A('s_waitcnt vmcnt(0)')
    A('s_barrier')
    A('s_cmp_lg_u32 s%d, 0', sW)
    A('s_cbranch_scc1 L_LN3')
    A('s_mov_b64 exec, 1')
    A('v_mov_b32 v2, 1')
    A('v_mov_b32 v3, %d', D_LN2)
    A('buffer_atomic_add v2, v3, %s, 0 offen', DBG)
    A('s_mov_b64 exec, -1')
    A.label('L_LN3')
    A('s_cmp_eq_u32 s%d, 1', sROLE)
    A('s_cbranch_scc1 L_F_go')
    role_c(sOWN)
    role_f()


def tsa(i):
    if not OPT.get('cst'):
        ts(i)


def tsb(i, mode=1):
    if OPT.get('cst') == mode:
        ts(i)


def role_c(sOWN):
    lane = 1
    PL, XL = 0, 8192
    vL16, vIDX2, vZLD, vPMX, vL4, vFL, vFA, vTG, vTA, vPW, vPW1, vT4, vG, vGP, vNEG, vBA = range(2, 18)
    TT = 20
    POH = 28
    PA = 32
    ACCC = 40
    XACC = 44
    PF = 52
    XF = 72
    XCH = 104
    BT = 116
    vGR = 120
    XL_ = 168
    Z = 128
    PS = 184
    sLP, sGP, sS1, sS2, sP0, sP1, sZ0, sZ1 = s0_, s1_, s2_, s3_, s4_, s5_, s6_, s7_
    sX0, sX1, sVO, sPO, sP2, sX2, sXT, sNEED, sS3, sZ2, sGS, sXW, sEV = 78, 79, 100, 101, 64, 65, 40, 69, 41, 42, 43, 44, 46
    sL0 = 45
    r_, g_, t0, t1 = range(TT, TT + 4)
    A('v_lshlrev_b32 v%d, 4, v%d', vL16, lane)
    A('v_lshlrev_b32 v%d, 2, v%d', vL4, lane)
    A('v_and_b32 v%d, 8, v%d', t0, lane)
    A('v_cmp_eq_u32 vcc, 0, v%d', t0)
    A('v_mov_b32 v%d, 0xe4e4', t0)
    A('v_mov_b32 v%d, 0x4e4e', t1)
    A('v_cndmask_b32 v%d, v%d, v%d, vcc', vIDX2, t0, t1)
    A('v_and_b32 v%d, 15, v%d', r_, lane)
    A('v_lshrrev_b32 v%d, 4, v%d', g_, lane)
    A('v_mul_u32_u24 v%d, 10240, v%d', t0, g_)
    A('v_lshl_add_u32 v%d, v%d, 4, v%d', vZLD, r_, t0)
    A('v_mul_u32_u24 v%d, 2560, v%d', t0, g_)
    A('v_lshl_add_u32 v%d, v%d, 4, v%d', vPMX, r_, t0)
    A('v_and_b32 v%d, 1, v%d', t0, g_)
    A('v_lshlrev_b32 v%d, 2, v%d', t0, t0)
    A('v_and_b32 v%d, 2, v%d', t1, g_)
    A('v_add_u32 v%d, v%d, v%d', t0, t0, t1)
    A('v_and_b32 v%d, 1, v%d', t1, r_)
    A('v_cmp_eq_u32 s[%d:%d], 0, v%d', sEV, sEV + 1, t1)
    A('v_add_u32 v%d, v%d, v%d', t0, t0, t1)
    A('v_bfe_u32 v%d, v%d, 1, 1', t1, r_)
    A('v_lshl_add_u32 v%d, v%d, 3, v%d', t0, t1, t0)
    A('v_lshrrev_b32 v%d, 2, v%d', t1, r_)
    A('v_lshlrev_b32 v%d, 2, v%d', t1, t1)
    A('v_lshl_add_u32 v%d, v%d, 4, v%d', vT4, t0, t1)
    A('v_and_b32 v%d, 7, v%d', t0, lane)
    A('s_mul_i32 s%d, s%d, 26', sA, sHEAD)
    A('s_lshr_b32 s%d, s%d, 8', sA, sA)
    A('s_lshl_b32 s%d, s%d, 2', sA, sA)
    A('s_lshl_b32 s%d, s%d, 10', sB, sG)
    A('s_add_u32 s%d, s%d, s%d', sA, sA, sB)
    A('s_add_u32 s%d, s%d, %d', sA, sA, FL_P2)
    A('v_lshl_add_u32 v%d, v%d, 7, s%d', vFA, t0, sA)
    A('v_lshlrev_b32 v%d, 2, v%d', vTA, t0)
    A('s_lshl_b32 s%d, s%d, 2', sA, sG)
    A('s_add_u32 s%d, s%d, s%d', sA, sA, sW)
    A('s_lshl_b32 s%d, s%d, 5', sA, sA)
    A('s_add_u32 s%d, s%d, %d', sXT, sA, XTAG)
    A('s_lshl_b32 s%d, s%d, 8', sA, sG)
    A('s_add_u32 s%d, s%d, %d', sA, sA, BELL)
    A('v_add_u32 v%d, s%d, v%d', vBA, sA, vTA)
    A('v_mov_b32 v%d, 0', vFL)
    A('v_mov_b32 v%d, 0', vTG)
    A('v_mov_b32 v%d, -1', vNEG)
    A('s_lshl_b32 s%d, s%d, 10', sA, sW)
    A('v_add_u32 v%d, s%d, v%d', vPW, sA, vL16)
    A('s_lshl_b32 s%d, s%d, 8', sA, sW)
    A('s_add_u32 s%d, s%d, 4096', sA, sA)
    A('v_add_u32 v%d, s%d, v%d', vPW1, sA, vL4)
    A('v_bfe_u32 v%d, v%d, 2, 3', t0, lane)
    A('v_mul_u32_u24 v%d, 1280, v%d', t0, t0)
    A('v_and_b32 v%d, 3, v%d', t1, lane)
    A('v_lshl_add_u32 v%d, v%d, 3, v%d', t0, t1, t0)
    A('v_lshrrev_b32 v%d, 5, v%d', t1, lane)
    A('v_lshl_add_u32 v%d, v%d, 2, v%d', t0, t1, t0)
    A('s_lshl_b32 s%d, s%d, 5', sA, sHEAD)
    A('buffer_load_dword v%d, v%d, %s, s%d offen', POH, t0, MEM0, sA)
    wait_init(TT, par=True)
    stamp(2)
    A('s_bfe_u32 s%d, s%d, 0x10018', sGS, sA)
    A('s_lshl_b32 s%d, s%d, 13', sGS, sGS)
    for k, r in enumerate((sGP, sS1, sS2, sS3)):
        A('s_add_u32 s%d, s%d, %d', sB, sG, k)
        goff(r, sB)
        A('s_add_u32 s%d, s%d, s%d', r, r, sGS)
        A('s_add_u32 s%d, s%d, %d', r, r, MG)
    loff(sL0)
    A('s_xor_b32 s%d, s%d, 8192', sA, sGS)
    A('s_add_u32 s%d, s%d, s%d', sL0, sL0, sA)
    A('s_add_u32 s%d, s%d, %d', sL0, sL0, MG)
    A('v_min_u32 v%d, -2, v%d', POH, POH)
    A('buffer_store_dword v%d, v%d, %s, s%d offen sc1', POH, vL4, WS, sL0)
    A('s_lshl_b32 s%d, s%d, 8', sB, sHEAD)
    A('s_mul_i32 s%d, s%d, 5120', sP0, sG)
    A('s_add_u32 s%d, s%d, %d', sP0, sP0, PR)
    A('s_add_u32 s%d, s%d, %d', sP1, sP0, PSLOT)
    A('s_add_u32 s%d, s%d, %d', sP2, sP0, 2 * PSLOT)
    A('s_mul_i32 s%d, s%d, 81920', sZ0, sG)
    A('s_add_u32 s%d, s%d, s%d', sZ0, sZ0, sB)
    A('s_add_u32 s%d, s%d, %d', sZ0, sZ0, ZL)
    A('s_add_u32 s%d, s%d, %d', sZ1, sZ0, 32 * 10240)
    A('s_add_u32 s%d, s%d, %d', sZ2, sZ0, 64 * 10240)
    A('s_mul_i32 s%d, s%d, 5120', sXW, sW)
    A('s_mul_i32 s%d, s%d, 20480', sX2, sG)
    A('s_add_u32 s%d, s%d, s%d', sX2, sX2, sXW)
    A('s_add_u32 s%d, s%d, %d', sX2, sX2, PXR)
    A('s_add_u32 s%d, s%d, %d', sX0, sX2, 32 * 2560)
    A('s_add_u32 s%d, s%d, %d', sX1, sX2, 64 * 2560)
    A('s_mul_i32 s%d, s%d, %d', sVO, sG, 8 * 40960)
    A('s_lshl_b32 s%d, s%d, 10', sA, sHEAD)
    A('s_add_u32 s%d, s%d, s%d', sVO, sVO, sA)
    A('s_add_u32 s%d, s%d, %d', sVO, sVO, VO)
    A('s_mul_i32 s%d, s%d, %d', sPO, sG, POG)
    A('s_add_u32 s%d, s%d, s%d', sPO, sPO, sA)
    A('s_add_u32 s%d, s%d, %d', sPO, sPO, PO - 3 * NG * POG)
    assert PO - 3 * NG * POG >= ZL + 96 * 10240 and PO + 64 * NG * POG <= VO
    A('s_mov_b32 s%d, 0', sSEG)
    A('s_cmp_lg_u32 s%d, 0', sMODE)
    A('s_cbranch_scc1 L_C_slow')

    def xcombine(ab, mid=(), valu=()):
        A('s_add_u32 m0, s%d, %d', sXW, XL)
        for i in range(4):
            A('buffer_load_dwordx4 v%d, %s, s%d offen offset:%d sc1 lds', vL16, WS, sX0, 1024 * i)
        A('s_add_u32 m0, s%d, %d', sXW, XL + 4096)
        A('s_add_u32 s%d, s%d, 4096', sA, sX0)
        A('buffer_load_dwordx4 v%d, %s, s%d offen sc1 lds', vL16, WS, sA)
        for op in mid:
            for ln in op:
                A(ln)
        A('s_waitcnt vmcnt(%d)', len(mid))
        A('s_barrier')
        tsb(1)
        S = Stream(A)
        rd = ['ds_read_b128 %s, v%d offset:%d' % (v(XF + 4 * (n % 8), 4), vL16, XL + 2560 * (n >> 1) + 1024 * (n & 1)) for n in range(16)]
        rd += ['ds_read_b128 %s, v%d offset:%d' % (v(XF + 4 * (n % 8), 4), vPMX, XL + 10240 * ((n >> 1) & 1) + 2048 + 256 * (n & 1)) for n in range(16, 20)]
        for ln in rd[:6]:
            S(ln)
        valu = list(valu)
        for n in range(20):
            d = v(XACC + 4 * (n & 1), 4)
            S('v_mfma_f32_16x16x32_bf16 %s, %s, %s, %s', d, a_(ab + 4 * (n >> 1), 4), v(XF + 4 * (n % 8), 4), '0' if n < 2 else d)
            if n + 6 < 20:
                S(rd[n + 6])
            if valu:
                A(valu.pop(0))
        assert not valu
        rot3(sX0, sX1, sX2)
        for i in range(4):
            A('v_cvt_pk_bf16_f32 v%d, v%d, v%d', POH + i, XACC + 2 * i, XACC + 2 * i + 1)

    def po_store():
        A('buffer_store_dwordx4 %s, v%d, %s, s%d offen sc1', v(POH, 4), vL16, WS, sPO)
        A('s_add_u32 s%d, s%d, %d', sPO, sPO, NG * POG)

    late = []

    def bookkeeping():
        rot3(sP0, sP1, sP2)
        rot3(sZ0, sZ1, sZ2)
        if not OPT.get('fixvo'):
            A('s_add_u32 s%d, s%d, %d', sVO, sVO, 40 * 40960)

    def body(ab, sc):
        ND = OPT.get('nd', 2)
        A('s_add_u32 s%d, s%d, 1', sNEED, sSEG)
        gate(vFL, vFA, '0', sNEED)
        vo = [['s_add_u32 s%d, s%d, %d' % (sB, sVO, 40960 * j),
               'buffer_load_dwordx4 %s, v%d, %s, s%d offen sc1' % (v(Z + 4 * j, 4), vL16, WS, sB)] for j in range(8)]
        mem_slot(sLP, sL0, 2)
        vo.insert(0, ['buffer_store_dword v%d, v%d, %s, s%d offen%s' % (vNEG, vL4, WS, sLP, sc)])
        vo.append(['buffer_store_dwordx4 %s, v%d, %s, s%d offen sc1' % (v(POH, 4), vL16, WS, sPO),
                   's_add_u32 s%d, s%d, %d' % (sPO, sPO, NG * POG)])
        ts(0)
        valu = ['v_mov_b32 v%d, 0' % r for r in list(range(ACCC, ACCC + 4)) + list(range(XCH, XCH + 3 * ND))]
        assert ND <= 3
        NR = OPT.get('nr', 3)
        RSTR = 4 * GSLOT
        valu.append('s_add_u32 s%d, s%d, 1\ns_and_b32 s%d, s%d, 3\ns_mul_i32 s%d, s%d, %d\nv_add_u32 v%d, s%d, v%d' %
                    (sA, sSEG, sA, sA, sA, sA, GSLOT, vG, sA, vL4))
        valu += ['v_add_u32 v%d, %d, v%d' % (vGR + r, RSTR * (r + 1), vG) for r in range(NR)]
        A('s_add_u32 s%d, s%d, 2', sA, sSEG)
        A('s_and_b32 s%d, s%d, 3', sA, sA)
        A('s_mul_i32 s%d, s%d, %d', sA, sA, GSLOT)
        A('v_add_u32 v%d, s%d, v%d', vGP, sA, vL4)
        for r in range(NR + 1):
            vo.append(['s_add_u32 s%d, s%d, %d' % (sB, sGP, RSTR * r), 'buffer_store_dword v%d, v%d, %s, s%d offen sc1' % (vNEG, vGP, WS, sB)])
        xcombine(ab, vo, valu)
        tsa(1)
        tsb(2)
        if OPT.get('cst') == 1:
            A('s_waitcnt vmcnt(0)')
            ts(3)
        mem_slot(sLP, sL0, 1)
        A('s_add_u32 s%d, s%d, 40960', sB, sZ0)
        zl = ['buffer_load_dwordx4 %s, v%d, %s, s%d offen sc1' % (v(Z + 32 + 4 * h, 4), vZLD, WS, (sZ0, sB)[h]) for h in range(2)]
        pl = ['buffer_load_dwordx4 %s, v%d, %s, s%d offen sc1' % (v(PA, 4), vPW, WS, sP0),
              'buffer_load_dword v%d, v%d, %s, s%d offen sc1' % (PA + 4, vPW1, WS, sP0)]
        if OPT.get('csl', 0):
            A('s_sleep %d', OPT['csl'])
        for r in list(range(PA, PA + 5)) + list(range(Z + 32, Z + 40)):
            A('v_mov_b32 v%d, -1', r)
        A('s_waitcnt vmcnt(0)')
        late.append(masked_poll(pl + zl, [PA, [PA + 4], Z + 32, Z + 36], TT, 56, depth=OPT.get('pp', 2), ngate=2))
        tsa(2)
        tsa(3)
        if ab:
            A('s_cmp_eq_u32 s%d, 63', sSEG)
            A('s_cbranch_scc1 L_C_last')
        A('ds_write_b128 v%d, %s offset:%d', vPW, v(PA, 4), PL)
        A('ds_write_b32 v%d, v%d offset:%d', vPW1, PA + 4, PL)
        A('s_waitcnt lgkmcnt(0)')
        tsa(4)
        A('s_barrier')
        tsa(5)
        for f in range(5):
            A('ds_read_b128 %s, v%d offset:%d', v(PF + 4 * f, 4), vL16, PL + 1024 * f)
        late.append(masked_poll(zl, [Z + 32, Z + 36], TT, 56, issued=2, nowait=True))
        A('s_mov_b64 vcc, s[%d:%d]', sEV, sEV + 1)
        for f in range(5):
            A('s_waitcnt lgkmcnt(%d)', 4 - f)
            A('v_smfmac_f32_16x16x64_bf16 %s, %s, %s, v%d', v(ACCC, 4), v(PF + 4 * f, 4), v(Z + 8 * f, 8), vIDX2)
        A('v_permlane32_swap_b32 v%d, v%d', ACCC, ACCC + 2)
        A('v_permlane32_swap_b32 v%d, v%d', ACCC + 1, ACCC + 3)
        A('v_pk_add_f32 %s, %s, %s', v(ACCC, 2), v(ACCC, 2), v(ACCC + 2, 2))
        dpp = 'quad_perm:[1,0,3,2] row_mask:0xf bank_mask:0xf'
        A('v_cndmask_b32_dpp v%d, v%d, v%d, vcc %s', ACCC + 2, ACCC + 1, ACCC, dpp)
        A('s_not_b64 vcc, vcc')
        A('v_cndmask_b32_dpp v%d, v%d, v%d, vcc %s', ACCC + 3, ACCC, ACCC + 1, dpp)
        A('v_cvt_pk_bf16_f32 v%d, v%d, v%d', ACCC, ACCC + 2, ACCC + 3)
        tsb(1, 2)
        for r in range(NR):
            A('buffer_store_dword v%d, v%d, %s, s%d offen sc1', ACCC, vGR + r, WS, sGP)
        if OPT.get('cst') != 2:
            ts(6)
        A('buffer_store_dword v%d, v%d, %s, s%d offen sc1', ACCC, vG, WS, sGP)
        mv = ['v_accvgpr_write_b32 a%d, v%d' % (ab + i, Z + i) for i in range(40)]

        def x_issue(k):
            for h, so in enumerate((sS1, sS2, sS3)):
                A('buffer_atomic_or v%d, v%d, %s, s%d offen sc0', XCH + 3 * k + h, vG, WS, so)
        xp = [int(x) for x in OPT.get('xp', '60,118,175').split(',')]
        work = list(mv)
        pos = 0
        done_bk = False
        for r in range(NR):
            while pos < xp[r]:
                if work:
                    A(work.pop(0)); pos += 1
                elif not done_bk:
                    bookkeeping(); done_bk = True; pos += 9
                elif xp[r] - pos >= 16:
                    n = (xp[r] - pos) // 16
                    A('s_sleep %d', n); pos += 16 * n
                else:
                    break
            if r == 0:
                tsb(2, 2)
            for h, so in enumerate((sS1, sS2, sS3)):
                A('buffer_load_dword v%d, v%d, %s, s%d offen sc1', XL_ + 3 * r + h, vGR + r, WS, so)
            pos += 14
        for ln in work:
            A(ln)
        if not done_bk:
            bookkeeping()
        L, J, R = A.newlabel('Lc3'), A.newlabel('Lc3j'), A.newlabel('Lc3r')
        DL = [A.newlabel('Lc3l') for _ in range(max(NR, 1))]
        DD = [A.newlabel('Lc3d') for _ in range(ND)]

        def unpack(x):
            for h in range(3):
                A('v_lshlrev_b32 v%d, 16, v%d', TT + 2 * h, x + h)
                A('v_and_b32 v%d, 0xffff0000, v%d', TT + 2 * h + 1, x + h)

        def check(x, n):
            A('s_waitcnt vmcnt(%d)', n)
            A('v_max3_u32 v%d, v%d, v%d, v%d', TT, x, x + 1, x + 2)
            A('v_cmp_eq_u32 vcc, -1, v%d', TT)
        x0 = XL_ if NR else XCH
        if OPT.get('cst') == 2:
            ts(3)
            A('s_waitcnt vmcnt(%d)', 3 * NR + NR)
            ts(4)
            A('s_waitcnt vmcnt(%d)', 3 * NR)
            ts(5)
            A('s_waitcnt vmcnt(%d)', 3 * NR - 3)
            ts(6)
        check(x0, 3 * (NR - 1) if NR else 0)
        A('s_cbranch_vccnz %s', R)
        unpack(x0)
        A.label(J)

        def rest():
            A.label(R)
            if NR == 0:
                for h in range(3):
                    A('v_mov_b32 v%d, 0', XCH + h)
            for r in range(1, NR):
                extra = 0
                if r == NR - 1:
                    x_issue(0)
                    extra = 3
                check(XL_ + 3 * r, 3 * (NR - 1 - r) + extra)
                A('s_cbranch_vccz %s', DL[r])
            for k in range(0 if NR < 2 else 1, ND):
                if k:
                    A('s_sleep %d', OPT.get('asl', 3))
                x_issue(k)
            A.label(L)
            for k in range(ND):
                check(XCH + 3 * k, 3 * ND - 3)
                A('s_cbranch_vccz %s', DD[k])
                for h in range(3):
                    A('v_mov_b32 v%d, 0', XCH + 3 * k + h)
                x_issue(k)
            A('s_sub_u32 s%d, s%d, 1', sBUD, sBUD)
            A('s_cbranch_scc0 %s', L)
            A('s_mov_b32 s%d, 0', sBUD)
            for lab, x in [(DD[k], XCH + 3 * k) for k in range(ND)] + [(DL[r], XL_ + 3 * r) for r in range(1, NR)]:
                A.label(lab)
                unpack(x)
                A('s_branch %s', J)
        late.append(rest)
        ts(7)
        A('v_pk_add_f32 %s, %s, %s', v(TT, 2), v(TT, 2), v(TT + 2, 2))
        A('v_pk_add_f32 %s, %s, %s', v(ACCC + 2, 2), v(ACCC + 2, 2), v(TT + 4, 2))
        A('v_pk_add_f32 %s, %s, %s', v(TT, 2), v(TT, 2), v(ACCC + 2, 2))
        A('v_cvt_pk_bf16_f32 v%d, v%d, v%d', ACCC, TT, TT + 1)
        A('buffer_store_dword v%d, v%d, %s, s%d offen%s', ACCC, vT4, WS, sLP, sc)
        ts(8)
        ts(9)
        A('s_barrier')
        if OPT['memdbg']:
            A('s_mul_i32 s%d, s%d, 40960', sA, sSEG)
            A('s_mul_i32 s%d, s%d, 10240', sB, sG)
            A('s_add_u32 s%d, s%d, s%d', sA, sA, sB)
            A('s_lshl_b32 s%d, s%d, 8', sB, sHEAD)
            A('s_add_u32 s%d, s%d, s%d', sA, sA, sB)
            A('s_add_u32 s%d, s%d, %d', sA, sA, MEMDBG)
            A('buffer_store_dword v%d, v%d, %s, s%d offen', ACCC, vT4, WS, sA)
        trace_dump(TT + 6)
        A('s_add_u32 s%d, s%d, 1', sSEG, sSEG)

    for tag, sc in (('fast', ''), ('slow', ' sc1')):
        A.label('L_C_%s' % tag)
        body(0, sc)
        body(40, sc)
        A('s_branch L_C_%s', tag)
        while late:
            late.pop()()
    A.label('L_C_last')
    zl = ['buffer_load_dwordx4 %s, v%d, %s, s%d offen sc1' % (v(Z + 32 + 4 * h, 4), vZLD, WS, (sZ0, sB)[h]) for h in range(2)]
    late.append(masked_poll(zl, [Z + 32, Z + 36], TT, 56, issued=2))
    for i in range(40):
        A('v_accvgpr_write_b32 a%d, v%d', 40 + i, Z + i)
    A('s_mov_b32 s%d, 64', sSEG)
    A('s_barrier')
    po_store()
    xcombine(0)
    po_store()
    gate(vTG, vTA, 's%d' % sXT, sSEG, sleep=0)
    A('s_barrier')
    xcombine(40)
    po_store()
    r_finish(TT)
    finish_role(6)
    late.pop()()


def role_f():
    A.label('L_F_go')
    lane = 1
    vL16, vFA1, vFA2, vFL1, vFL2, vXO = 0, 4, 5, 6, 7, 8
    ID = 12
    TT = 18
    XR = 24
    ACC = 40
    POR = 64
    FO = 128
    sVO, sPO, sNEED, sOUT, sT0, sCU = s0_, s1_, s3_, s4_, s5_, s6_
    sOF = 40
    identity(lane, ID, None)
    A('v_mov_b32 v%d, 0', ID + 2)
    A('v_mov_b32 v%d, 0', ID + 3)
    A('v_mov_b32 v%d, v%d', ID + 4, ID)
    A('v_mov_b32 v%d, v%d', ID + 5, ID + 1)
    A('v_lshlrev_b32 v%d, 4, v%d', vL16, lane)
    A('s_and_b32 s%d, s%d, 3', sCU, sIDX)
    A('v_and_b32 v2, 7, v%d', lane)
    A('s_lshl_b32 s%d, s%d, 2', sA, sCU)
    A('s_add_u32 s%d, s%d, %d', sA, sA, FL_P2 + 32 * 128)
    A('v_lshl_add_u32 v%d, v2, 7, s%d', vFA1, sA)
    A('v_mov_b32 v%d, %d', vFA2, D_PROG)
    A('v_mov_b32 v%d, 0', vFL1)
    A('v_mov_b32 v%d, 0', vFL2)
    A('s_mul_i32 s%d, s%d, 5', sA, sW)
    A('s_lshr_b32 s%d, s%d, 1', sA, sA)
    A('s_mul_i32 s%d, s%d, 10', sT0, sCU)
    A('s_add_u32 s%d, s%d, s%d', sT0, sT0, sA)
    A('v_lshrrev_b32 v2, 4, v%d', lane)
    A('v_and_b32 v3, 15, v%d', lane)
    A('v_mul_u32_u24 v%d, 1280, v3', vXO)
    A('v_lshl_add_u32 v%d, v2, 3, v%d', vXO, vXO)
    A('s_lshl_b32 s%d, s%d, 5', sA, sT0)
    A('v_add_u32 v%d, s%d, v%d', vXO, sA, vXO)
    A('s_lshl_b32 s%d, s%d, 10', sT0, sT0)
    wait_init(TT)
    A('s_lshr_b32 s%d, s%d, 2', sSEG, sIDX)
    A.label('L_F_loop')
    A('s_add_u32 s%d, s%d, 1', sNEED, sSEG)
    A('s_mul_i32 s%d, s%d, %d', sVO, sSEG, 40 * 40960)
    A('s_add_u32 s%d, s%d, s%d', sVO, sVO, sT0)
    A('s_add_u32 s%d, s%d, %d', sVO, sVO, VO + 32 * 40960)
    A('s_mul_i32 s%d, s%d, %d', sPO, sSEG, NG * POG)
    A('s_add_u32 s%d, s%d, s%d', sPO, sPO, sT0)
    A('s_add_u32 s%d, s%d, %d', sPO, sPO, PO)
    A('s_mul_i32 s%d, s%d, 40960', sOUT, sSEG)
    A('s_add_u32 s%d, s%d, 20480', sB, sOUT)
    gate(vFL1, vFA1, '0', sNEED, sleep=8)
    for j in range(8):
        A('s_add_u32 s%d, s%d, %d', sA, sVO, j * 40960)
        for t in range(3):
            A('buffer_load_dwordx4 %s, v%d, %s, s%d offen offset:%d sc1', v(FO + (3 * j + t) * 4, 4), vL16, WS, sA, 1024 * t)
    for t in range(3):
        for qt in range(2):
            A('buffer_load_dwordx2 %s, v%d, %s, s%d offen offset:%d', v(XR + 4 * t + 2 * qt, 2), vXO, XS, sB if qt else sOUT, 32 * t)
    for j in range(8):
        A('s_waitcnt vmcnt(%d)', 6 + 3 * (7 - j))
        for t in range(3):
            for qt in range(2):
                d = v(ACC + (2 * t + qt) * 4, 4)
                A('v_mfma_f32_16x16x32_bf16 %s, %s, %s, %s', d, v(FO + (3 * j + t) * 4, 4), v(ID + 2 * qt, 4), '0' if j == 0 else d)
    A('s_waitcnt vmcnt(0)')
    for t in range(3):
        for qt in range(2):
            d = v(ACC + (2 * t + qt) * 4, 4)
            A('v_mfma_f32_16x16x16_bf16 %s, %s, %s, %s', d, v(ID, 2), v(XR + 4 * t + 2 * qt, 2), d)
    A('s_max_u32 s%d, s%d, 5', sA, sNEED)
    A('s_sub_u32 s%d, s%d, 5', s7_, sA)
    gate(vFL2, vFA2, '0', s7_, sleep=64, buf=DBG)
    gate(vFL2, vFA2, '0', sNEED, sleep=OPT.get('fsl', 6), buf=DBG)
    stamp(3)
    for x in range(NG):
        A('s_add_u32 s%d, s%d, %d', sC, sPO, x * POG)
        for t in range(3):
            A('buffer_load_dwordx4 %s, v%d, %s, s%d offen offset:%d sc1', v(POR + (3 * x + t) * 4, 4), vL16, WS, sC, 1024 * t)
    for x in range(NG):
        A('s_waitcnt vmcnt(%d)', 3 * (NG - 1 - x))
        for t in range(3):
            for qt in range(2):
                d = v(ACC + (2 * t + qt) * 4, 4)
                A('v_mfma_f32_16x16x16_bf16 %s, %s, %s, %s', d, v(ID, 2), v(POR + (3 * x + t) * 4 + 2 * qt, 2), d)
    for t in range(3):
        for qt in range(2):
            a = ACC + (2 * t + qt) * 4
            o = XR + 4 * t + 2 * qt
            A('v_cvt_pk_bf16_f32 v%d, v%d, v%d', o, a, a + 1)
            A('v_cvt_pk_bf16_f32 v%d, v%d, v%d', o + 1, a + 2, a + 3)
            A('buffer_store_dwordx2 %s, v%d, %s, s%d offen offset:%d', v(o, 2), vXO, OUT, sB if qt else sOUT, 32 * t)
    stamp(8)
    A('s_add_u32 s%d, s%d, 2', sSEG, sSEG)
    A('s_cmp_lt_u32 s%d, 60', sSEG)
    A('s_cbranch_scc1 L_F_loop')
    finish_role(5)
```

```python
from asmlib import v, a_, s, Stream
from layout import *


def emit():
    A.label('L_RQ')
    if role_off('RQ'):
        return
    lane = 1
    NL, NB = 14, 3
    MEM, EX, EXM, EXX, WL = 0, 10240, 14336, 16384, 40960
    assert WL + 4 * NL * 2048 <= 163840
    vCH, vXX, vL4, SPARE, vR = 0, 1, 2, 3, 4
    vIDX, vL16, vWL, vPX, vPM, vFL, vFA, vXS, vEXW, vEXR, vMW = range(7, 18)
    SEL = 18
    _, Y, ACC, AR, STG, XA, KC, QR, VW = 20, 22, 28, 52, 92, 116, 120, 132, 144
    assert QR + 12 == VW
    SM, SX = AR, AR + 4
    XS_ = AR + 12
    TT = AR + 32
    sLB, sG1, sG2, sP0, sP1, sKN, sQC, sX0 = s0_, s1_, s2_, s3_, s4_, s5_, s6_, s7_
    sX1, sXT, sNEED, sJJ, sCS, sX2, sP2 = 78, 79, 69, 100, 101, 54, 55
    sBL, sEX = 53, 48
    sMK = [40, 42, 44, 46]
    seq = [(t, i) for i in range(3) for t in range(6)]
    for p in range(3):
        for i in range(3, 10):
            seq += [(p, i), (3 + p, i)]
    loc = plan(seq, NL, VW)

    A('s_lshl_b32 s%d, s%d, 4', sXT, sHEAD)
    A('s_lshl_b32 s%d, s%d, 2', sA, sW)
    A('s_add_u32 s%d, s%d, s%d', sXT, sXT, sA)
    A('s_add_u32 s%d, s%d, %d', sXT, sXT, XTAG)
    zero_flag(2, sXT)
    A('s_mov_b32 s%d, s%d', sJJ, sIDX)
    A('s_mul_i32 s%d, s%d, 5120', sP0, sG)
    A('s_add_u32 s%d, s%d, %d', sP0, sP0, PR)
    A('s_add_u32 s%d, s%d, %d', sP1, sP0, PSLOT)
    A('s_add_u32 s%d, s%d, %d', sP2, sP0, 2 * PSLOT)
    A('s_mov_b32 s%d, 12288', sKN)
    A('s_mul_i32 s%d, s%d, 384', sQC, sHEAD)

    def dest(off):
        return lambda w, st, kkl, j, t: wpair(loc, (off + t, (st - COFF[w]) % 10), 2 * kkl + j)
    sq, sk = stages_n192(WA, sKN, sQC, dest(0), lane), stages_n192(WB, sKN, sQC, dest(3), lane, setup=False)
    order = sq + sk
    if OPT.get('rev', 1):
        order = [x for p in zip(sq[::-1], sk[::-1]) for x in p]
    run_stages(order, first_hook=lambda: arrive_init(2), wsel=True)
    A('s_mul_i32 s%d, s%d, %d', sA, sW, NL * 2048)
    A('v_lshlrev_b32 v%d, 4, v%d', vWL, lane)
    A('s_add_u32 s%d, s%d, %d', sA, sA, WL)
    A('v_add_u32 v%d, s%d, v%d', vWL, sA, vWL)
    park_to_lds(NL, vWL)
    stamp(1)
    common_consts(lane, vCH, vR, vIDX, TT, vL16)
    fold_matrix(lane, SEL, TT, TT + 1)
    oob, m_, u_, g_, t0, t1 = range(TT, TT + 6)
    A('v_mov_b32 v%d, 0x%x', oob, OOB)
    A('v_lshlrev_b32 v%d, 2, v%d', vL4, lane)
    A('v_and_b32 v%d, 7, v%d', m_, lane)
    A('v_bfe_u32 v%d, v%d, 3, 1', u_, lane)
    A('v_lshrrev_b32 v%d, 4, v%d', g_, lane)
    A('v_lshl_add_u32 v%d, v%d, 1, v%d', t0, g_, u_)
    A('v_add_u32 v%d, v%d, v%d', t0, t0, m_)
    A('v_and_b32 v%d, 7, v%d', t0, t0)
    A('v_lshl_add_u32 v%d, v%d, 3, v%d', t0, m_, t0)
    A('s_lshl_b32 s%d, s%d, 10', sA, sW)
    A('s_add_u32 s%d, s%d, %d', sA, sA, EX)
    A('v_lshl_add_u32 v%d, v%d, 4, s%d', vEXW, t0, sA)
    A('v_and_b32 v%d, 1, v%d', t0, g_)
    A('v_lshl_add_u32 v%d, v%d, 1, v%d', t0, t0, u_)
    A('v_lshl_add_u32 v%d, v%d, 2, v%d', t0, m_, t0)
    A('v_lshlrev_b32 v%d, 3, v%d', t0, t0)
    A('v_lshrrev_b32 v%d, 1, v%d', t1, g_)
    A('v_xor_b32 v%d, 1, v%d', t1, t1)
    A('v_lshl_add_u32 v%d, v%d, 8, v%d', t0, t1, t0)
    A('s_lshl_b32 s%d, s%d, 9', sA, sW)
    A('s_add_u32 s%d, s%d, %d', sA, sA, EXM)
    A('v_add_u32 v%d, s%d, v%d', vMW, sA, t0)
    A('v_lshrrev_b32 v%d, 3, v%d', m_, lane)
    A('v_and_b32 v%d, 1, v%d', u_, lane)
    A('v_bfe_u32 v%d, v%d, 1, 2', g_, lane)
    A('v_add_u32 v%d, v%d, v%d', t0, lane, m_)
    A('v_and_b32 v%d, 7, v%d', t0, t0)
    A('v_lshl_add_u32 v%d, v%d, 3, v%d', t0, m_, t0)
    A('v_lshlrev_b32 v%d, 4, v%d', vEXR, t0)
    A('v_lshl_add_u32 v%d, v%d, 3, v%d', t0, u_, m_)
    A('v_lshlrev_b32 v%d, 4, v%d', vPX, t0)
    A('v_lshrrev_b32 v%d, 1, v%d', t0, g_)
    A('v_lshl_add_u32 v%d, v%d, 8, v%d', vPX, t0, vPX)
    A('v_and_b32 v%d, 1, v%d', t0, g_)
    A('v_lshl_add_u32 v%d, v%d, 3, v%d', vPX, t0, vPX)
    A('s_lshl_b32 s%d, s%d, 9', sA, sJJ)
    A('v_add_u32 v%d, s%d, v%d', vPX, sA, vPX)
    A('v_lshlrev_b32 v%d, 4, v%d', t0, m_)
    A('v_lshl_add_u32 v%d, v%d, 2, v%d', t0, g_, t0)
    A('v_cmp_eq_u32 vcc, 0, v%d', u_)
    A('v_cndmask_b32 v%d, v%d, v%d, vcc', t0, oob, t0)
    A('s_lshl_b32 s%d, s%d, 7', sA, sW)
    A('s_add_u32 s%d, s%d, 2048', sA, sA)
    A('v_add_u32 v%d, s%d, v%d', vXS, sA, t0)
    A('v_lshrrev_b32 v%d, 1, v%d', t0, g_)
    A('v_xor_b32 v%d, v%d, v%d', t1, t0, g_)
    A('v_and_b32 v%d, 1, v%d', t1, t1)
    A('v_xor_b32 v%d, 1, v%d', t1, t1)
    A('v_lshl_add_u32 v%d, v%d, 3, v%d', t1, t1, m_)
    A('v_lshlrev_b32 v%d, 4, v%d', t1, t1)
    A('v_lshl_add_u32 v%d, v%d, 2, v%d', t1, t0, t1)
    A('v_cndmask_b32 v%d, v%d, v%d, vcc', t1, oob, t1)
    A('s_lshr_b32 s%d, s%d, 1', sA, sJJ)
    A('s_lshl_b32 s%d, s%d, 8', sA, sA)
    A('s_and_b32 s%d, s%d, 1', sB, sJJ)
    A('s_lshl_b32 s%d, s%d, 3', sB, sB)
    A('s_add_u32 s%d, s%d, s%d', sA, sA, sB)
    A('s_add_u32 s%d, s%d, 4096', sA, sA)
    A('v_add_u32 v%d, s%d, v%d', vPM, sA, t1)
    A('s_cmp_eq_u32 s%d, 0', sW)
    A('s_cselect_b64 vcc, -1, 0')
    A('v_cndmask_b32 v%d, v%d, v%d, vcc', vPX, oob, vPX)
    A('v_cndmask_b32 v%d, v%d, v%d, vcc', vPM, oob, vPM)
    A('s_lshl_b32 s%d, s%d, 3', sA, sW)
    A('v_add_u32 v%d, s%d, v%d', t0, sA, m_)
    A('v_lshlrev_b32 v%d, 4, v%d', t1, u_)
    A('v_lshl_add_u32 v%d, v%d, 2, v%d', t1, g_, t1)
    A('v_sub_u32 v%d, v%d, v%d', t0, t0, t1)
    for i in range(4):
        A('v_cmp_le_i32 s[%d:%d], %d, v%d', sMK[i], sMK[i] + 1, i, t0)
    A('s_lshl_b32 s%d, s%d, 7', sA, sHEAD)
    A('s_lshl_b32 s%d, s%d, 2', sB, sW)
    A('s_add_u32 s%d, s%d, s%d', sA, sA, sB)
    A('s_add_u32 s%d, s%d, %d', sA, sA, FL_P1)
    A('v_lshl_add_u32 v%d, v%d, 12, s%d', vFA, u_, sA)
    A('v_mov_b32 v%d, 0', vFL)
    A('v_lshl_add_u32 v%d, v%d, 4, v%d', t0, g_, m_)
    A('v_lshlrev_b32 v%d, 4, v%d', t0, t0)
    A('v_lshl_add_u32 v%d, v%d, 3, v%d', t0, u_, t0)
    A('s_lshr_b32 s%d, s%d, 1', sA, sW)
    A('s_lshl_b32 s%d, s%d, 10', sA, sA)
    A('s_and_b32 s%d, s%d, 1', sB, sW)
    A('s_lshl_b32 s%d, s%d, 7', sB, sB)
    A('s_add_u32 s%d, s%d, s%d', sA, sA, sB)
    A('v_add_u32 v%d, s%d, v%d', vXX, sA, t0)
    A('s_mov_b32 s%d, 0x%x', sCS, SCALE_LOG2E)
    dl_stamp(3, TT)
    wait_init(TT, par=True)
    stamp(2)
    mem_bases(sLB)
    A('s_mul_i32 s%d, s%d, %d', sQC, sHEAD, 64 * 12288)
    A('s_mul_i32 s%d, s%d, 3072', sA, sW)
    A('s_add_u32 s%d, s%d, s%d', sQC, sQC, sA)
    A('s_add_u32 s%d, s%d, %d', sKN, sQC, KX)
    A('s_add_u32 s%d, s%d, %d', sQC, sQC, QX)
    A('s_mul_i32 s%d, s%d, 2560', sX0, sHEAD)
    A('s_add_u32 s%d, s%d, %d', sX0, sX0, PXR)
    A('s_add_u32 s%d, s%d, %d', sX1, sX0, 32 * 2560)
    A('s_add_u32 s%d, s%d, %d', sX2, sX0, 64 * 2560)
    A('s_mov_b32 s%d, 0', sSEG)
    A('s_mov_b32 s%d, 1', sNEED)
    gate(vFL, vFA, '0', sNEED)

    def kq_loads():
        for i in range(3):
            A('buffer_load_dwordx4 %s, v%d, %s, s%d offen offset:%d sc1%s', v(KC + 4 * i, 4), vL16, WS, sKN, 1024 * i, ntc(4))
        for i in range(3):
            A('buffer_load_dwordx4 %s, v%d, %s, s%d offen offset:%d sc1%s', v(QR + 4 * i, 4), vL16, WS, sQC, 1024 * i, ntc(4))
        if not OPT.get('fixqk'):
            A('s_add_u32 s%d, s%d, 12288', sKN, sKN)
            A('s_add_u32 s%d, s%d, 12288', sQC, sQC)
    kq_loads()
    A('s_cmp_lg_u32 s%d, 0', sMODE)
    A('s_cbranch_scc1 L_RQ_slow')

    def xtag(sc):
        A('v_mov_b32 v%d, s%d', SPARE, sSEG)
        A('s_mov_b64 exec, 1')
        A('buffer_store_dword v%d, off, %s, s%d%s', SPARE, WS, sXT, sc)
        A('s_mov_b64 exec, -1')

    def loop(tag, sc):
        S = Stream(A)
        A.label('L_RQ_%s' % tag)
        for li in range(NB):
            for ln in w_reads(li, STG, NB, vWL):
                S(ln)
        for i in range(24):
            A('v_mov_b32 v%d, 0', ACC + i)
        mem_slot(sG1, sLB, 0)
        ts(0)
        ts(1)
        retry = arrival('q', sG1, AR, vCH, AR + 36)
        ts(2)
        ts(9)
        fill = {}
        S('ds_write_b128 v%d, %s offset:%d', vCH, v(AR, 4), MEM)
        fill[0] = ['ds_write_b128 v%d, %s offset:%d' % (vCH, v(AR + 4, 4), MEM + 1024)]
        fill[1] = ['ds_write_b128 v%d, %s offset:%d' % (vCH, v(AR + 8, 4), MEM + 2048)]
        fill.setdefault(8, []).extend(['@ww', 's_barrier'])
        spread(fill, 9, [a_read(i, AR, vR) for i in range(3, 10)])
        fill.setdefault(50, []).insert(0, 's_waitcnt vmcnt(0)')
        accr = lambda t: ACC + 8 * (t % 3) + 4 * (t // 3)

        def post(p):
            a = ACC + 8 * p
            ops = ['v_cvt_pk_bf16_f32 v%d, v%d, v%d' % (a + i, a + 2 * i, a + 2 * i + 1) for i in range(4)]
            mf = 'v_mfma_f32_16x16x32_bf16 %s, %s, %s, 0' % (v(a + 4, 4), v(a, 4), v(SEL, 4))
            fin = ['v_cvt_pk_bf16_f32 v%d, v%d, v%d' % (Y + 2 * p + i, a + 4 + 2 * i, a + 5 + 2 * i) for i in range(2)]
            return ops, mf, fin
        for p in range(2):
            ops, mf, fin = post(p)
            spread(fill, 18 + 14 * (p + 1) + 6, ops)
        if OPT.get('trace'):
            for i, gp in enumerate(OPT.get('sq', '9,18,40').split(',')):
                fill.setdefault(int(gp), []).insert(0, tstamp(3 + i))
        run_stream(S, seq, lambda key, b: 'v_smfmac_f32_16x16x64_bf16 %s, %s, %s, v%d' % (v(accr(key[0]), 4), v(AR + 4 * key[1], 4), b, vIDX),
                   loc, NL, STG, NB, vWL, fill)
        assert max(fill) < 60, max(fill)
        ts(6)
        _, mf0, fin0 = post(0)
        _, mf1, fin1 = post(1)
        ops2, mf2, fin2 = post(2)
        A(mf0)
        A(mf1)
        for ln in ops2:
            A(ln)
        for ln in fin0:
            A(ln)
        A(mf2)
        for ln in fin1:
            A(ln)
        A('v_mfma_f32_16x16x32_bf16 %s, %s, %s, 0', v(SM, 4), v(Y, 4), v(Y, 4))
        A('v_mfma_f32_16x16x32_bf16 %s, %s, %s, 0', v(SX, 4), v(KC, 4), v(Y, 4))
        A('v_mfma_f32_16x16x32_bf16 %s, %s, %s, 0', v(SX + 4, 4), v(KC + 4, 4), v(Y, 4))
        for ln in fin2:
            A(ln)
        A('v_mfma_f32_16x16x16_bf16 %s, %s, %s, %s', v(SX, 4), v(KC + 8, 2), v(Y + 4, 2), v(SX, 4))
        A('v_mfma_f32_16x16x16_bf16 %s, %s, %s, %s', v(SX + 4, 4), v(KC + 10, 2), v(Y + 4, 2), v(SX + 4, 4))
        A('v_mfma_f32_16x16x16_bf16 %s, %s, %s, %s', v(SM, 4), v(Y + 4, 2), v(Y + 4, 2), v(SM, 4))
        dpp = 'v_mov_b32_dpp v%d, v%d row_ror:8 row_mask:0xf bank_mask:0xc'
        A(dpp, SX + 2, SX)
        A(dpp, SX + 3, SX + 1)
        A(dpp, SX + 4, SX + 6)
        A(dpp, SX + 5, SX + 7)
        A('ds_write_b128 v%d, %s', vEXW, v(SX + 2, 4))
        A(dpp, SM, SM + 2)
        A(dpp, SM + 1, SM + 3)
        A('ds_write_b64 v%d, %s', vMW, v(SM, 2))
        A('s_cmp_lg_u32 s%d, 0', sW)
        A('s_waitcnt lgkmcnt(0)')
        A('s_barrier')
        skip = A.newlabel('Lqs')
        A('s_cbranch_scc1 %s', skip)

        def gather(vq, offq, strq, vm_, offm, strm):
            for w in range(4):
                A('ds_read_b128 %s, v%d offset:%d', v(ACC + 4 * w, 4), vq, offq + strq * w)
            for h in range(2):
                A('ds_read2st64_b32 %s, v%d offset0:%d offset1:%d', v(ACC + 16 + 2 * h, 2), vm_,
                  (offm + strm * 2 * h) // 256, (offm + strm * (2 * h + 1)) // 256)
            A('s_waitcnt lgkmcnt(4)')
            for i in (0, 2):
                A('v_pk_add_f32 %s, %s, %s', v(ACC + i, 2), v(ACC + i, 2), v(ACC + 4 + i, 2))
            A('s_waitcnt lgkmcnt(2)')
            for i in (0, 2):
                A('v_pk_add_f32 %s, %s, %s', v(ACC + 8 + i, 2), v(ACC + 8 + i, 2), v(ACC + 12 + i, 2))
            A('s_waitcnt lgkmcnt(0)')
            A('v_pk_add_f32 %s, %s, %s', v(ACC + 16, 2), v(ACC + 16, 2), v(ACC + 18, 2))
            for i in (0, 2):
                A('v_pk_add_f32 %s, %s, %s', v(ACC + i, 2), v(ACC + i, 2), v(ACC + 8 + i, 2))
            A('v_add_f32 v%d, v%d, v%d', ACC + 16, ACC + 16, ACC + 17)
        gather(vEXR, EX, 1024, vL4, EXM, 512)
        last = softmax8(ACC, ACC + 16, ACC + 18, sCS, ACC, ACC + 16)
        A('buffer_store_dwordx2 %s, v%d, %s, s%d offen%s', v(ACC, 2), vPX, WS, sP0, sc)
        A(last)
        A('buffer_store_dword v%d, v%d, %s, s%d offen%s', ACC + 16, vPM, WS, sP0, sc)
        ts(7)
        A('v_mov_b32 v%d, -1', ACC + 2)
        A('v_mov_b32 v%d, -1', ACC + 3)
        A('buffer_store_dwordx2 %s, v%d, %s, s%d offen%s', v(ACC + 2, 2), vPX, WS, sP2, sc)
        A('buffer_store_dword v%d, v%d, %s, s%d offen%s', ACC + 2, vPM, WS, sP2, sc)
        A.label(skip)
        if OPT.get('trace'):
            K = A.newlabel('Lqk')
            A('s_cbranch_scc0 %s', K)
            ts(7)
            A.label(K)
        tiles = [(Y, Y + 4, 0), (Y, Y + 4, 1), (KC, KC + 8, 0), (KC, KC + 8, 1), (KC + 4, KC + 10, 1)]
        for i, (k4, k2, qt) in enumerate(tiles):
            A('v_mfma_f32_16x16x32_bf16 %s, %s, %s, 0', v(XS_ + 4 * i, 4), v(k4, 4), v(QR + 4 * qt, 4))
        r_, g2, x0, x1, mw = range(TT, TT + 5)
        A('s_mul_i32 s%d, s%d, 6144', sA, sW)
        A('v_bfe_u32 v%d, v%d, 4, 4', r_, vL16)
        A('v_lshrrev_b32 v%d, 8, v%d', g2, vL16)
        A('v_lshl_add_u32 v%d, v%d, 1, v%d', x0, g2, r_)
        A('v_add_u32 v%d, 1, v%d', x1, x0)
        for i, (k4, k2, qt) in enumerate(tiles):
            A('v_mfma_f32_16x16x16_bf16 %s, %s, %s, %s', v(XS_ + 4 * i, 4), v(k2, 2), v(QR + 8 + 2 * qt, 2), v(XS_ + 4 * i, 4))
        for x in (x0, x1):
            A('v_and_b32 v%d, 7, v%d', x, x)
            A('v_lshl_add_u32 v%d, v%d, 3, v%d', x, r_, x)
            A('v_lshl_add_u32 v%d, v%d, 4, s%d', x, x, sA)
        A('v_and_b32 v%d, 1, v%d', mw, g2)
        A('v_lshl_add_u32 v%d, v%d, 1, v%d', mw, r_, mw)
        A('v_lshl_add_u32 v%d, v%d, 4, s%d', mw, mw, sA)
        A('v_lshrrev_b32 v%d, 1, v%d', g2, g2)
        A('v_xor_b32 v%d, 1, v%d', g2, g2)
        A('v_lshl_add_u32 v%d, v%d, 9, v%d', mw, g2, mw)
        for i, (ad, off) in enumerate(((mw, 2048), (mw, 3072 + 2048), (x0, 0), (x0, 3072), (x1, 3072))):
            A('ds_write_b128 v%d, %s offset:%d', ad, v(XS_ + 4 * i, 4), EXX + off)
        A('s_lshr_b32 s%d, s%d, 1', sA, sW)
        A('s_mul_i32 s%d, s%d, 3072', sA, sA)
        A('s_and_b32 s%d, s%d, 1', sB, sW)
        A('s_lshl_b32 s%d, s%d, 8', sB, sB)
        A('s_add_u32 s%d, s%d, s%d', sC, sA, sB)
        A('v_add_u32 v%d, s%d, v%d', r_, sC, vL4)
        A('s_lshl_b32 s%d, s%d, 2', sB, sB)
        A('s_add_u32 s%d, s%d, s%d', sC, sA, sB)
        A('v_add_u32 v%d, s%d, v%d', g2, sC, vEXR)
        A('v_mov_b32 v%d, 0x%x', TT + 5, NEG_MASK)
        A('s_waitcnt lgkmcnt(0)')
        A('s_barrier')
        A('s_add_u32 s%d, s%d, 2', sNEED, sSEG)
        A('s_min_u32 s%d, s%d, 64', sNEED, sNEED)
        gate(vFL, vFA, '0', sNEED)
        kq_loads()
        gather(g2, EXX, 6144, r_, EXX + 2048, 6144)
        for i in range(4):
            A('v_cndmask_b32 v%d, v%d, v%d, s[%d:%d]', ACC + i, TT + 5, ACC + i, sMK[i], sMK[i] + 1)
        last = softmax8(ACC, ACC + 16, ACC + 18, sCS, ACC, ACC + 16)
        A('buffer_store_dwordx2 %s, v%d, %s, s%d offen%s', v(ACC, 2), vXX, WS, sX0, sc)
        A(last)
        A('buffer_store_dword v%d, v%d, %s, s%d offen%s', ACC + 16, vXS, WS, sX0, sc)
        rot3(sP0, sP1, sP2)
        rot3(sX0, sX1, sX2)
        ts(8)
        trace_dump(TT)
        A('s_add_u32 s%d, s%d, 1', sSEG, sSEG)
        A('s_cmp_lt_u32 s%d, 64', sSEG)
        A('s_cbranch_scc1 L_RQ_%s', tag)
        A('s_waitcnt vmcnt(0)')
        xtag(sc)
        A('s_branch L_RQ_fin')
        retry()

    loop('fast', '')
    loop('slow', ' sc1')
    A.label('L_RQ_fin')
    finish_role(3)
```

```python
from asmlib import v, a_, s, Stream
from layout import *


def emit():
    A.label('L_RV')
    if role_off('RV'):
        return
    lane = 1
    NL, NB = 15, 3
    MEM, VM, WL = 0, 10240, 16384
    assert WL + 4 * NL * 2048 <= 163840
    vCH, vHA, vI, vR = 0, 1, 2, 4
    vIDX, vL16, vWL, vVMW, vVMR, vZST = range(7, 13)
    vZS4, SEL = 15, 124
    NEG, ACC1, ACC2, AR, A2, STG, VW = 16, 20, 32, 72, 112, 128, 152
    TT = A2
    acc2 = lambda T: ACC2 + 4 * T
    sLB, sG1, sG2, sZ0, sZ1, sW25, sFLG, sHN = s0_, s1_, s2_, s3_, s4_, s5_, s6_, s7_
    sZ2, sVOP, sBL, sEX = 78, 79, 69, 40
    vPF = 2
    seq = [('v', t, i) for i in range(3) for t in range(3)]
    seq += [('v', t, i) for t in range(3) for i in range(3, 10)]
    seq += [('o', T, 0) for T in range(10)]
    seq += [('o', T, 1) for T in range(10)] + [('o', T, 2) for T in range(10)]
    loc = plan(seq, NL, VW)

    srd(16, pWV, 640 * 6144 * 2)
    srd(20, pWO, 640 * 6144 * 2)
    A('s_lshl_b32 s%d, s%d, 2', sA, sHEAD)
    A('s_add_u32 s%d, s%d, s%d', sA, sA, sW)
    A('s_cmp_eq_u32 s%d, 3', sA)
    A('s_cselect_b32 s%d, %d, 0', sFLG, OOB - D_PROG)
    A('s_sub_u32 s%d, 0x%x, s%d', sFLG, OOB, sFLG)
    bell_addr(sBL)
    A('s_mul_i32 s%d, s%d, 10240', sZ0, sHEAD)
    A('s_add_u32 s%d, s%d, %d', sZ0, sZ0, ZL)
    A('s_add_u32 s%d, s%d, %d', sZ1, sZ0, 32 * 10240)
    A('s_add_u32 s%d, s%d, %d', sZ2, sZ0, 64 * 10240)
    for i in range(4):
        A('v_mov_b32 v%d, -1', 4 + i)
    A('v_lshlrev_b32 v8, 4, v%d', lane)
    A('s_mul_i32 s%d, s%d, 2560', sW25, sW)
    for z in (sZ0, sZ1):
        A('s_add_u32 s%d, s%d, s%d', sA, sW25, z)
        for off in (0, 1024, 1536):
            A('buffer_store_dwordx4 v[4:7], v8, %s, s%d offen offset:%d sc1', WS, sA, off)
    A('s_mov_b32 s%d, 12288', sLB)
    A('s_mul_i32 s%d, s%d, 384', sG1, sHEAD)
    A('s_mul_i32 s%d, s%d, %d', sG2, sHEAD, 192 * 1280)
    st1 = stages_n192(WA, sLB, sG1, lambda w, st, kkl, j, t: wpair(loc, ('v', t, (st - COFF[w]) % 10), 2 * kkl + j), lane)
    st2 = stages_k192(WB, sG2, lambda E, T: wpair(loc, ('o', T, E % 3), E // 3), lane)
    if OPT.get('rev', 1):
        st1 = st1[::-1]
    run_stages(st1 + st2, first_hook=lambda: arrive_init(2), wsel=True)
    A('s_mul_i32 s%d, s%d, %d', sA, sW, NL * 2048)
    A('v_lshlrev_b32 v%d, 4, v%d', vWL, lane)
    A('s_add_u32 s%d, s%d, %d', sA, sA, WL)
    A('v_add_u32 v%d, s%d, v%d', vWL, sA, vWL)
    park_to_lds(NL, vWL)
    stamp(1)
    common_consts(lane, vCH, vR, vIDX, TT, vL16)
    r_, g_, g0, g1, t0, t1 = range(TT, TT + 6)
    A('v_and_b32 v%d, 15, v%d', r_, lane)
    A('v_lshrrev_b32 v%d, 4, v%d', g_, lane)
    A('v_and_b32 v%d, 1, v%d', g0, g_)
    A('v_lshrrev_b32 v%d, 1, v%d', g1, g_)
    A('v_lshrrev_b32 v%d, 2, v%d', t0, r_)
    A('v_and_b32 v%d, 3, v%d', t1, r_)
    A('v_lshl_add_u32 v%d, v%d, 3, v%d', t0, t0, t1)
    A('v_lshlrev_b32 v%d, 4, v%d', vVMW, t0)
    A('v_lshl_add_u32 v%d, v%d, 3, v%d', vVMW, g0, vVMW)
    A('v_lshl_add_u32 v%d, v%d, 2, v%d', vVMW, g1, vVMW)
    A('s_lshr_b32 s%d, s%d, 1', sA, sW)
    A('s_lshl_b32 s%d, s%d, 9', sA, sA)
    A('s_and_b32 s%d, s%d, 1', sB, sW)
    A('s_lshl_b32 s%d, s%d, 6', sB, sB)
    A('s_add_u32 s%d, s%d, s%d', sA, sA, sB)
    A('s_add_u32 s%d, s%d, %d', sA, sA, VM)
    A('v_add_u32 v%d, s%d, v%d', vVMW, sA, vVMW)
    A('v_lshlrev_b32 v%d, 8, v%d', vVMR, g_)
    A('v_bfe_u32 v%d, v%d, 3, 1', t0, lane)
    A('v_lshl_add_u32 v%d, v%d, 6, v%d', vVMR, t0, vVMR)
    A('v_bfe_u32 v%d, v%d, 2, 1', t0, lane)
    A('v_lshl_add_u32 v%d, v%d, 4, v%d', vVMR, t0, vVMR)
    A('v_bfe_u32 v%d, v%d, 1, 1', t0, lane)
    A('v_lshl_add_u32 v%d, v%d, 5, v%d', vVMR, t0, vVMR)
    A('v_and_b32 v%d, 1, v%d', t0, lane)
    A('v_lshl_add_u32 v%d, v%d, 3, v%d', vVMR, t0, vVMR)
    A('v_add_u32 v%d, %d, v%d', vVMR, VM, vVMR)
    A('v_lshlrev_b32 v%d, 4, v%d', t1, r_)
    A('v_lshl_add_u32 v%d, v%d, 8, v%d', vZST, g1, t1)
    A('v_lshl_add_u32 v%d, v%d, 3, v%d', vZST, g0, vZST)
    A('v_add_u32 v%d, s%d, v%d', vZST, sW25, vZST)
    A('v_lshl_add_u32 v%d, v%d, 1, v%d', t0, g0, g1)
    A('v_lshl_add_u32 v%d, v%d, 8, v%d', vZS4, t0, t1)
    A('v_add_u32 v%d, s%d, v%d', vZS4, sW25, vZS4)
    fold_matrix(lane, SEL, t0, t1)
    for i in range(4):
        A('v_mov_b32 v%d, -1', NEG + i)
    A('v_mov_b32 v14, s%d', sFLG)
    A('v_min_u32 v%d, 39, v%d', vPF, lane)
    A('v_lshlrev_b32 v%d, 7, v%d', vPF, vPF)
    A('s_mul_i32 s%d, s%d, 40960', sVOP, sHEAD)
    A('s_lshl_b32 s%d, s%d, 2', sA, sW25)
    A('s_add_u32 s%d, s%d, s%d', sVOP, sVOP, sA)
    A('s_add_u32 s%d, s%d, %d', sVOP, sVOP, VO + 40 * 40960)
    dl_stamp(3, TT)
    wait_init(TT, par=True)
    stamp(2)
    mem_bases(sLB)
    A('s_cmp_eq_u32 s%d, 0', sW)
    A('s_cselect_b64 s[%d:%d], 1, 0', sEX, sEX + 1)
    A('s_mov_b32 s%d, 0', sSEG)
    A('s_cmp_lg_u32 s%d, 0', sMODE)
    A('s_cbranch_scc1 L_RV_slow')
    TT = AR + 36

    def loop(tag, sc):
        S = Stream(A)
        A.label('L_RV_%s' % tag)
        for li in range(NB):
            for ln in w_reads(li, STG, NB, vWL):
                S(ln)
        for i in range(52):
            A('v_mov_b32 v%d, 0', ACC1 + i)
        A('s_add_u32 s%d, s%d, 1', sA, sSEG)
        A('v_mov_b32 v1, s%d', sA)
        if OPT.get('rvsl', 8):
            A('s_sleep %d', OPT.get('rvsl', 8))
        mem_slot(sG1, sLB, 0)
        ts(0)
        ts(1)
        retry = arrival('v', sG1, AR, vCH, TT)
        ts(2)
        ts(9)
        fill = {}
        S('ds_write_b128 v%d, %s offset:%d', vCH, v(AR, 4), MEM)
        fill[0] = ['ds_write_b128 v%d, %s offset:%d' % (vCH, v(AR + 4, 4), MEM + 1024)]
        fill[1] = ['ds_write_b128 v%d, %s offset:%d' % (vCH, v(AR + 8, 4), MEM + 2048)]
        b1 = OPT.get('vb1', 5)
        fill.setdefault(b1, []).extend(['@ww', 's_barrier'])
        rd = [a_read(i, AR, vR) for i in range(3, 10)]
        spread(fill, b1, rd, per=-(-7 // max(1, 8 - b1)))

        bell = ['s_mov_b64 exec, s[%d:%d]' % (sEX, sEX + 1), 'buffer_store_dword v1, off, %s, s%d%s' % (WS, sBL, sc), 's_mov_b64 exec, -1']
        zb = OPT.get('zb', 50)
        if not OPT.get('bell'):
            bell = []
        if zb < 60:
            fill.setdefault(zb, []).extend(bell)
        fill.setdefault(48, []).insert(0, 's_waitcnt vmcnt(0)')
        pf = OPT.get('pf', 0)
        tch = [['buffer_load_dword v%d, v%d, %s, s%d offen' % (vPF + 1, vPF, WS, sVOP)],
               ['s_add_u32 s%d, s%d, 5120' % (sA, sVOP), 'buffer_load_dword v%d, v%d, %s, s%d offen' % (vPF + 1, vPF, WS, sA)]]
        if pf == 1:
            fill.setdefault(10, []).extend(tch.pop(0))

        def post1(j):
            a = ACC1 + 4 * j
            return ['v_permlane32_swap_b32 v%d, v%d' % (a, a + 2), 'v_permlane32_swap_b32 v%d, v%d' % (a + 1, a + 3),
                    'v_add_f32 v%d, v%d, v%d' % (a, a, a + 2), 'v_add_f32 v%d, v%d, v%d' % (a + 1, a + 1, a + 3),
                    'v_cvt_pk_bf16_f32 v%d, v%d, v%d' % (a, a, a + 1)]
        for j in range(3):
            e = spread(fill, (17, 25, 32)[j], post1(j), per=2 if j == 0 else 1)
            fill.setdefault(e, []).insert(0, 'ds_write_b32 v%d, v%d offset:%d' % (vVMW, ACC1 + 4 * j, 1024 * j))
            bb = (24, 35, 43)[j]
            fill.setdefault(bb, [])[0:0] = ['@ww', 's_barrier', 'ds_read_b64_tr_b16 %s, v%d offset:%d' % (v(A2 + 4 * j, 2), vVMR, 1024 * j)]
            fill.setdefault(bb + 1, []).insert(0, 'ds_read_b64_tr_b16 %s, v%d offset:%d' % (v(A2 + 4 * j + 2, 2), vVMR, 1024 * j + 128))

        OUTR = AR
        cv1 = lambda p: ['v_cvt_pk_bf16_f32 v%d, v%d, v%d' % (acc2(2 * p) + i, acc2(2 * p) + 2 * i, acc2(2 * p) + 2 * i + 1) for i in range(4)]
        mf = lambda p: 'v_mfma_f32_16x16x32_bf16 %s, %s, %s, 0' % (v(acc2(2 * p) + 4, 4), v(SEL, 4), v(acc2(2 * p), 4))
        cv2 = lambda p: ['v_cvt_pk_bf16_f32 v%d, v%d, v%d' % (OUTR + 2 * p + i, acc2(2 * p) + 4 + 2 * i, acc2(2 * p) + 5 + 2 * i) for i in range(2)]
        st4 = lambda q: ['v_permlane16_swap_b32 v%d, v%d' % (OUTR + 4 * q, OUTR + 4 * q + 2), 'v_permlane16_swap_b32 v%d, v%d' % (OUTR + 4 * q + 1, OUTR + 4 * q + 3),
                         'buffer_store_dwordx4 %s, v%d, %s, s%d offen offset:%d%s' % (v(OUTR + 4 * q, 4), vZS4, WS, sZ0, 1024 * q, sc)]
        spread(fill, 53, cv1(0) + cv1(1)[:3])
        tail = [mf(0)] + cv1(1)[3:] + cv1(2)[:2] + [mf(1)] + cv1(2)[2:] + cv1(3)[:2] + [mf(2)] + cv1(3)[2:] + cv2(0) + [mf(3)] + cv1(4) + cv2(1) + [mf(4)]
        tail += st4(0) + cv2(2) + cv2(3) + st4(1) + cv2(4)
        tail += ['buffer_store_dwordx2 %s, v%d, %s, s%d offen offset:2048%s' % (v(OUTR + 8, 2), vZST, WS, sZ0, sc)]

        def mk(key, b):
            if key[0] == 'v':
                return 'v_smfmac_f32_16x16x64_bf16 %s, %s, %s, v%d' % (v(ACC1 + 4 * key[1], 4), v(AR + 4 * key[2], 4), b, vIDX)
            return 'v_smfmac_f32_16x16x64_bf16 %s, %s, %s, v%d' % (v(acc2(key[1]), 4), v(A2 + 4 * key[2], 4), b, vIDX)
        if OPT.get('trace'):
            for i, gp in enumerate(OPT.get('sv', '9,22,30,41').split(',')):
                fill.setdefault(int(gp), []).insert(0, tstamp(3 + i))
        run_stream(S, seq, mk, loc, NL, STG, NB, vWL, fill)
        assert max(fill) < 60, max(fill)
        ts(7)
        if zb >= 60:
            tail[zb - 60:zb - 60] = bell
        for ln in tail:
            S(ln)
        if OPT.get('cst') == 3:
            ts(7)
            A('s_waitcnt vmcnt(0)')
        ts(8)
        A('s_barrier')
        if pf:
            for op in tch:
                for ln in op:
                    A(ln)
        A('s_add_u32 s%d, s%d, %d', sVOP, sVOP, 40 * 40960)
        A('s_add_u32 s%d, s%d, s%d', sA, sZ2, sW25)
        for off in (0, 1024, 1536):
            A('buffer_store_dwordx4 %s, v%d, %s, s%d offen offset:%d%s', v(NEG, 4), vL16, WS, sA, off, sc)
        A('s_max_u32 s%d, s%d, 3', sA, sSEG)
        A('s_sub_u32 s%d, s%d, 3', sA, sA)
        A('v_mov_b32 v13, s%d', sA)
        A('s_mov_b64 exec, 1')
        A('buffer_atomic_umax v13, v14, %s, 0 offen', DBG)
        A('s_mov_b64 exec, -1')
        rot3(sZ0, sZ1, sZ2)
        trace_dump(TT)
        light_stamp(TT)
        if OPT.get('dl'):
            for wd, st_ in ((4, 0), (5, 3)):
                K = A.newlabel('Ldl')
                A('s_cmp_lg_u32 s%d, %d', sSEG, st_)
                A('s_cbranch_scc1 %s', K)
                dl_stamp(wd, TT)
                A.label(K)
        A('s_add_u32 s%d, s%d, 1', sSEG, sSEG)
        A('s_cmp_lt_u32 s%d, 64', sSEG)
        A('s_cbranch_scc1 L_RV_%s', tag)
        A('s_branch L_RV_fin')
        retry()

    loop('fast', '')
    loop('slow', ' sc1')
    A.label('L_RV_fin')
    finish_role(4)
```

```python
from asmlib import v, a_, s, Stream
from layout import *

OOB = 0x70000000
SCALE_LOG2E = 0x3dd53b95
import struct
assert abs(struct.unpack('<f', struct.pack('<I', SCALE_LOG2E))[0] - 192 ** -0.5 * 1.4426950408889634) < 1e-8
NEG_MASK = struct.unpack('<I', struct.pack('<f', -1e9 * 192 ** 0.5))[0]
NEG_BIG = 0xff7fffff


def plan(seq, n_lds, vbase, first=10):
    pos = [first + int(i * (len(seq) - 1 - first) / (n_lds - 1) + 0.5) for i in range(n_lds)]
    assert len(set(pos)) == n_lds
    loc = {}
    na = nv = 0
    for n, key in enumerate(seq):
        if n in pos:
            loc[key] = ('l', pos.index(n))
        elif na < 32:
            loc[key] = ('a', 8 * na); na += 1
        else:
            loc[key] = ('v', vbase + 8 * nv); nv += 1
    assert vbase + 8 * nv == 256, (vbase, nv)
    return loc


TMPW = 24


def wpair(loc, key, half):
    kind, b = loc[key]
    if kind == 'a':
        return a_(b + 2 * half, 2)
    if kind == 'v':
        return v(b + 2 * half, 2)
    return v(TMPW + 8 * b + 2 * half, 2)


def park_to_lds(n_lds, vWL):
    A('s_barrier')
    for i in range(n_lds):
        A('ds_write_b128 v%d, %s offset:%d', vWL, v(TMPW + 8 * i, 4), 2048 * i)
        A('ds_write_b128 v%d, %s offset:%d', vWL, v(TMPW + 8 * i + 4, 4), 2048 * i + 1024)
    A('s_waitcnt lgkmcnt(0)')


def common_consts(lane, vCH, vR, vIDX, vI, vL16):
    A('s_mul_i32 s%d, s%d, 5', sA, sW)
    A('s_lshr_b32 s%d, s%d, 1', sA, sA)
    A('v_lshlrev_b32 v%d, 4, v%d', vL16, lane)
    A('s_lshl_b32 s%d, s%d, 10', sB, sA)
    A('v_add_u32 v%d, s%d, v%d', vCH, sB, vL16)
    for i, d in enumerate((3, 5, 8)):
        A('s_add_u32 s%d, s%d, %d', sB, sA, d)
        A('s_cmp_ge_u32 s%d, 10', sB)
        A('s_cselect_b32 s%d, 10, 0', sC)
        A('s_sub_u32 s%d, s%d, s%d', sB, sB, sC)
        A('s_lshl_b32 s%d, s%d, 10', sB, sB)
        A('v_add_u32 v%d, s%d, v%d', vR + i, sB, vL16)
    A('v_and_b32 v%d, 8, v%d', vIDX, lane)
    A('v_cmp_eq_u32 vcc, 0, v%d', vIDX)
    A('v_mov_b32 v%d, 0xeeee', vIDX)
    A('v_mov_b32 v%d, 0x4444', vI)
    A('v_cndmask_b32 v%d, v%d, v%d, vcc', vIDX, vIDX, vI)


def identity(lane, vI, _):
    A('v_lshrrev_b32 v2, 4, v%d', lane)
    A('v_lshlrev_b32 v2, 2, v2')
    A('v_and_b32 v3, 15, v%d', lane)
    A('v_sub_u32 v2, v3, v2')
    for j in range(2):
        A('v_mov_b32 v%d, 0', vI + j)
        A('v_mov_b32 v3, 0x3f80')
        A('v_cmp_eq_u32 vcc, %d, v2', 2 * j)
        A('v_cndmask_b32 v%d, v%d, v3, vcc', vI + j, vI + j)
        A('v_mov_b32 v3, 0x3f800000')
        A('v_cmp_eq_u32 vcc, %d, v2', 2 * j + 1)
        A('v_cndmask_b32 v%d, v%d, v3, vcc', vI + j, vI + j)


def fold_matrix(lane, dst, t0, t1):
    A('v_bfe_u32 v%d, v%d, 4, 1', t0, lane)
    A('v_lshlrev_b32 v%d, 2, v%d', t0, t0)
    A('v_and_b32 v%d, 15, v%d', t1, lane)
    A('v_sub_u32 v%d, v%d, v%d', t0, t1, t0)
    for j in range(4):
        base = (0, 2, 8, 10)[j]
        A('v_mov_b32 v%d, 0', dst + j)
        A('v_mov_b32 v%d, 0x3f80', t1)
        A('v_cmp_eq_u32 vcc, %d, v%d', base, t0)
        A('v_cndmask_b32 v%d, v%d, v%d, vcc', dst + j, dst + j, t1)
        A('v_mov_b32 v%d, 0x3f800000', t1)
        A('v_cmp_eq_u32 vcc, %d, v%d', base + 1, t0)
        A('v_cndmask_b32 v%d, v%d, v%d, vcc', dst + j, dst + j, t1)


def check_sentinel(regs, t):
    regs = list(regs)
    cur = regs.pop(0)
    while regs:
        a = regs.pop(0)
        b = regs.pop(0) if regs else a
        A('v_max3_u32 v%d, v%d, v%d, v%d', t, cur, a, b)
        cur = t
    A('v_cmp_eq_u32 vcc, -1, v%d', cur)


def a_read(i, Areg, vR):
    k = 0 if i < 5 else (1 if i < 8 else 2)
    return 'ds_read_b128 %s, v%d offset:%d' % (v(Areg + 4 * i, 4), vR + k, (i - (3, 5, 8)[k]) * 1024)


def w_reads(li, stg, nb, vWL):
    b = stg + 8 * (li % nb)
    return ['ds_read_b128 %s, v%d offset:%d' % (v(b, 4), vWL, 2048 * li),
            'ds_read_b128 %s, v%d offset:%d' % (v(b + 4, 4), vWL, 2048 * li + 1024)]


def wop(loc, key, stg, nb):
    kind, b = loc[key]
    if kind == 'a':
        return a_(b, 8)
    if kind == 'v':
        return v(b, 8)
    return v(stg + 8 * (b % nb), 8)


def masked_poll(loads, quads, t, smask, issued=0, depth=1, ngate=None, nowait=False):
    L, D, R = A.newlabel('Lmp'), A.newlabel('Lmpd'), A.newlabel('Lmpr')
    quads = [q if isinstance(q, list) else [q + i for i in range(4)] for q in quads]
    gate_regs = [r for q in quads[:ngate] for r in q]
    for r in range(depth if not issued else 0):
        if r:
            A('s_sleep %d', 2 if depth == 2 else 1)
        for ln in loads:
            A(ln)
    if nowait:
        check_sentinel(gate_regs, t)
        A('s_cbranch_vccnz %s', L)
    else:
        A.label(L)
        A('s_waitcnt vmcnt(%d)', len(loads) * (depth - 1))
        check_sentinel(gate_regs, t)
        A('s_cbranch_vccnz %s', R)
    A.label(D)

    def out():
        if nowait:
            A.label(L)
            A('s_waitcnt vmcnt(0)')
            check_sentinel(gate_regs, t)
            A('s_cbranch_vccz %s', D)
        A.label(R)
        for k, q in enumerate(quads):
            if len(q) == 4:
                A('v_max3_u32 v%d, v%d, v%d, v%d', t, q[0], q[1], q[2])
                A('v_max_u32 v%d, v%d, v%d', t, t, q[3])
            A('v_cmp_eq_u32 s[%d:%d], -1, v%d', smask + 2 * k, smask + 2 * k + 1, t if len(q) == 4 else q[0])
        for k, ln in enumerate(loads):
            A('s_mov_b64 exec, s[%d:%d]', smask + 2 * k, smask + 2 * k + 1)
            A(ln)
        A('s_mov_b64 exec, -1')
        A('s_sub_u32 s%d, s%d, 1', sBUD, sBUD)
        A('s_cbranch_scc0 %s', L)
        A('s_mov_b32 s%d, 0', sBUD)
        A('s_waitcnt vmcnt(0)')
        A('s_branch %s', D)
    return out


def arrival(tag, sL, AR, vCH, t):
    lds = ['buffer_load_dwordx4 %s, v%d, %s, s%d offen offset:%d sc1' % (v(AR + 4 * i, 4), vCH, WS, sL, 1024 * i) for i in range(3)]
    depth = OPT.get('ld', 2)
    if depth > 1:
        for i in range(12):
            A('v_mov_b32 v%d, -1', AR + i)
        A('s_waitcnt vmcnt(0)')
    return masked_poll(lds, [AR, AR + 4, AR + 8], t, 56, depth=depth)


def retry_later(L, D):
    R = A.newlabel('Lrt')
    A('s_cbranch_vccnz %s', R)
    A.label(D)

    def out():
        A.label(R)
        A('s_sub_u32 s%d, s%d, 1', sBUD, sBUD)
        A('s_cbranch_scc0 %s', L)
        A('s_mov_b32 s%d, 0', sBUD)
        A('s_branch %s', D)
    return out


def rot3(r0, r1, r2):
    A('s_mov_b32 s%d, s%d', sA, r0)
    A('s_mov_b32 s%d, s%d', r0, r1)
    A('s_mov_b32 s%d, s%d', r1, r2)
    A('s_mov_b32 s%d, s%d', r2, sA)


def bell_addr(dst):
    A('s_lshl_b32 s%d, s%d, 8', sA, sG)
    A('s_lshl_b32 s%d, s%d, 2', sB, sIDX)
    A('s_add_u32 s%d, s%d, s%d', sA, sA, sB)
    A('s_add_u32 s%d, s%d, %d', dst, sA, BELL)
    zero_flag(2, dst)


def mem_bases(sL0):
    A('s_bfe_u32 s%d, s%d, 0x10018', sA, sA)
    A('s_xor_b32 s%d, s%d, 1', sA, sA)
    A('s_lshl_b32 s%d, s%d, 13', sA, sA)
    A('s_lshl_b32 s%d, s%d, 15', sL0, sG)
    A('s_add_u32 s%d, s%d, s%d', sL0, sL0, sA)
    A('s_cmp_ge_u32 s%d, 2', sW)
    A('s_cselect_b32 s%d, %d, 0', sA, 16384 - 5120)
    A('s_add_u32 s%d, s%d, s%d', sL0, sL0, sA)
    A('s_add_u32 s%d, s%d, %d', sL0, sL0, MG)


def mem_slot(dst, sL0, d):
    A('s_add_u32 s%d, s%d, %d', sA, sSEG, d)
    A('s_and_b32 s%d, s%d, 3', sA, sA)
    A('s_lshl_b32 s%d, s%d, 17', sA, sA)
    A('s_add_u32 s%d, s%d, s%d', dst, sL0, sA)


def gate(vFL, vt, ssoff, sNEED, sleep=1, buf=None):
    L, D = A.newlabel('Lfg'), A.newlabel('Lfgd')
    A('v_cmp_gt_u32 vcc, s%d, v%d', sNEED, vFL)
    A('s_cbranch_vccz %s', D)
    A.label(L)
    A('buffer_load_dword v%d, v%d, %s, %s offen sc1', vFL, vt, buf or WS, ssoff)
    A('s_waitcnt vmcnt(0)')
    A('v_cmp_gt_u32 vcc, s%d, v%d', sNEED, vFL)
    A('s_cbranch_vccz %s', D)
    poll_tail(L, D, sleep=sleep)


def swap(x0, x1):
    A('s_mov_b32 s%d, s%d', sA, x0)
    A('s_mov_b32 s%d, s%d', x0, x1)
    A('s_mov_b32 s%d, s%d', x1, sA)


def ring4(sR):
    A('s_add_u32 s%d, s%d, 20480', sR, sR)
    A('s_cmp_eq_u32 s%d, %d', sR, 4 * 20480)
    A('s_cselect_b32 s%d, 0, s%d', sR, sR)


def softmax8(X, MM, t, sCS, out2, out1):
    def red(op, x):
        for ctl in ('quad_perm:[1,0,3,2]', 'quad_perm:[2,3,0,1]', 'row_half_mirror'):
            A('%s_dpp v%d, v%d, v%d %s row_mask:0xf bank_mask:0xf', op, x, x, x, ctl)
    MX, SU = t, t + 1
    A('v_max3_f32 v%d, v%d, v%d, v%d', MX, X, X + 1, MM)
    A('v_max3_f32 v%d, v%d, v%d, v%d', MX, X + 2, X + 3, MX)
    red('v_max_f32', MX)
    A('v_mul_f32 v%d, s%d, v%d', MX, sCS, MX)
    vals = [X, X + 1, X + 2, X + 3, MM]
    for r in vals:
        A('v_fma_f32 v%d, v%d, s%d, -v%d', r, r, sCS, MX)
    for r in vals:
        A('v_exp_f32 v%d, v%d', r, r)
    A('v_add_f32 v%d, v%d, v%d', SU, X, X + 1)
    A('v_add_f32 v%d, v%d, v%d', MX, X + 2, X + 3)
    A('v_add_f32 v%d, v%d, v%d', SU, SU, MM)
    A('v_add_f32 v%d, v%d, v%d', SU, SU, MX)
    red('v_add_f32', SU)
    A('v_rcp_f32 v%d, v%d', SU, SU)
    for r in [MM] + vals[:4]:
        A('v_mul_f32 v%d, v%d, v%d', r, r, SU)
    A('v_mov_b32_dpp v%d, v%d quad_perm:[1,0,3,2] row_mask:0xf bank_mask:0xf', MX, MM)
    A('v_cvt_pk_bf16_f32 v%d, v%d, v%d', out2, X, X + 1)
    A('v_cvt_pk_bf16_f32 v%d, v%d, v%d', out2 + 1, X + 2, X + 3)
    return 'v_cvt_pk_bf16_f32 v%d, v%d, v%d' % (out1, MM, MX)


def run_stream(S, seq, mk, loc, n_lds, stg, nb, vWL, fill):
    pend = []
    ins = [mk(key, wop(loc, key, stg, nb)) for key in seq]
    for n, key in enumerate(seq):
        S(ins[n])
        if n + 1 < len(seq):
            S.prewait(ins[n + 1])
        if loc[key][0] == 'l' and loc[key][1] + nb < n_lds:
            pend += w_reads(loc[key][1] + nb, stg, nb, vWL)
        lines = list(fill.get(n, []))
        if pend and (len(pend) > 2 or not any(l.startswith(('ds_', 'buffer_', 's_barrier')) for l in lines)):
            S(pend.pop(0))
        for ln in lines:
            S(ln)
    assert not pend


def spread(fill, start, ops, per=1):
    k = start
    for i, op in enumerate(ops):
        fill.setdefault(k, []).extend(op if isinstance(op, list) else [op])
        if (i + 1) % per == 0:
            k += 1
    return k + (1 if len(ops) % per else 0)


def emit(g):
    import role_rq, role_rv, role_c
    globals().update({k: g[k] for k in g if not k.startswith('__')})
    for m in (role_c, role_rq, role_rv):
        m.__dict__.update({k: x for k, x in globals().items() if not k.startswith('__') and k != 'emit'})
        m.emit()
```

```python
import sys
from asmlib import Asm, Stream, v, a_, s
from layout import *

OPT = dict(stamp=0, force_slow=0, roles='all', memdbg=0)
for arg in sys.argv[2:]:
    k, val = arg.split('=')
    OPT[k] = val if k in ('roles', 'sq', 'sv', 'qp', 'xc', 'xp') else int(val)

A = Asm()
sW, sT, sG, sMODE = 4, 5, 6, 7
WS, XS, WA, WB, OUT, DBG, MEM0 = 's[8:11]', 's[12:15]', 's[16:19]', 's[20:23]', 's[24:27]', 's[28:31]', 's[32:35]'
sBUD = 36
sA, sB, sC = 37, 38, 39
pX, pMEM0, pWQ, pWK, pWV, pWO, pW1, pW2, pOUT, pDBG, pWS = 40, 42, 44, 46, 48, 50, 56, 58, 60, 62, 64
sSEG, sIDX, sHEAD = 66, 67, 68
s0_, s1_, s2_, s3_, s4_, s5_, s6_, s7_ = range(70, 78)
BUDGET = 1 << 16
D_INIT = 36
D_FAIL = 44
D_LN2 = 40
D_FIN = 48
D_PROG = 132


def srd(base, ptr, nbytes):
    A('s_mov_b32 s%d, s%d', base, ptr)
    A('s_and_b32 s%d, s%d, 0xffff', base + 1, ptr + 1)
    A('s_mov_b32 s%d, 0x%x', base + 2, nbytes)
    A('s_mov_b32 s%d, 0x20000', base + 3)


def poll_tail(loop, done, sleep=0):
    if sleep:
        A('s_sleep %d', sleep)
    A('s_sub_u32 s%d, s%d, 1', sBUD, sBUD)
    A('s_cbranch_scc0 %s', loop)
    A('s_mov_b32 s%d, 0', sBUD)
    A.label(done)


def stamp(idx, vt=None):
    if OPT['stamp']:
        A('s_memrealtime s[%d:%d]', 80 + 2 * idx, 81 + 2 * idx)


def tstamp(idx):
    if OPT.get('trace'):
        return '%s s[%d:%d]' % ('s_memrealtime' if idx == 9 else 's_memtime', 80 + 2 * idx, 81 + 2 * idx)
    return None


def ts(idx):
    t = tstamp(idx)
    if t:
        A(t)


def trace_dump(vt):
    if not OPT.get('trace'):
        return
    A('s_waitcnt lgkmcnt(0)')
    for i in range(10):
        A('v_writelane_b32 v%d, s%d, %d', vt, 80 + 2 * i, i)
    A('v_mbcnt_lo_u32_b32 v%d, -1, 0', vt + 1)
    A('v_lshlrev_b32 v%d, 2, v%d', vt + 1, vt + 1)
    A('s_lshl_b32 s%d, s%d, 5', sA, sG)
    A('s_add_u32 s%d, s%d, s%d', sA, sA, sT)
    A('s_lshl_b32 s%d, s%d, 2', sA, sA)
    A('s_add_u32 s%d, s%d, s%d', sA, sA, sW)
    A('s_lshl_b32 s%d, s%d, 6', sA, sA)
    A('s_add_u32 s%d, s%d, s%d', sA, sA, sSEG)
    A('s_lshl_b32 s%d, s%d, 6', sA, sA)
    A('s_add_u32 s%d, s%d, %d', sA, sA, TRACE)
    A('s_mov_b64 exec, 0x3ff')
    A('buffer_store_dword v%d, v%d, %s, s%d offen', vt, vt + 1, WS, sA)
    A('s_mov_b64 exec, -1')


def dl_stamp(word, vt, absolute=False):
    if not OPT.get('dl'):
        return
    A('s_memrealtime s[96:97]')
    A('s_waitcnt lgkmcnt(0)')
    A('s_and_b32 s96, s%d, 0xfffffff', 98 if absolute else 96)
    A('v_mov_b32 v%d, s96', vt)
    A('v_mov_b32 v%d, %d', vt + 1, 4 * word)
    A('s_mov_b64 exec, 1')
    A('buffer_atomic_umax v%d, v%d, %s, 0 offen', vt, vt + 1, DBG)
    A('s_mov_b64 exec, -1')


def light_stamp(vt):
    if not OPT.get('lt'):
        return
    A('s_memrealtime s[96:97]')
    A('s_waitcnt lgkmcnt(0)')
    A('v_mov_b32 v%d, s96', vt)
    A('v_mov_b32 v%d, s98', vt + 1)
    A('s_lshl_b32 s%d, s%d, 6', sA, sHEAD)
    A('s_add_u32 s%d, s%d, s%d', sA, sA, sSEG)
    A('s_lshl_b32 s%d, s%d, 3', sA, sA)
    A('s_add_u32 s%d, s%d, %d', sA, sA, TRACE)
    A('s_mov_b64 exec, 1')
    A('buffer_store_dwordx2 %s, off, %s, s%d', v(vt, 2), WS, sA)
    A('s_mov_b64 exec, -1')


def arrive_init(vt):
    L = A.newlabel('Larr')
    A('s_cmp_lg_u32 s%d, 0', sW)
    A('s_cbranch_scc1 %s', L)
    A('s_lshl_b32 s%d, s%d, 16', sA, sMODE)
    A('s_add_u32 s%d, s%d, 1', sA, sA)
    A('s_mov_b64 exec, 1')
    A('v_mov_b32 v%d, s%d', vt, sA)
    A('v_mov_b32 v%d, %d', vt + 1, D_INIT)
    A('buffer_atomic_add v%d, v%d, %s, 0 offen', vt, vt + 1, DBG)
    A('s_mov_b64 exec, -1')
    A.label(L)


def wait_init(vt, lds=163836, par=False):
    L, D = A.newlabel('Lwi'), A.newlabel('Lwid')
    A('v_mov_b32 v%d, %d', vt + 1, D_INIT)
    A('s_cmp_lg_u32 s%d, 0', sW)
    K = A.newlabel('Lwik')
    A('s_cbranch_scc1 %s', K)
    A.label(L)
    A('buffer_load_dword v%d, v%d, %s, 0 offen sc1', vt, vt + 1, DBG)
    A('s_waitcnt vmcnt(0)')
    A('v_readfirstlane_b32 s%d, v%d', sA, vt)
    A('s_and_b32 s%d, s%d, 0x%x', sB, sA, 0x200ffff if par else 0xffff)
    A('s_cmp_eq_u32 s%d, 0x%x', sB, 0x2000100 if par else 0x100)
    A('s_cbranch_scc1 %s', D)
    poll_tail(L, D, sleep=6)
    A('v_mov_b32 v%d, %d', vt + 1, lds)
    A('ds_write_b32 v%d, v%d', vt + 1, vt)
    A('s_waitcnt lgkmcnt(0)')
    A.label(K)
    A('s_waitcnt vmcnt(0)')
    A('s_barrier')
    A('v_mov_b32 v%d, %d', vt + 1, lds)
    A('ds_read_b32 v%d, v%d', vt, vt + 1)
    A('s_waitcnt lgkmcnt(0)')
    A('v_readfirstlane_b32 s%d, v%d', sA, vt)
    A('s_bfe_u32 s%d, s%d, 0x80010', sMODE, sA)


def zero_flag(vt, sflag):
    A('s_mov_b64 exec, 1')
    A('v_mov_b32 v%d, 0', vt)
    A('buffer_store_dword v%d, v%d, %s, s%d offen sc1', vt, vt, WS, sflag)
    A('s_mov_b64 exec, -1')


SLOT = 24576
NT = ['']
NSLOT = 6
sLW6, sLW5, sSTR = 90, 91, 92


def stages_n192(srdname, srs, scol, dest, lane, setup=True):
    vo, va, vb = 4, 10, 13
    t0, t1, t2 = 16, 17, 18
    if setup:
        for i in range(6):
            A('v_add_u32 v%d, %d, v%d', t0, 64 * i, lane)
            A('v_mul_u32_u24 v%d, 2731, v%d', t1, t0)
            A('v_lshrrev_b32 v%d, 16, v%d', t1, t1)
            A('v_mul_u32_u24 v%d, 24, v%d', t2, t1)
            A('v_sub_u32 v%d, v%d, v%d', t0, t0, t2)
            A('v_and_b32 v%d, 2, v%d', t2, t1)
            A('v_xor_b32 v%d, v%d, v%d', t0, t0, t2)
            A('v_and_b32 v%d, 8, v%d', t2, t1)
            A('v_lshrrev_b32 v%d, 1, v%d', t2, t2)
            A('v_xor_b32 v%d, v%d, v%d', t0, t0, t2)
            A('s_lshl_b32 s%d, s%d, 4', sA, sW)
            A('v_add_u32 v%d, s%d, v%d', t1, sA, t1)
            A('v_mul_lo_u32 v%d, v%d, s%d', t1, t1, srs)
            A('v_lshl_add_u32 v%d, v%d, 4, v%d', t0, t0, t1)
            A('v_add_u32 v%d, s%d, v%d', vo + i, scol, t0)
        A('v_lshrrev_b32 v%d, 4, v%d', t0, lane)
        A('v_bfe_u32 v%d, v%d, 2, 2', t1, lane)
        A('v_lshl_add_u32 v%d, v%d, 3, v%d', t2, t0, t1)
        A('v_mul_u32_u24 v%d, 384, v%d', vb, t2)
        A('v_and_b32 v%d, 1, v%d', vb + 1, lane)
        A('v_lshl_add_u32 v%d, v%d, 3, v%d', vb, vb + 1, vb)
        A('v_and_b32 v%d, 2, v%d', t1, t1)
        A('v_and_b32 v%d, 1, v%d', t0, t0)
        A('v_lshl_or_b32 v%d, v%d, 2, v%d', t1, t0, t1)
        A('v_bfe_u32 v%d, v%d, 1, 1', t0, lane)
        A('s_mul_i32 s%d, s%d, 6', sA, sW)
        for t in range(3):
            A('v_add_u32 v%d, s%d, v%d', t2, sA, t0)
            A('v_add_u32 v%d, %d, v%d', t2, 2 * t, t2)
            A('v_xor_b32 v%d, v%d, v%d', t2, t2, t1)
            A('v_lshl_add_u32 v%d, v%d, 4, v%d', va + t, t2, vb)
        A('s_mul_i32 s%d, s%d, 6144', sLW6, sW)
        A('s_lshl_b32 s%d, s%d, 6', sSTR, srs)

    def mk(st):
        def issue(base):
            A('s_mul_i32 s%d, s%d, %d', sA, sSTR, st)
            for i in range(6):
                A('s_add_u32 m0, s%d, %d', sLW6, base + i * 1024)
                A('buffer_load_dwordx4 v%d, %s, s%d offen%s lds', vo + i, srdname, sA, NT[0])

        def consume(w, base):
            for t in range(3):
                A('v_add_u32 v%d, %d, v%d', vb + t, base, va + t)
            for kkl in range(2):
                for j in range(2):
                    for t in range(3):
                        A('ds_read_b64_tr_b16 %s, v%d offset:%d', dest(w, st, kkl, j, t), vb + t, (32 * kkl + 4 * j) * 384)
        return (issue, consume, 6)
    return [mk(st) for st in range(10)]


def stages_k192(srdname, sbase, dest, lane):
    vo, va = 19, 4
    t0, t1, t2, t3 = 2, 3, 16, 17
    A('s_lshl_b32 s%d, s%d, 2', sA, sW)
    for i in range(5):
        A('v_add_u32 v%d, %d, v%d', t0, 64 * i, lane)
        A('v_mul_u32_u24 v%d, 820, v%d', t1, t0)
        A('v_lshrrev_b32 v%d, 16, v%d', t1, t1)
        A('v_mul_u32_u24 v%d, 80, v%d', t2, t1)
        A('v_sub_u32 v%d, v%d, v%d', t0, t0, t2)
        A('v_add_u32 v%d, s%d, v%d', t1, sA, t1)
        A('v_and_b32 v%d, 7, v%d', t2, t1)
        A('v_lshlrev_b32 v%d, 1, v%d', t2, t2)
        A('v_xor_b32 v%d, v%d, v%d', t0, t0, t2)
        A('v_mul_u32_u24 v%d, 1280, v%d', t1, t1)
        A('v_lshl_add_u32 v%d, v%d, 4, v%d', vo + i, t0, t1)
    A('s_mul_i32 s%d, s%d, 5120', sLW5, sW)
    state = {}

    def late_setup():
        u0, u1 = 14, 15
        A('v_lshrrev_b32 v%d, 2, v%d', u0, lane)
        A('v_mul_u32_u24 v%d, 1280, v%d', t3, u0)
        A('v_and_b32 v%d, 1, v%d', u1, lane)
        A('v_lshl_add_u32 v%d, v%d, 3, v%d', t3, u1, t3)
        A('v_and_b32 v%d, 7, v%d', u0, u0)
        A('v_lshlrev_b32 v%d, 1, v%d', u0, u0)
        A('v_bfe_u32 v%d, v%d, 1, 1', u1, lane)
        A('s_mul_i32 s%d, s%d, 20', sA, sW)
        A('v_add_u32 v%d, s%d, v%d', u1, sA, u1)
        for T in range(10):
            A('v_add_u32 v%d, %d, v%d', t2, 2 * T, u1)
            A('v_xor_b32 v%d, v%d, v%d', t2, t2, u0)
            A('v_lshl_add_u32 v%d, v%d, 4, v%d', va + T, t2, t3)

    def mk(st):
        def issue(base):
            A('s_add_u32 s%d, s%d, %d', sA, sbase, st * 20480)
            for i in range(5):
                A('s_add_u32 m0, s%d, %d', sLW5, base + i * 1024)
                A('buffer_load_dwordx4 v%d, %s, s%d offen%s lds', vo + i, srdname, sA, NT[0])

        def consume(w, base):
            if st == 0:
                late_setup()
                state['cur'] = 0
            hi = (base // 49152) * 49152
            if hi != state['cur']:
                for T in range(10):
                    A('v_add_u32 v%d, %d, v%d', va + T, hi - state['cur'], va + T)
                state['cur'] = hi
            for T in range(10):
                A('ds_read_b64_tr_b16 %s, v%d offset:%d', dest(st, T), va + T, base - hi)
        return (issue, consume, 5)
    return [mk(st) for st in range(12)]


def per_wave(body):
    done = A.newlabel('Lpw')
    labs = [A.newlabel('Lpw') for _ in range(4)]
    for w in range(1, 4):
        A('s_cmp_eq_u32 s%d, %d', sW, w)
        A('s_cbranch_scc1 %s', labs[w])
    for w in range(4):
        A.label(labs[w])
        body(w)
        if w < 3:
            A('s_branch %s', done)
    A.label(done)


def run_stages(stages, first_hook=None, wsel=False):
    n = len(stages)

    def body(w):
        for st in range(n):
            out = sum(stages[k][2] for k in range(st + 1, min(n, st + NSLOT)))
            A('s_waitcnt vmcnt(%d)', out)
            A('s_barrier')
            if st == 0:
                stamp(7)
            if st == 9:
                stamp(8)
            stages[st][1](w, (st % NSLOT) * SLOT)
            A('s_waitcnt lgkmcnt(0)')
            if st + NSLOT < n:
                A('s_barrier')
                stages[st + NSLOT][0]((st % NSLOT) * SLOT)
    for st in range(min(NSLOT, n)):
        stages[st][0](st * SLOT)
        if st == 1 and first_hook:
            A('s_waitcnt vmcnt(%d)', stages[0][2] + stages[1][2])
            A('s_barrier')
            first_hook()
    if wsel:
        per_wave(body)
    else:
        body(0)


def entry():
    A('s_cmp_ge_u32 s2, 256')
    A('s_cbranch_scc1 L_end')
    A('s_load_dwordx16 s[40:55], s[0:1], 0')
    A('s_load_dwordx8 s[56:63], s[0:1], 64')
    A('s_load_dwordx2 s[64:65], s[0:1], 96')
    A('v_lshrrev_b32 v2, 6, v0')
    A('v_and_b32 v1, 63, v0')
    A('v_readfirstlane_b32 s%d, v2', sW)
    A('s_mov_b32 s%d, %d', sBUD, BUDGET)
    A('s_getreg_b32 s%d, hwreg(HW_REG_XCC_ID)', sC)
    A('s_and_b32 s%d, s%d, 15', sC, sC)
    A('s_waitcnt lgkmcnt(0)')
    srd(8, pWS, WS_BYTES)
    srd(12, pX, 2048 * 640 * 2)
    srd(16, pWQ, 640 * 6144 * 2)
    srd(20, pWK, 640 * 6144 * 2)
    srd(24, pOUT, 2048 * 640 * 2)
    srd(28, pDBG, 256)
    srd(32, pMEM0, 8 * 640 * 2)
    stamp(0)
    if OPT.get('lt') or OPT.get('dl'):
        A('s_memrealtime s[98:99]')
    A('s_cmp_lg_u32 s%d, 0', sW)
    A('s_cbranch_scc1 L_tk_done')
    A('s_mov_b64 exec, 1')
    A('s_and_b32 s%d, s%d, 7', sG, sC)
    A('s_mov_b32 s%d, 8', sB)
    A.label('L_tk_try')
    A('s_lshl_b32 s%d, s%d, 5', sA, sG)
    A('v_mov_b32 v2, 1')
    A('v_mov_b32 v3, s%d', sA)
    A('buffer_atomic_add v2, v3, %s, 0 offen sc0', DBG)
    A('s_waitcnt vmcnt(0)')
    A('v_readfirstlane_b32 s%d, v2', sT)
    A('s_cmp_lt_u32 s%d, 32', sT)
    A('s_cbranch_scc1 L_tk_got')
    A('s_sub_u32 s%d, s%d, 1', sB, sB)
    A('s_mov_b32 s%d, s%d', sG, sB)
    A('s_cbranch_scc0 L_tk_try')
    A('s_mov_b32 s%d, 8', sG)
    A('s_mov_b32 s%d, 0', sT)
    A.label('L_tk_got')
    A('s_lshl_b32 s%d, s%d, 5', sA, sG)
    A('s_add_u32 s%d, s%d, s%d', sA, sA, sT)
    A('v_mov_b32 v2, s%d', sA)
    A('v_mov_b32 v3, 0')
    A('ds_write_b32 v3, v2')
    A('s_waitcnt lgkmcnt(0)')
    A('s_mov_b64 exec, -1')
    A.label('L_tk_done')
    A('s_barrier')
    A('v_mov_b32 v3, 0')
    A('ds_read_b32 v2, v3')
    A('s_waitcnt lgkmcnt(0)')
    A('v_readfirstlane_b32 s%d, v2', sA)
    A('s_barrier')
    A('s_lshr_b32 s%d, s%d, 5', sG, sA)
    A('s_and_b32 s%d, s%d, 31', sT, sA)
    stamp(4)
    if OPT.get('cw', 1):
        A('s_getpc_b64 s[72:73]')
        A.label('L_pc')
        A('s_and_b32 s73, s73, 0xffff')
        A('s_mov_b32 s74, L_end - L_pc')
        A('s_mov_b32 s75, 0x20000')
        A('s_lshl_b32 s%d, s%d, 2', sA, sT)
        A('s_add_u32 s%d, s%d, s%d', sA, sA, sW)
        A('s_lshl_b32 s%d, s%d, 13', sA, sA)
        A('v_lshl_add_u32 v2, v1, 7, s%d', sA)
        A('buffer_load_dword v255, v2, s[72:75], 0 offen')
    A('s_mov_b32 s%d, 0', sMODE)
    A('s_cmp_ge_u32 s%d, 8', sG)
    A('s_cbranch_scc1 L_end')
    A('s_cmp_ge_u32 s%d, 4', sG)
    A('s_cbranch_scc1 L_notR')
    A('s_mul_i32 s%d, s%d, 6', sIDX, sG)
    A('s_add_u32 s%d, s%d, s%d', sIDX, sIDX, sT)
    A('s_sub_u32 s%d, s%d, 26', sIDX, sIDX)
    A('s_cmp_ge_u32 s%d, 26', sT)
    A('s_cbranch_scc1 L_P1')
    A('s_cmp_lg_u32 s%d, s%d', sG, sC)
    A('s_cselect_b32 s%d, 1, %d', sMODE, OPT['force_slow'])
    A('s_cmp_ge_u32 s%d, 16', sT)
    A('s_cbranch_scc1 L_C')
    A('s_and_b32 s%d, s%d, 7', sIDX, sT)
    A('s_lshl_b32 s%d, s%d, 3', sHEAD, sG)
    A('s_add_u32 s%d, s%d, s%d', sHEAD, sHEAD, sIDX)
    A('s_cmp_lt_u32 s%d, 8', sT)
    A('s_cbranch_scc1 L_RQ')
    A('s_branch L_RV')
    A.label('L_notR')
    A('s_sub_u32 s%d, s%d, 4', sG, sG)
    A('s_lshl_b32 s%d, s%d, 3', sA, sG)
    A('s_and_b32 s%d, s%d, 7', sB, sT)
    A('s_add_u32 s%d, s%d, s%d', sA, sA, sB)
    A('s_add_u32 s%d, s%d, 64', sIDX, sA)
    A('s_cmp_lt_u32 s%d, 8', sT)
    A('s_cbranch_scc1 L_P1')
    A('s_mov_b32 s%d, s%d', sIDX, sA)
    A('s_cmp_lt_u32 s%d, 16', sT)
    A('s_cbranch_scc1 L_P2')
    A('s_add_u32 s%d, s%d, 32', sIDX, sA)
    A('s_cmp_lt_u32 s%d, 24', sT)
    A('s_cbranch_scc1 L_P1')
    A('s_lshl_b32 s%d, s%d, 1', sA, sG)
    A('s_and_b32 s%d, s%d, 1', sB, sT)
    A('s_add_u32 s%d, s%d, s%d', sA, sA, sB)
    A('s_add_u32 s%d, s%d, 96', sIDX, sA)
    A('s_cmp_lt_u32 s%d, 26', sT)
    A('s_cbranch_scc1 L_P1')
    A('s_add_u32 s%d, s%d, 32', sIDX, sA)
    A('s_cmp_lt_u32 s%d, 28', sT)
    A('s_cbranch_scc1 L_P2')
    A('s_add_u32 s%d, s%d, 24', sIDX, sA)
    A('s_cmp_lt_u32 s%d, 30', sT)
    A('s_cbranch_scc1 L_P1')
    A('s_mov_b32 s%d, s%d', sIDX, sA)
    A('s_branch L_F')


def r_finish(vt):
    L = A.newlabel('Lrf')
    A('s_waitcnt vmcnt(0)')
    A('s_barrier')
    A('s_cmp_lg_u32 s%d, 0', sW)
    A('s_cbranch_scc1 %s', L)
    A('s_mov_b64 exec, 1')
    A('v_mov_b32 v%d, 1', vt)
    A('v_mov_b32 v%d, %d', vt + 1, D_FIN)
    A('buffer_atomic_add v%d, v%d, %s, 0 offen sc0', vt, vt + 1, DBG)
    A('s_waitcnt vmcnt(0)')
    A('v_readfirstlane_b32 s%d, v%d', sA, vt)
    A('s_mov_b64 exec, -1')
    A('s_cmp_lg_u32 s%d, 39', sA)
    A('s_cbranch_scc1 %s', L)
    A('s_mov_b64 exec, 1')
    A('v_mov_b32 v%d, 64', vt)
    A('v_mov_b32 v%d, %d', vt + 1, D_PROG)
    A('buffer_atomic_umax v%d, v%d, %s, 0 offen', vt, vt + 1, DBG)
    A('s_mov_b64 exec, -1')
    A.label(L)


def role_off(name):
    if OPT['roles'] == 'all' or name in OPT['roles'].split(','):
        return False
    arrive_init(2)
    A('s_endpgm')
    return True


def finish_role(slot_reg_expr=None):
    L = A.newlabel('Lfin')
    A('s_waitcnt vmcnt(0)')
    if slot_reg_expr == 5:
        dl_stamp(7, 2)
        dl_stamp(2, 2, True)
    if slot_reg_expr == 4:
        dl_stamp(6, 2)
        dl_stamp(1, 2, True)
    A('s_cmp_lg_u32 s%d, 0', sBUD)
    A('s_cbranch_scc1 %s', L)
    A('s_mov_b64 exec, 1')
    A('v_mov_b32 v2, 1')
    A('v_mov_b32 v3, %d', D_FAIL)
    A('buffer_atomic_add v2, v3, %s, 0 offen', DBG)
    A('s_mov_b64 exec, -1')
    A.label(L)
    if OPT['stamp']:
        A('s_memrealtime s[98:99]')
        A('s_waitcnt lgkmcnt(0)')
        A('s_mov_b64 exec, 1')
        A('s_lshl_b32 s%d, s2, 2', sA)
        A('s_add_u32 s%d, s%d, s%d', sA, sA, sW)
        A('s_mul_i32 s%d, s%d, 48', sA, sA)
        A('s_add_u32 s%d, s%d, %d', sA, sA, STAMP)
        A('v_mov_b32 v3, 0')
        for i in range(10):
            A('v_mov_b32 v2, s%d', 80 + 2 * i)
            A('buffer_store_dword v2, v3, %s, s%d offen offset:%d', WS, sA, 4 * i)
        A('s_lshl_b32 s%d, s%d, 8', sB, sG)
        A('s_add_u32 s%d, s%d, s%d', sB, sB, sT)
        A('s_add_u32 s%d, s%d, %d', sB, sB, slot_reg_expr << 16)
        A('v_mov_b32 v2, s%d', sB)
        A('buffer_store_dword v2, v3, %s, s%d offen offset:40', WS, sA)
    A('s_endpgm')


def role_p1():
    NT[0] = ' nt' if OPT.get('nt', 0) & 1 else ''
    A.label('L_P1')
    if role_off('P1'):
        return
    sRS, sCOL, sOUTB, sFLAG, sXN, sLB = s0_, s1_, s2_, s3_, s4_, s5_
    lane = 1
    A('s_lshr_b32 s%d, s%d, 5', sA, sIDX)
    A('s_and_b32 s%d, s%d, 31', sHEAD, sIDX)
    A('s_mov_b32 s%d, 12288', sRS)
    A('s_mul_i32 s%d, s%d, 384', sCOL, sHEAD)
    A('s_mov_b32 s%d, 0x80008000', s6_)
    A('s_cmp_eq_u32 s%d, 1', sA)
    A('s_cselect_b32 s16, s%d, s16', pWK)
    A('s_cselect_b32 s17, s%d, s%d', pWK + 1, pWQ + 1)
    A('s_cmp_eq_u32 s%d, 2', sA)
    A('s_cselect_b32 s16, s%d, s16', pWV)
    A('s_cselect_b32 s17, s%d, s17', pWV + 1)
    A('s_cmp_eq_u32 s%d, 3', sA)
    A('s_cselect_b32 s16, s%d, s16', pW1)
    A('s_cselect_b32 s17, s%d, s17', pW1 + 1)
    A('s_cselect_b32 s18, 0x%x, s18', 640 * 1536 * 2)
    A('s_cselect_b32 s%d, 3072, s%d', sRS, sRS)
    A('s_cselect_b32 s%d, 0, s%d', s6_, s6_)
    A('s_and_b32 s17, s17, 0xffff')
    assert KX - QX == 32 * 64 * 12288 and VX - KX == 32 * 64 * 12288
    A('s_mul_i32 s%d, s%d, %d', sOUTB, sIDX, 64 * 12288)
    A('s_mul_i32 s%d, s%d, 3072', sA, sW)
    A('s_add_u32 s%d, s%d, s%d', sOUTB, sOUTB, sA)
    A('s_add_u32 s%d, s%d, %d', sOUTB, sOUTB, QX - 12288)
    A('s_lshl_b32 s%d, s%d, 7', sFLAG, sIDX)
    A('s_lshl_b32 s%d, s%d, 2', sA, sW)
    A('s_add_u32 s%d, s%d, s%d', sFLAG, sFLAG, sA)
    A('s_add_u32 s%d, s%d, %d', sFLAG, sFLAG, FL_P1)
    zero_flag(2, sFLAG)
    run_stages(stages_n192(WA, sRS, sCOL, lambda w, st, kkl, j, t: a_(((2 * st + kkl) * 3 + t) * 4 + 2 * j, 2), lane),
               first_hook=lambda: arrive_init(2))
    stamp(1)
    wait_init(2)
    stamp(2)
    vL16, vLA, vFLOOR, vZ, vCNT = 2, 3, 4, 5, 6
    acc = [8, 20]
    o0, o1, o2 = 32, 36, 40
    ring, NR = 44, 8
    A('v_lshlrev_b32 v%d, 4, v%d', vL16, lane)
    A('v_mov_b32 v%d, v%d', vLA, vL16)
    A('v_mov_b32 v%d, s%d', vFLOOR, s6_)
    A('v_mov_b32 v%d, 0', vZ)
    A('s_mul_i32 s%d, s%d, 10240', sLB, sW)
    A('s_add_u32 s%d, s%d, %d', sXN, sLB, XN)
    A('s_mov_b32 s%d, 0', s7_)

    def dma_ops():
        ops = []
        for i in range(10):
            if i % 4 == 0:
                ops.append(['s_add_u32 s%d, s%d, s%d' % (sA, sLB, s7_),
                            's_add_u32 m0, s%d, %d' % (sA, i * 1024),
                            's_add_u32 s%d, s%d, %d' % (sB, sXN, i * 1024)])
            ops.append(['buffer_load_dwordx4 v%d, %s, s%d offen offset:%d lds' % (vL16, WS, sB, (i % 4) * 1024)])
        ops.append(['s_add_u32 s%d, s%d, 40960' % (sXN, sXN),
                    's_add_u32 s%d, s%d, 40960' % (s7_, s7_),
                    's_cmp_eq_u32 s%d, %d' % (s7_, 3 * 40960),
                    's_cselect_b32 s%d, 0, s%d' % (s7_, s7_)])
        return ops

    for _ in range(3):
        for op in dma_ops():
            for ln in op:
                A(ln)
    A('s_waitcnt vmcnt(10)')
    A('s_barrier')
    PRE = 6
    for f in range(PRE):
        A('ds_read_b128 %s, v%d offset:%d', v(ring + 4 * (f % NR), 4), vLA, f * 1024)
    A('s_mov_b32 s%d, 0', sSEG)
    A('s_mov_b32 s%d, 40960', s6_)

    def epi(tt):
        a0 = acc[tt]
        dst = o0 if tt == 0 else o1
        ops = []
        for i in range(4):
            ops.append(['v_cvt_pk_bf16_f32 v%d, v%d, v%d' % (dst + i, a0 + 2 * i, a0 + 2 * i + 1)])
        for i in range(2):
            ops.append(['v_cvt_pk_bf16_f32 v%d, v%d, v%d' % (o2 + 2 * tt + i, a0 + 8 + 2 * i, a0 + 9 + 2 * i)])
        for r in [dst + i for i in range(4)] + [o2 + 2 * tt, o2 + 2 * tt + 1]:
            ops.append(['v_pk_max_i16 v%d, v%d, v%d' % (r, r, vFLOOR)])
        return ops

    def st(k):
        return ['buffer_store_dwordx4 %s, v%d, %s, s%d offen offset:%d sc1' % (v((o0, o1, o2)[k], 4), vL16, WS, sOUTB, 1024 * k)]

    def flag_ops(n):
        return [['s_waitcnt vmcnt(%d)' % n, 'v_mov_b32 v%d, s%d' % (vCNT, sSEG)],
                ['s_mov_b64 exec, 1', 'buffer_store_dword v%d, v%d, %s, s%d offen sc1' % (vCNT, vZ, WS, sFLAG), 's_mov_b64 exec, -1']]

    def body(first):
        fill = {}

        def place(start, ops, step=1):
            k = start
            for op in ops:
                while k % 3 == 0 or k in fill:
                    k += 1
                fill[k] = op
                k += step
            return k
        adv = ['s_add_u32 s%d, s%d, 12288' % (sOUTB, sOUTB)]
        if not first:
            fill[1] = ['s_waitcnt vmcnt(1)', 's_barrier']
            fill[2] = st(0)
            k = place(4, epi(1) + [st(1), st(2) + adv])
            place(k, dma_ops(), step=2)
            place(OPT.get('p1f', 76), flag_ops(10))
        else:
            fill[50] = adv
            fill[110] = ['s_waitcnt vmcnt(0)']
        place(82, epi(0))
        for f in range(40):
            tt, kk = divmod(f, 20)
            A('s_waitcnt lgkmcnt(%d)', PRE - 1)
            for t in range(3):
                m = 3 * f + t
                d = v(acc[tt] + 4 * t, 4)
                A('v_mfma_f32_16x16x32_bf16 %s, %s, %s, %s', d, a_((kk * 3 + t) * 4, 4), v(ring + 4 * (f % NR), 4),
                  '0' if kk == 0 else d)
                if t == 0:
                    g = f + PRE
                    if g == 40:
                        A('v_add_u32 v%d, s%d, v%d', vLA, s6_, vL16)
                    A('ds_read_b128 %s, v%d offset:%d', v(ring + 4 * (g % NR), 4), vLA, (g % 40) * 1024)
                for ln in fill.get(m, []):
                    A(ln)
        assert max(fill) < 120
        A('s_add_u32 s%d, s%d, 40960', s6_, s6_)
        A('s_cmp_eq_u32 s%d, %d', s6_, 3 * 40960)
        A('s_cselect_b32 s%d, 0, s%d', s6_, s6_)
        A('s_add_u32 s%d, s%d, 1', sSEG, sSEG)

    body(True)
    stamp(3)
    A.label('L_P1_loop')
    A('s_cmp_lg_u32 s%d, 40', sSEG)
    A('s_cbranch_scc1 L_P1_go')
    A('v_mov_b32 v7, %d', D_LN2)
    A.label('L_P1_ln2')
    A('buffer_load_dword v%d, v7, %s, 0 offen sc1', vCNT, DBG)
    A('s_waitcnt vmcnt(0)')
    A('v_cmp_gt_u32 vcc, 16, v%d', vCNT)
    A('s_cbranch_vccz L_P1_go')
    poll_tail('L_P1_ln2', 'L_P1_go', sleep=6)
    body(False)
    A('s_cmp_lt_u32 s%d, 64', sSEG)
    A('s_cbranch_scc1 L_P1_loop')
    for op in [st(0)] + epi(1) + [st(1), st(2)] + flag_ops(0):
        for ln in op:
            A(ln)
    finish_role(1)


def p2_frag(E):
    w, t = divmod(E, 3)
    return (w, t) if t < 2 else (4 + (w >> 1), w & 1)


def role_p2():
    A.label('L_P2')
    if role_off('P2'):
        return
    sBASE, sVIN, sOUTB, sFLAG, sSRC, sLB, sAV, sSLOT = s0_, s1_, s2_, s3_, s4_, s5_, s6_, s7_
    lane = 1
    A('s_cmp_lt_u32 s%d, 32', sIDX)
    A('s_cselect_b32 s16, s%d, s%d', pWO, pW2)
    A('s_cselect_b32 s17, s%d, s%d', pWO + 1, pW2 + 1)
    A('s_cselect_b32 s18, s18, 0x%x', 640 * 1536 * 2)
    A('s_and_b32 s17, s17, 0xffff')
    A('s_and_b32 s%d, s%d, 31', sA, sIDX)
    A('s_mul_i32 s%d, s%d, %d', sBASE, sA, 192 * 1280)
    A('s_lshl_b32 s%d, s%d, 7', sFLAG, sIDX)
    A('s_lshl_b32 s%d, s%d, 2', sA, sW)
    A('s_add_u32 s%d, s%d, s%d', sFLAG, sFLAG, sA)
    A('s_add_u32 s%d, s%d, %d', sSRC, sFLAG, FL_P1 + 64 * 128)
    A('s_add_u32 s%d, s%d, %d', sFLAG, sFLAG, FL_P2)
    zero_flag(2, sFLAG)

    def dest(E, T):
        kk, half = p2_frag(E)
        return a_((T * 6 + kk) * 4 + 2 * half, 2)
    run_stages(stages_k192(WA, sBASE, dest, lane), first_hook=lambda: arrive_init(2))
    stamp(1)
    wait_init(2)
    stamp(2)
    vL16, vLA, vZ, vCNT, vFL = 2, 3, 5, 6, 7
    acc = [8, 16]
    ob = [24, 28]
    vf = 32
    NS = 4
    A('v_lshlrev_b32 v%d, 4, v%d', vL16, lane)
    A('v_mov_b32 v%d, v%d', vLA, vL16)
    A('v_mov_b32 v%d, 0', vZ)
    A('s_mul_i32 s%d, s%d, 3072', sLB, sW)
    A('s_mul_i32 s%d, s%d, %d', sVIN, sIDX, 64 * 12288)
    A('s_add_u32 s%d, s%d, s%d', sVIN, sVIN, sLB)
    A('s_add_u32 s%d, s%d, %d', sVIN, sVIN, VX)
    A('s_mul_i32 s%d, s%d, 40960', sOUTB, sIDX)
    A('s_mul_i32 s%d, s%d, 10240', sA, sW)
    A('s_add_u32 s%d, s%d, s%d', sOUTB, sOUTB, sA)
    A('s_add_u32 s%d, s%d, %d', sOUTB, sOUTB, VO)
    A('s_mov_b32 s%d, 0', sAV)
    A('s_mov_b32 s%d, 0', sSLOT)
    sNEXT = 78
    sRD = 79
    A('s_mov_b32 s%d, 0', sNEXT)

    def need_avail():
        L, D = A.newlabel('Lp2w'), A.newlabel('Lp2d')
        A('s_min_u32 s%d, s%d, 63', sA, sNEXT)
        A('s_cmp_gt_u32 s%d, s%d', sAV, sA)
        A('s_cbranch_scc1 %s', D)
        A.label(L)
        A('buffer_load_dword v%d, v%d, %s, s%d offen sc1', vFL, vZ, WS, sSRC)
        A('s_waitcnt vmcnt(0)')
        A('v_readfirstlane_b32 s%d, v%d', sAV, vFL)
        A('s_cmp_gt_u32 s%d, s%d', sAV, sA)
        A('s_cbranch_scc1 %s', D)
        poll_tail(L, D, sleep=1)

    def dma():
        A('s_add_u32 m0, s%d, s%d', sLB, sSLOT)
        for i in range(3):
            A('buffer_load_dwordx4 v%d, %s, s%d offen offset:%d sc1 lds', vL16, WS, sVIN, i * 1024)
        A('s_add_u32 s%d, s%d, 12288', sVIN, sVIN)
        A('s_add_u32 s%d, s%d, 12288', sSLOT, sSLOT)
        A('s_cmp_eq_u32 s%d, %d', sSLOT, NS * 12288)
        A('s_cselect_b32 s%d, 0, s%d', sSLOT, sSLOT)
        A('s_add_u32 s%d, s%d, 1', sNEXT, sNEXT)

    def rd(tt, kk):
        d = vf + (kk * 2 + tt) * 4
        if kk < 4:
            return ['ds_read_b128 %s, v%d offset:%d' % (v(d, 4), vLA, kk * 3072 + tt * 1024)]
        return ['ds_read_b64 %s, v%d offset:%d' % (v(d + 2 * h, 2), vLA, (2 * (kk - 4) + h) * 3072 + 2048 + tt * 8) for h in range(2)]

    need_avail(); dma()
    A('s_waitcnt vmcnt(0)')
    A('s_barrier')
    for kk in range(6):
        for tt in range(2):
            for ln in rd(tt, kk):
                A(ln)
    A('s_mov_b32 s%d, 12288', sRD)
    A('s_mov_b32 s%d, 0', sSEG)

    def epi(T):
        a0 = acc[T & 1]
        o = ob[T & 1]
        ops = [['v_cvt_pk_bf16_f32 v%d, v%d, v%d' % (o + i, a0 + 2 * i, a0 + 2 * i + 1)] for i in range(4)]
        st = []
        if T % 4 == 0:
            st.append('s_add_u32 s%d, s%d, %d' % (sC, sOUTB, T * 1024))
        st.append('buffer_store_dwordx4 %s, v%d, %s, s%d offen offset:%d sc1' % (v(o, 4), vL16, WS, sC, (T % 4) * 1024))
        if T == 9:
            st.append('s_add_u32 s%d, s%d, %d' % (sOUTB, sOUTB, 40 * 40960))
        ops.append(st)
        return ops

    def flag_ops(n):
        return [['s_waitcnt vmcnt(%d)' % n, 'v_mov_b32 v%d, s%d' % (vCNT, sSEG)],
                ['s_mov_b64 exec, 1', 'buffer_store_dword v%d, v%d, %s, s%d offen sc1' % (vCNT, vZ, WS, sFLAG), 's_mov_b64 exec, -1']]

    def body(first, drain=False):
        if not drain:
            need_avail(); dma()
        A('s_waitcnt lgkmcnt(0)')
        for T in range(10):
            fill = {}
            if T > 0 or not first:
                for i, op in enumerate(epi((T - 1) % 10)):
                    fill[5 + i] = op
            if T == 5 and not first:
                f = flag_ops(4)
                fill[1], fill[2] = f
            if T == 8 and not drain:
                fill[10] = ['s_waitcnt vmcnt(8)', 's_barrier', 'v_add_u32 v%d, s%d, v%d' % (vLA, sRD, vL16)]
            for kk in range(6):
                for tt in range(2):
                    m = kk * 2 + tt
                    d = v(acc[T & 1] + 4 * tt, 4)
                    A('v_mfma_f32_16x16x32_bf16 %s, %s, %s, %s', d, v(vf + m * 4, 4), a_((T * 6 + kk) * 4, 4), '0' if kk == 0 else d)
                    if T == 9 and not drain:
                        for ln in rd(tt, kk):
                            A(ln)
                    for ln in fill.get(m, []):
                        A(ln)
        A('s_add_u32 s%d, s%d, 1', sSEG, sSEG)
        if drain:
            for op in epi(9) + flag_ops(0):
                for ln in op:
                    A(ln)
            need_avail(); dma()
            A('v_add_u32 v%d, s%d, v%d', vLA, sRD, vL16)
            A('s_waitcnt vmcnt(0)')
            A('s_barrier')
            for kk in range(6):
                for tt in range(2):
                    for ln in rd(tt, kk):
                        A(ln)
        A('s_add_u32 s%d, s%d, 12288', sRD, sRD)
        A('s_cmp_eq_u32 s%d, %d', sRD, NS * 12288)
        A('s_cselect_b32 s%d, 0, s%d', sRD, sRD)

    A.label('L_P2_drain')
    body(True, drain=True)
    stamp(3)
    A('s_cmp_lt_u32 s%d, %d', sSEG, OPT.get('ndr', 2))
    A('s_cbranch_scc1 L_P2_drain')
    body(True)
    A.label('L_P2_loop')
    body(False)
    A('s_cmp_lt_u32 s%d, 64', sSEG)
    A('s_cbranch_scc1 L_P2_loop')
    for op in epi(9) + flag_ops(0):
        for ln in op:
            A(ln)
    A('s_cmp_lt_u32 s%d, 16', sIDX)
    A('s_cbranch_scc0 L_P2_fin')
    A('s_waitcnt vmcnt(0) lgkmcnt(0)')
    A('s_add_u32 s%d, s%d, 240', sIDX, sIDX)
    A('s_branch L_F_go')
    A.label('L_P2_fin')
    finish_role(2)


def allreduce8(x, t, op):
    A('%s_dpp v%d, v%d, v%d row_ror:8 row_mask:0xf bank_mask:0xf', op, x, x, x)
    A('v_mov_b32 v%d, v%d', t, x)
    A('v_permlane16_swap_b32 v%d, v%d', x, t)
    A('%s v%d, v%d, v%d', op, x, x, t)
    A('v_mov_b32 v%d, v%d', t, x)
    A('v_permlane32_swap_b32 v%d, v%d', x, t)
    A('%s v%d, v%d, v%d', op, x, x, t)


def layernorm():
    lane = 1
    vIN, vOUTA, t0, t1, vM, vS = 2, 3, 4, 5, 6, 7
    raw, f = 8, 48
    A('v_and_b32 v%d, 7, v%d', t0, lane)
    A('v_lshrrev_b32 v%d, 3, v%d', t1, lane)
    A('s_lshl_b32 s%d, s%d, 3', sA, sW)
    A('v_add_u32 v%d, s%d, v%d', vIN, sA, t0)
    A('v_mul_u32_u24 v%d, 1280, v%d', vIN, vIN)
    A('v_lshl_add_u32 v%d, v%d, 4, v%d', vIN, t1, vIN)
    A('s_and_b32 s%d, s%d, 1', sA, sW)
    A('s_lshl_b32 s%d, s%d, 7', sA, sA)
    A('s_lshr_b32 s%d, s%d, 1', sB, sW)
    A('s_mul_i32 s%d, s%d, 20480', sB, sB)
    A('s_add_u32 s%d, s%d, s%d', sA, sA, sB)
    A('v_lshlrev_b32 v%d, 8, v%d', vOUTA, t1)
    A('v_lshl_add_u32 v%d, v%d, 4, v%d', vOUTA, t0, vOUTA)
    A('v_add_u32 v%d, s%d, v%d', vOUTA, sA, vOUTA)
    A.label('L_ln_loop')
    A('s_mul_i32 s%d, s%d, 40960', sA, sSEG)
    for j in range(10):
        A('buffer_load_dwordx4 %s, v%d, %s, s%d offen offset:%d', v(raw + 4 * j, 4), vIN, XS, sA, 128 * j)
    A('v_mov_b32 v%d, 0', vM)
    A('v_mov_b32 v%d, 0', vS)
    for j in range(10):
        A('s_waitcnt vmcnt(%d)', 9 - j)
        for i in range(4):
            d = 4 * j + i
            A('v_lshlrev_b32 v%d, 16, v%d', f + 2 * d, raw + d)
            A('v_and_b32 v%d, 0xffff0000, v%d', f + 2 * d + 1, raw + d)
            A('v_add_f32 v%d, v%d, v%d', vM, vM, f + 2 * d)
            A('v_add_f32 v%d, v%d, v%d', vS, vS, f + 2 * d + 1)
    A('v_add_f32 v%d, v%d, v%d', vM, vM, vS)
    allreduce8(vM, t0, 'v_add_f32')
    A('v_mul_f32 v%d, 0x3acccccd, v%d', vM, vM)
    A('v_mov_b32 v%d, 0', vS)
    A('v_mov_b32 v%d, 0', t1)
    for e in range(0, 80, 2):
        A('v_sub_f32 v%d, v%d, v%d', raw, f + e, vM)
        A('v_sub_f32 v%d, v%d, v%d', raw + 1, f + e + 1, vM)
        A('v_fmac_f32 v%d, v%d, v%d', vS, raw, raw)
        A('v_fmac_f32 v%d, v%d, v%d', t1, raw + 1, raw + 1)
    A('v_add_f32 v%d, v%d, v%d', vS, vS, t1)
    allreduce8(vS, t0, 'v_add_f32')
    A('v_mul_f32 v%d, 0x3acccccd, v%d', vS, vS)
    A('v_cvt_pk_bf16_f32 v%d, v%d, v%d', t0, vM, vS)
    A('v_lshlrev_b32 v%d, 16, v%d', vM, t0)
    A('v_and_b32 v%d, 0xffff0000, v%d', vS, t0)
    A('v_add_f32 v%d, 0x3727c5ac, v%d', vS, vS)
    A('v_cvt_pk_bf16_f32 v%d, v%d, v%d', vS, vS, vS)
    A('v_and_b32 v%d, 0xffff0000, v%d', vS, vS)
    A('v_sqrt_f32 v%d, v%d', vS, vS)
    A('v_cvt_pk_bf16_f32 v%d, v%d, v%d', vS, vS, vS)
    A('v_and_b32 v%d, 0xffff0000, v%d', vS, vS)
    A('v_rcp_f32 v%d, v%d', vS, vS)
    A('s_add_u32 s%d, s%d, %d', sA, sA, XN)
    for j in range(10):
        for i in range(4):
            d = 4 * j + i
            A('v_sub_f32 v%d, v%d, v%d', f + 2 * d, f + 2 * d, vM)
            A('v_sub_f32 v%d, v%d, v%d', f + 2 * d + 1, f + 2 * d + 1, vM)
            A('v_cvt_pk_bf16_f32 v%d, v%d, v%d', t0, f + 2 * d, f + 2 * d + 1)
            A('v_lshlrev_b32 v%d, 16, v%d', t1, t0)
            A('v_and_b32 v%d, 0xffff0000, v%d', t0, t0)
            A('v_mul_f32 v%d, v%d, v%d', t1, t1, vS)
            A('v_mul_f32 v%d, v%d, v%d', t0, t0, vS)
            A('v_cvt_pk_bf16_f32 v%d, v%d, v%d', raw + d, t1, t0)
        A('buffer_store_dwordx4 %s, v%d, %s, s%d offen offset:%d sc1', v(raw + 4 * j, 4), vOUTA, WS, sA, 2048 * (j & 1))
        if j & 1:
            A('s_add_u32 s%d, s%d, 4096', sA, sA)


import roles_r


def main():
    g = globals()
    entry()
    role_p1()
    role_p2()
    NT[0] = ' nt' if OPT.get('nt', 0) & 2 else ''
    roles_r.emit(g)
    A.label('L_end')
    A('s_endpgm')
    body = A.finish()
    ref = open('cdna_kernels/%s.s.ref' % NAME).read().split('\n')
    head = [ln for ln in ref if ln.startswith(';') and '@launch' not in ln and 'Override' not in ln and 'grid=ceil' not in ln]
    txt = '\n'.join(head) + '\n; @launch grid=(256,1,1) block=(256,1,1) lds=163840\n'
    txt += '; generated by dev/gen.py (hand-written generator)\n'
    txt += '.amdgcn_target "amdgcn-amd-amdhsa--gfx950"\n.text\n.globl %s_kernel\n.p2align 8\n.type %s_kernel,@function\n%s_kernel:\n' % (NAME, NAME, NAME)
    txt += body
    txt += '''.section .rodata,"a"
.p2align 6
.amdhsa_kernel %s_kernel
  .amdhsa_next_free_vgpr 512
  .amdhsa_next_free_sgpr 102
  .amdhsa_accum_offset 256
  .amdhsa_group_segment_fixed_size 0
  .amdhsa_float_denorm_mode_32 3
  .amdhsa_kernarg_size 104
  .amdhsa_user_sgpr_count 2
  .amdhsa_user_sgpr_kernarg_segment_ptr 1
  .amdhsa_system_sgpr_workgroup_id_x 1
.end_amdhsa_kernel
''' % NAME
    open(sys.argv[1], 'w').write(txt)
    print('wrote', sys.argv[1], len(txt), 'bytes;', A.n_nops, 'hazard nops')


if __name__ == '__main__':
    main()
```

```python
from asmlib import v, a_, s, Stream
from layout import *


def goff(dst, sg):
    A('s_lshr_b32 s%d, s%d, 1', sC, sIDX)
    A('s_lshl_b32 s%d, s%d, 14', sC, sC)
    A('s_and_b32 s%d, s%d, 1', sA, sIDX)
    A('s_lshl_b32 s%d, s%d, 12', sA, sA)
    A('s_add_u32 s%d, s%d, s%d', sC, sC, sA)
    A('s_add_u32 s%d, s%d, s%d', sA, sIDX, sg)
    A('s_and_b32 s%d, s%d, 3', sA, sA)
    A('s_lshl_b32 s%d, s%d, 2', sA, sA)
    A('s_add_u32 s%d, s%d, s%d', sA, sA, sW)
    A('s_lshl_b32 s%d, s%d, 8', sA, sA)
    A('s_add_u32 s%d, s%d, s%d', dst, sC, sA)


def loff(dst):
    A('s_lshl_b32 s%d, s%d, 15', dst, sG)
    A('s_lshl_b32 s%d, s%d, 8', sA, sHEAD)
    A('s_add_u32 s%d, s%d, s%d', dst, dst, sA)
    A('s_cmp_ge_u32 s%d, 5', sIDX)
    A('s_cselect_b32 s%d, %d, 0', sA, 16384 - 5120)
    A('s_add_u32 s%d, s%d, s%d', dst, dst, sA)


def probe():
    A('v_mov_b32 v3, %d', MG + 0x1C0000)
    A('s_mov_b32 s%d, -1', s0_)
    A('s_mov_b32 s%d, -1', s1_)
    A('s_mov_b32 s%d, %d', sC, OPT.get('npr', 10))
    A('s_mov_b64 exec, 1')
    A.label('L_probe')
    for par in range(2):
        A('s_mov_b32 s%d, %d', sB, 8192 * par)
        A('v_mov_b32 v2, 0')
        A('s_memtime s[72:73]')
        A('s_waitcnt lgkmcnt(0)')
        A('buffer_atomic_or v2, v3, %s, s%d offen sc0', WS, sB)
        A('s_waitcnt vmcnt(0)')
        A('s_memtime s[74:75]')
        A('s_waitcnt lgkmcnt(0)')
        A('s_sub_u32 s%d, s74, s72', sA)
        A('s_min_u32 s%d, s%d, s%d', s0_ + par, s0_ + par, sA)
    A('s_sub_u32 s%d, s%d, 1', sC, sC)
    A('s_cbranch_scc0 L_probe')
    A('s_cmp_lt_u32 s%d, s%d', s1_, s0_)
    A('s_cselect_b32 s%d, 3, 2', sA)
    if 'par' in OPT:
        A('s_xor_b32 s%d, s%d, %d', sA, sA, OPT['par'])
    A('s_lshl_b32 s%d, s%d, 24', sA, sA)
    A('v_mov_b32 v2, s%d', sA)
    A('v_mov_b32 v3, %d', D_INIT)
    A('buffer_atomic_add v2, v3, %s, 0 offen', DBG)
    A('s_mov_b64 exec, -1')


def emit():
    sROLE = 3
    lane = 1
    sOWN = 53
    A.label('L_SP')
    A('s_mov_b32 s%d, 1', sROLE)
    A('s_sub_u32 s%d, s%d, 16', sIDX, sT)
    A('s_branch L_C0')
    A.label('L_C')
    A('s_mov_b32 s%d, 0', sROLE)
    A('s_sub_u32 s%d, s%d, 16', sIDX, sT)
    A.label('L_C0')
    A('s_lshl_b32 s%d, s%d, 2', sSEG, sIDX)
    A('s_add_u32 s%d, s%d, s%d', sSEG, sSEG, sG)
    A.label('L_LN')
    layernorm()
    A('s_cmp_eq_u32 s%d, 1', sROLE)
    A('s_cbranch_scc1 L_C_nop')
    A('s_lshl_b32 s%d, s%d, 2', sHEAD, sIDX)
    A('s_add_u32 s%d, s%d, s%d', sHEAD, sHEAD, sW)
    A('v_mov_b32 v4, -1')
    A('v_lshlrev_b32 v9, 2, v%d', lane)
    loff(sB)
    for k in range(8):
        A('s_add_u32 s%d, s%d, %d', sA, sB, MG + MSTEP * (k >> 1) + 8192 * (k & 1))
        A('buffer_store_dword v4, v9, %s, s%d offen sc1', WS, sA)
    goff(sB, sG)
    for k in range(40):
        A('s_add_u32 s%d, s%d, %d', sA, sB, MG + GSLOT * (k >> 1) + 8192 * (k & 1))
        A('buffer_store_dword v4, v9, %s, s%d offen sc1', WS, sA)
    A('s_cmp_ge_u32 s%d, 20', sHEAD)
    A('s_cbranch_scc1 L_C_nop')
    A('s_mul_i32 s%d, s%d, 5120', sB, sG)
    A('s_lshl_b32 s%d, s%d, 8', sA, sHEAD)
    A('s_add_u32 s%d, s%d, s%d', sB, sB, sA)
    for k in range(3):
        A('s_add_u32 s%d, s%d, %d', sA, sB, PR + PSLOT * k)
        A('buffer_store_dword v4, v9, %s, s%d offen sc1', WS, sA)
    A.label('L_C_nop')
    A('s_waitcnt vmcnt(0)')
    A('s_barrier')
    arrive_init(2)
    stamp(1)
    A('s_cmp_eq_u32 s%d, 0', sROLE)
    A('s_cbranch_scc1 L_C_go')
    A('s_lshl_b32 s%d, s%d, 2', sA, sSEG)
    A('s_add_u32 s%d, s%d, s%d', sA, sA, sW)
    A('s_cmp_lg_u32 s%d, 160', sA)
    A('s_cbranch_scc1 L_end')
    probe()
    A('s_endpgm')
    A.label('L_C_go')
    role_c(sOWN)
    role_f()


def tsa(i):
    if not OPT.get('cst'):
        ts(i)


def tsb(i, mode=1):
    if OPT.get('cst') == mode:
        ts(i)


def role_c(sOWN):
    lane = 1
    PL, XL = 0, 8192
    vL16, vIDX2, vZLD, vPMX, vL4, vFL, vFA, vTG, vTA, vPW, vPW1, vT4, vG, vGP, vNEG, vBA = range(2, 18)
    TT = 20
    POH = 28
    PA = 32
    ACCC = 40
    XACC = 44
    PF = 52
    XF = 72
    XCH = 104
    BT = 116
    vGR = 120
    XL_ = 168
    Z = 128
    PS = 184
    sLP, sGP, sS1, sS2, sP0, sP1, sZ0, sZ1 = s0_, s1_, s2_, s3_, s4_, s5_, s6_, s7_
    sX0, sX1, sVO, sPO, sP2, sX2, sXT, sNEED, sS3, sZ2, sGS, sXW, sEV = 78, 79, 100, 101, 64, 65, 40, 69, 41, 42, 43, 44, 46
    sL0 = 45
    r_, g_, t0, t1 = range(TT, TT + 4)
    A('v_lshlrev_b32 v%d, 4, v%d', vL16, lane)
    A('v_lshlrev_b32 v%d, 2, v%d', vL4, lane)
    A('v_and_b32 v%d, 8, v%d', t0, lane)
    A('v_cmp_eq_u32 vcc, 0, v%d', t0)
    A('v_mov_b32 v%d, 0xe4e4', t0)
    A('v_mov_b32 v%d, 0x4e4e', t1)
    A('v_cndmask_b32 v%d, v%d, v%d, vcc', vIDX2, t0, t1)
    A('v_and_b32 v%d, 15, v%d', r_, lane)
    A('v_lshrrev_b32 v%d, 4, v%d', g_, lane)
    A('v_mul_u32_u24 v%d, 10240, v%d', t0, g_)
    A('v_lshl_add_u32 v%d, v%d, 4, v%d', vZLD, r_, t0)
    A('v_mul_u32_u24 v%d, 2560, v%d', t0, g_)
    A('v_lshl_add_u32 v%d, v%d, 4, v%d', vPMX, r_, t0)
    A('v_and_b32 v%d, 1, v%d', t0, g_)
    A('v_lshlrev_b32 v%d, 2, v%d', t0, t0)
    A('v_and_b32 v%d, 2, v%d', t1, g_)
    A('v_add_u32 v%d, v%d, v%d', t0, t0, t1)
    A('v_and_b32 v%d, 1, v%d', t1, r_)
    A('v_cmp_eq_u32 s[%d:%d], 0, v%d', sEV, sEV + 1, t1)
    A('v_add_u32 v%d, v%d, v%d', t0, t0, t1)
    A('v_bfe_u32 v%d, v%d, 1, 1', t1, r_)
    A('v_lshl_add_u32 v%d, v%d, 3, v%d', t0, t1, t0)
    A('v_lshrrev_b32 v%d, 2, v%d', t1, r_)
    A('v_lshlrev_b32 v%d, 2, v%d', t1, t1)
    A('v_lshl_add_u32 v%d, v%d, 4, v%d', vT4, t0, t1)
    A('v_and_b32 v%d, 7, v%d', t0, lane)
    A('s_mul_i32 s%d, s%d, 26', sA, sHEAD)
    A('s_lshr_b32 s%d, s%d, 8', sA, sA)
    A('s_lshl_b32 s%d, s%d, 2', sA, sA)
    A('s_lshl_b32 s%d, s%d, 10', sB, sG)
    A('s_add_u32 s%d, s%d, s%d', sA, sA, sB)
    A('s_add_u32 s%d, s%d, %d', sA, sA, FL_P2)
    A('v_lshl_add_u32 v%d, v%d, 7, s%d', vFA, t0, sA)
    A('v_lshlrev_b32 v%d, 2, v%d', vTA, t0)
    A('s_lshl_b32 s%d, s%d, 2', sA, sG)
    A('s_add_u32 s%d, s%d, s%d', sA, sA, sW)
    A('s_lshl_b32 s%d, s%d, 5', sA, sA)
    A('s_add_u32 s%d, s%d, %d', sXT, sA, XTAG)
    A('s_lshl_b32 s%d, s%d, 8', sA, sG)
    A('s_add_u32 s%d, s%d, %d', sA, sA, BELL)
    A('v_add_u32 v%d, s%d, v%d', vBA, sA, vTA)
    A('v_mov_b32 v%d, 0', vFL)
    A('v_mov_b32 v%d, 0', vTG)
    A('v_mov_b32 v%d, -1', vNEG)
    A('s_lshl_b32 s%d, s%d, 10', sA, sW)
    A('v_add_u32 v%d, s%d, v%d', vPW, sA, vL16)
    A('s_lshl_b32 s%d, s%d, 8', sA, sW)
    A('s_add_u32 s%d, s%d, 4096', sA, sA)
    A('v_add_u32 v%d, s%d, v%d', vPW1, sA, vL4)
    A('v_bfe_u32 v%d, v%d, 2, 3', t0, lane)
    A('v_mul_u32_u24 v%d, 1280, v%d', t0, t0)
    A('v_and_b32 v%d, 3, v%d', t1, lane)
    A('v_lshl_add_u32 v%d, v%d, 3, v%d', t0, t1, t0)
    A('v_lshrrev_b32 v%d, 5, v%d', t1, lane)
    A('v_lshl_add_u32 v%d, v%d, 2, v%d', t0, t1, t0)
    A('s_lshl_b32 s%d, s%d, 5', sA, sHEAD)
    A('buffer_load_dword v%d, v%d, %s, s%d offen', POH, t0, MEM0, sA)
    wait_init(TT, par=True)
    stamp(2)
    A('s_bfe_u32 s%d, s%d, 0x10018', sGS, sA)
    A('s_lshl_b32 s%d, s%d, 13', sGS, sGS)
    for k, r in enumerate((sGP, sS1, sS2, sS3)):
        A('s_add_u32 s%d, s%d, %d', sB, sG, k)
        goff(r, sB)
        A('s_add_u32 s%d, s%d, s%d', r, r, sGS)
        A('s_add_u32 s%d, s%d, %d', r, r, MG)
    loff(sL0)
    A('s_xor_b32 s%d, s%d, 8192', sA, sGS)
    A('s_add_u32 s%d, s%d, s%d', sL0, sL0, sA)
    A('s_add_u32 s%d, s%d, %d', sL0, sL0, MG)
    A('v_min_u32 v%d, -2, v%d', POH, POH)
    A('buffer_store_dword v%d, v%d, %s, s%d offen sc1', POH, vL4, WS, sL0)
    A('s_lshl_b32 s%d, s%d, 8', sB, sHEAD)
    A('s_mul_i32 s%d, s%d, 5120', sP0, sG)
    A('s_add_u32 s%d, s%d, %d', sP0, sP0, PR)
    A('s_add_u32 s%d, s%d, %d', sP1, sP0, PSLOT)
    A('s_add_u32 s%d, s%d, %d', sP2, sP0, 2 * PSLOT)
    A('s_mul_i32 s%d, s%d, 81920', sZ0, sG)
    A('s_add_u32 s%d, s%d, s%d', sZ0, sZ0, sB)
    A('s_add_u32 s%d, s%d, %d', sZ0, sZ0, ZL)
    A('s_add_u32 s%d, s%d, %d', sZ1, sZ0, 32 * 10240)
    A('s_add_u32 s%d, s%d, %d', sZ2, sZ0, 64 * 10240)
    A('s_mul_i32 s%d, s%d, 5120', sXW, sW)
    A('s_mul_i32 s%d, s%d, 20480', sX2, sG)
    A('s_add_u32 s%d, s%d, s%d', sX2, sX2, sXW)
    A('s_add_u32 s%d, s%d, %d', sX2, sX2, PXR)
    A('s_add_u32 s%d, s%d, %d', sX0, sX2, 32 * 2560)
    A('s_add_u32 s%d, s%d, %d', sX1, sX2, 64 * 2560)
    A('s_mul_i32 s%d, s%d, %d', sVO, sG, 8 * 40960)
    A('s_lshl_b32 s%d, s%d, 10', sA, sHEAD)
    A('s_add_u32 s%d, s%d, s%d', sVO, sVO, sA)
    A('s_add_u32 s%d, s%d, %d', sVO, sVO, VO)
    A('s_mul_i32 s%d, s%d, %d', sPO, sG, POG)
    A('s_add_u32 s%d, s%d, s%d', sPO, sPO, sA)
    A('s_add_u32 s%d, s%d, %d', sPO, sPO, PO - 3 * NG * POG)
    assert PO - 3 * NG * POG >= ZL + 96 * 10240 and PO + 64 * NG * POG <= VO
    A('s_mov_b32 s%d, 0', sSEG)
    A('s_cmp_lg_u32 s%d, 0', sMODE)
    A('s_cbranch_scc1 L_C_slow')

    def xcombine(ab, mid=(), valu=()):
        A('s_add_u32 m0, s%d, %d', sXW, XL)
        for i in range(4):
            A('buffer_load_dwordx4 v%d, %s, s%d offen offset:%d sc1 lds', vL16, WS, sX0, 1024 * i)
        A('s_add_u32 m0, s%d, %d', sXW, XL + 4096)
        A('s_add_u32 s%d, s%d, 4096', sA, sX0)
        A('buffer_load_dwordx4 v%d, %s, s%d offen sc1 lds', vL16, WS, sA)
        for op in mid:
            for ln in op:
                A(ln)
        A('s_waitcnt vmcnt(%d)', len(mid))
        A('s_barrier')
        tsb(1)
        S = Stream(A)
        rd = ['ds_read_b128 %s, v%d offset:%d' % (v(XF + 4 * (n % 8), 4), vL16, XL + 2560 * (n >> 1) + 1024 * (n & 1)) for n in range(16)]
        rd += ['ds_read_b128 %s, v%d offset:%d' % (v(XF + 4 * (n % 8), 4), vPMX, XL + 10240 * ((n >> 1) & 1) + 2048 + 256 * (n & 1)) for n in range(16, 20)]
        for ln in rd[:6]:
            S(ln)
        valu = list(valu)
        for n in range(20):
            d = v(XACC + 4 * (n & 1), 4)
            S('v_mfma_f32_16x16x32_bf16 %s, %s, %s, %s', d, a_(ab + 4 * (n >> 1), 4), v(XF + 4 * (n % 8), 4), '0' if n < 2 else d)
            if n + 6 < 20:
                S(rd[n + 6])
            if valu:
                A(valu.pop(0))
        assert not valu
        rot3(sX0, sX1, sX2)
        for i in range(4):
            A('v_cvt_pk_bf16_f32 v%d, v%d, v%d', POH + i, XACC + 2 * i, XACC + 2 * i + 1)

    def po_store():
        A('buffer_store_dwordx4 %s, v%d, %s, s%d offen sc1', v(POH, 4), vL16, WS, sPO)
        A('s_add_u32 s%d, s%d, %d', sPO, sPO, NG * POG)

    late = []

    def bookkeeping():
        rot3(sP0, sP1, sP2)
        rot3(sZ0, sZ1, sZ2)
        if not OPT.get('fixvo'):
            A('s_add_u32 s%d, s%d, %d', sVO, sVO, 40 * 40960)

    def body(ab, sc):
        ND = OPT.get('nd', 2)
        A('s_add_u32 s%d, s%d, 1', sNEED, sSEG)
        gate(vFL, vFA, '0', sNEED)
        vo = [['s_add_u32 s%d, s%d, %d' % (sB, sVO, 40960 * j),
               'buffer_load_dwordx4 %s, v%d, %s, s%d offen sc1%s' % (v(Z + 4 * j, 4), vL16, WS, sB, ntc(2))] for j in range(8)]
        mem_slot(sLP, sL0, 2)
        vo.insert(0, ['buffer_store_dword v%d, v%d, %s, s%d offen%s' % (vNEG, vL4, WS, sLP, sc)])
        vo.append(['buffer_store_dwordx4 %s, v%d, %s, s%d offen sc1' % (v(POH, 4), vL16, WS, sPO),
                   's_add_u32 s%d, s%d, %d' % (sPO, sPO, NG * POG)])
        ts(0)
        valu = ['v_mov_b32 v%d, 0' % r for r in list(range(ACCC, ACCC + 4)) + list(range(XCH, XCH + 3 * ND))]
        assert ND <= 3
        NR = OPT.get('nr', 3)
        RSTR = 4 * GSLOT
        valu.append('s_add_u32 s%d, s%d, 1\ns_and_b32 s%d, s%d, 3\ns_mul_i32 s%d, s%d, %d\nv_add_u32 v%d, s%d, v%d' %
                    (sA, sSEG, sA, sA, sA, sA, GSLOT, vG, sA, vL4))
        valu += ['v_add_u32 v%d, %d, v%d' % (vGR + r, RSTR * (r + 1), vG) for r in range(NR)]
        A('s_add_u32 s%d, s%d, 2', sA, sSEG)
        A('s_and_b32 s%d, s%d, 3', sA, sA)
        A('s_mul_i32 s%d, s%d, %d', sA, sA, GSLOT)
        A('v_add_u32 v%d, s%d, v%d', vGP, sA, vL4)
        for r in range(NR + 1):
            vo.append(['s_add_u32 s%d, s%d, %d' % (sB, sGP, RSTR * r), 'buffer_store_dword v%d, v%d, %s, s%d offen sc1' % (vNEG, vGP, WS, sB)])
        xcombine(ab, vo, valu)
        tsa(1)
        tsb(2)
        if OPT.get('cst') == 1:
            A('s_waitcnt vmcnt(0)')
            ts(3)
        mem_slot(sLP, sL0, 1)
        A('s_add_u32 s%d, s%d, 40960', sB, sZ0)
        zl = ['buffer_load_dwordx4 %s, v%d, %s, s%d offen sc1' % (v(Z + 32 + 4 * h, 4), vZLD, WS, (sZ0, sB)[h]) for h in range(2)]
        pl = ['buffer_load_dwordx4 %s, v%d, %s, s%d offen sc1' % (v(PA, 4), vPW, WS, sP0),
              'buffer_load_dword v%d, v%d, %s, s%d offen sc1' % (PA + 4, vPW1, WS, sP0)]
        if OPT.get('csl', 0):
            A('s_sleep %d', OPT['csl'])
        for r in list(range(PA, PA + 5)) + list(range(Z + 32, Z + 40)):
            A('v_mov_b32 v%d, -1', r)
        A('s_waitcnt vmcnt(0)')
        late.append(masked_poll(pl + zl, [PA, [PA + 4], Z + 32, Z + 36], TT, 56, depth=OPT.get('pp', 2), ngate=2))
        tsa(2)
        tsa(3)
        if ab:
            A('s_cmp_eq_u32 s%d, 63', sSEG)
            A('s_cbranch_scc1 L_C_last')
        A('ds_write_b128 v%d, %s offset:%d', vPW, v(PA, 4), PL)
        A('ds_write_b32 v%d, v%d offset:%d', vPW1, PA + 4, PL)
        A('s_waitcnt lgkmcnt(0)')
        tsa(4)
        A('s_barrier')
        tsa(5)
        for f in range(5):
            A('ds_read_b128 %s, v%d offset:%d', v(PF + 4 * f, 4), vL16, PL + 1024 * f)
        late.append(masked_poll(zl, [Z + 32, Z + 36], TT, 56, issued=2, nowait=True))
        A('s_mov_b64 vcc, s[%d:%d]', sEV, sEV + 1)
        for f in range(5):
            A('s_waitcnt lgkmcnt(%d)', 4 - f)
            A('v_smfmac_f32_16x16x64_bf16 %s, %s, %s, v%d', v(ACCC, 4), v(PF + 4 * f, 4), v(Z + 8 * f, 8), vIDX2)
        A('v_permlane32_swap_b32 v%d, v%d', ACCC, ACCC + 2)
        A('v_permlane32_swap_b32 v%d, v%d', ACCC + 1, ACCC + 3)
        A('v_pk_add_f32 %s, %s, %s', v(ACCC, 2), v(ACCC, 2), v(ACCC + 2, 2))
        dpp = 'quad_perm:[1,0,3,2] row_mask:0xf bank_mask:0xf'
        A('v_cndmask_b32_dpp v%d, v%d, v%d, vcc %s', ACCC + 2, ACCC + 1, ACCC, dpp)
        A('s_not_b64 vcc, vcc')
        A('v_cndmask_b32_dpp v%d, v%d, v%d, vcc %s', ACCC + 3, ACCC, ACCC + 1, dpp)
        A('v_cvt_pk_bf16_f32 v%d, v%d, v%d', ACCC, ACCC + 2, ACCC + 3)
        tsb(1, 2)
        for r in range(NR):
            A('buffer_store_dword v%d, v%d, %s, s%d offen sc1', ACCC, vGR + r, WS, sGP)
        if OPT.get('cst') != 2:
            ts(6)
        A('buffer_store_dword v%d, v%d, %s, s%d offen sc1', ACCC, vG, WS, sGP)
        mv = ['v_accvgpr_write_b32 a%d, v%d' % (ab + i, Z + i) for i in range(40)]

        def x_issue(k):
            for h, so in enumerate((sS1, sS2, sS3)):
                A('buffer_atomic_or v%d, v%d, %s, s%d offen sc0', XCH + 3 * k + h, vG, WS, so)
        xp = [int(x) for x in OPT.get('xp', '60,118,175').split(',')]
        work = list(mv)
        pos = 0
        done_bk = False
        for r in range(NR):
            while pos < xp[r]:
                if work:
                    A(work.pop(0)); pos += 1
                elif not done_bk:
                    bookkeeping(); done_bk = True; pos += 9
                elif xp[r] - pos >= 16:
                    n = (xp[r] - pos) // 16
                    A('s_sleep %d', n); pos += 16 * n
                else:
                    break
            if r == 0:
                tsb(2, 2)
            for h, so in enumerate((sS1, sS2, sS3)):
                A('buffer_load_dword v%d, v%d, %s, s%d offen sc1', XL_ + 3 * r + h, vGR + r, WS, so)
            pos += 14
        for ln in work:
            A(ln)
        if not done_bk:
            bookkeeping()
        L, J, R = A.newlabel('Lc3'), A.newlabel('Lc3j'), A.newlabel('Lc3r')
        DL = [A.newlabel('Lc3l') for _ in range(max(NR, 1))]
        DD = [A.newlabel('Lc3d') for _ in range(ND)]

        def unpack(x):
            for h in range(3):
                A('v_lshlrev_b32 v%d, 16, v%d', TT + 2 * h, x + h)
                A('v_and_b32 v%d, 0xffff0000, v%d', TT + 2 * h + 1, x + h)

        def check(x, n):
            A('s_waitcnt vmcnt(%d)', n)
            A('v_max3_u32 v%d, v%d, v%d, v%d', TT, x, x + 1, x + 2)
            A('v_cmp_eq_u32 vcc, -1, v%d', TT)
        x0 = XL_ if NR else XCH
        if OPT.get('cst') == 2:
            ts(3)
            A('s_waitcnt vmcnt(%d)', 3 * NR + NR)
            ts(4)
            A('s_waitcnt vmcnt(%d)', 3 * NR)
            ts(5)
            A('s_waitcnt vmcnt(%d)', 3 * NR - 3)
            ts(6)
        check(x0, 3 * (NR - 1) if NR else 0)
        A('s_cbranch_vccnz %s', R)
        unpack(x0)
        A.label(J)

        def rest():
            A.label(R)
            if NR == 0:
                for h in range(3):
                    A('v_mov_b32 v%d, 0', XCH + h)
            for r in range(1, NR):
                extra = 0
                if r == NR - 1:
                    x_issue(0)
                    extra = 3
                check(XL_ + 3 * r, 3 * (NR - 1 - r) + extra)
                A('s_cbranch_vccz %s', DL[r])
            for k in range(0 if NR < 2 else 1, ND):
                if k:
                    A('s_sleep %d', OPT.get('asl', 3))
                x_issue(k)
            A.label(L)
            for k in range(ND):
                check(XCH + 3 * k, 3 * ND - 3)
                A('s_cbranch_vccz %s', DD[k])
                for h in range(3):
                    A('v_mov_b32 v%d, 0', XCH + 3 * k + h)
                x_issue(k)
            A('s_sub_u32 s%d, s%d, 1', sBUD, sBUD)
            A('s_cbranch_scc0 %s', L)
            A('s_mov_b32 s%d, 0', sBUD)
            for lab, x in [(DD[k], XCH + 3 * k) for k in range(ND)] + [(DL[r], XL_ + 3 * r) for r in range(1, NR)]:
                A.label(lab)
                unpack(x)
                A('s_branch %s', J)
        late.append(rest)
        ts(7)
        A('v_pk_add_f32 %s, %s, %s', v(TT, 2), v(TT, 2), v(TT + 2, 2))
        A('v_pk_add_f32 %s, %s, %s', v(ACCC + 2, 2), v(ACCC + 2, 2), v(TT + 4, 2))
        A('v_pk_add_f32 %s, %s, %s', v(TT, 2), v(TT, 2), v(ACCC + 2, 2))
        A('v_cvt_pk_bf16_f32 v%d, v%d, v%d', ACCC, TT, TT + 1)
        A('buffer_store_dword v%d, v%d, %s, s%d offen%s', ACCC, vT4, WS, sLP, sc)
        ts(8)
        ts(9)
        A('s_barrier')
        if OPT['memdbg']:
            A('s_mul_i32 s%d, s%d, 40960', sA, sSEG)
            A('s_mul_i32 s%d, s%d, 10240', sB, sG)
            A('s_add_u32 s%d, s%d, s%d', sA, sA, sB)
            A('s_lshl_b32 s%d, s%d, 8', sB, sHEAD)
            A('s_add_u32 s%d, s%d, s%d', sA, sA, sB)
            A('s_add_u32 s%d, s%d, %d', sA, sA, MEMDBG)
            A('buffer_store_dword v%d, v%d, %s, s%d offen', ACCC, vT4, WS, sA)
        trace_dump(TT + 6)
        A('s_add_u32 s%d, s%d, 1', sSEG, sSEG)

    for tag, sc in (('fast', ''), ('slow', ' sc1')):
        A.label('L_C_%s' % tag)
        body(0, sc)
        body(40, sc)
        A('s_branch L_C_%s', tag)
        while late:
            late.pop()()
    A.label('L_C_last')
    zl = ['buffer_load_dwordx4 %s, v%d, %s, s%d offen sc1' % (v(Z + 32 + 4 * h, 4), vZLD, WS, (sZ0, sB)[h]) for h in range(2)]
    late.append(masked_poll(zl, [Z + 32, Z + 36], TT, 56, issued=2))
    for i in range(40):
        A('v_accvgpr_write_b32 a%d, v%d', 40 + i, Z + i)
    A('s_mov_b32 s%d, 64', sSEG)
    A('s_barrier')
    po_store()
    xcombine(0)
    po_store()
    gate(vTG, vTA, 's%d' % sXT, sSEG, sleep=0)
    A('s_barrier')
    xcombine(40)
    po_store()
    r_finish(TT)
    finish_role(6)
    late.pop()()


def role_f():
    A.label('L_F_go')
    lane = 1
    vL16, vFA1, vFA2, vFL1, vFL2, vXO = 0, 4, 5, 6, 7, 8
    ID = 12
    TT = 18
    XR = 24
    ACC = 40
    POR = 64
    FO = 128
    sVO, sPO, sNEED, sOUT, sT0, sCU = s0_, s1_, s3_, s4_, s5_, s6_
    sOF = 40
    identity(lane, ID, None)
    A('v_mov_b32 v%d, 0', ID + 2)
    A('v_mov_b32 v%d, 0', ID + 3)
    A('v_mov_b32 v%d, v%d', ID + 4, ID)
    A('v_mov_b32 v%d, v%d', ID + 5, ID + 1)
    A('v_lshlrev_b32 v%d, 4, v%d', vL16, lane)
    A('s_and_b32 s%d, s%d, 3', sCU, sIDX)
    A('v_and_b32 v2, 7, v%d', lane)
    A('s_lshl_b32 s%d, s%d, 2', sA, sCU)
    A('s_bfe_u32 s%d, s%d, 0x20002', sB, sIDX)
    A('s_lshl_b32 s%d, s%d, 10', sB, sB)
    A('s_add_u32 s%d, s%d, s%d', sA, sA, sB)
    A('s_add_u32 s%d, s%d, %d', sA, sA, FL_P2 + 32 * 128)
    A('v_lshl_add_u32 v%d, v2, 7, s%d', vFA1, sA)
    A('v_mov_b32 v%d, %d', vFA2, D_PROG)
    A('v_mov_b32 v%d, 0', vFL1)
    A('v_mov_b32 v%d, 0', vFL2)
    A('s_mul_i32 s%d, s%d, 5', sA, sW)
    A('s_lshr_b32 s%d, s%d, 1', sA, sA)
    A('s_mul_i32 s%d, s%d, 10', sT0, sCU)
    A('s_add_u32 s%d, s%d, s%d', sT0, sT0, sA)
    A('v_lshrrev_b32 v2, 4, v%d', lane)
    A('v_and_b32 v3, 15, v%d', lane)
    A('v_mul_u32_u24 v%d, 1280, v3', vXO)
    A('v_lshl_add_u32 v%d, v2, 3, v%d', vXO, vXO)
    A('s_lshl_b32 s%d, s%d, 5', sA, sT0)
    A('v_add_u32 v%d, s%d, v%d', vXO, sA, vXO)
    A('s_lshl_b32 s%d, s%d, 10', sT0, sT0)
    A('s_lshr_b32 s%d, s%d, 2', sSEG, sIDX)
    A.label('L_F_loop')
    A('s_add_u32 s%d, s%d, 1', sNEED, sSEG)
    A('s_mul_i32 s%d, s%d, %d', sVO, sSEG, 40 * 40960)
    A('s_add_u32 s%d, s%d, s%d', sVO, sVO, sT0)
    A('s_add_u32 s%d, s%d, %d', sVO, sVO, VO + 32 * 40960)
    A('s_mul_i32 s%d, s%d, %d', sPO, sSEG, NG * POG)
    A('s_add_u32 s%d, s%d, s%d', sPO, sPO, sT0)
    A('s_add_u32 s%d, s%d, %d', sPO, sPO, PO)
    A('s_mul_i32 s%d, s%d, 40960', sOUT, sSEG)
    A('s_add_u32 s%d, s%d, 20480', sB, sOUT)
    A('s_lshr_b32 s%d, s%d, 2', s7_, sSEG)
    A('s_add_u32 s%d, s%d, 1', s7_, s7_)
    gate(vFL1, vFA1, '0', s7_, sleep=8)
    for j in range(8):
        A('s_add_u32 s%d, s%d, %d', sA, sVO, j * 40960)
        for t in range(3):
            A('buffer_load_dwordx4 %s, v%d, %s, s%d offen offset:%d sc1%s', v(FO + (3 * j + t) * 4, 4), vL16, WS, sA, 1024 * t, ntc(8))
    for t in range(3):
        for qt in range(2):
            A('buffer_load_dwordx2 %s, v%d, %s, s%d offen offset:%d', v(XR + 4 * t + 2 * qt, 2), vXO, XS, sB if qt else sOUT, 32 * t)
    for j in range(8):
        A('s_waitcnt vmcnt(%d)', 6 + 3 * (7 - j))
        for t in range(3):
            for qt in range(2):
                d = v(ACC + (2 * t + qt) * 4, 4)
                A('v_mfma_f32_16x16x32_bf16 %s, %s, %s, %s', d, v(FO + (3 * j + t) * 4, 4), v(ID + 2 * qt, 4), '0' if j == 0 else d)
    A('s_waitcnt vmcnt(0)')
    for t in range(3):
        for qt in range(2):
            d = v(ACC + (2 * t + qt) * 4, 4)
            A('v_mfma_f32_16x16x16_bf16 %s, %s, %s, %s', d, v(ID, 2), v(XR + 4 * t + 2 * qt, 2), d)
    A('s_max_u32 s%d, s%d, 5', sA, sNEED)
    A('s_sub_u32 s%d, s%d, 5', s7_, sA)
    gate(vFL2, vFA2, '0', s7_, sleep=64, buf=DBG)
    gate(vFL2, vFA2, '0', sNEED, sleep=OPT.get('fsl', 6), buf=DBG)
    stamp(3)
    for x in range(NG):
        A('s_add_u32 s%d, s%d, %d', sC, sPO, x * POG)
        for t in range(3):
            A('buffer_load_dwordx4 %s, v%d, %s, s%d offen offset:%d sc1', v(POR + (3 * x + t) * 4, 4), vL16, WS, sC, 1024 * t)
    for x in range(NG):
        A('s_waitcnt vmcnt(%d)', 3 * (NG - 1 - x))
        for t in range(3):
            for qt in range(2):
                d = v(ACC + (2 * t + qt) * 4, 4)
                A('v_mfma_f32_16x16x16_bf16 %s, %s, %s, %s', d, v(ID, 2), v(POR + (3 * x + t) * 4 + 2 * qt, 2), d)
    for t in range(3):
        for qt in range(2):
            a = ACC + (2 * t + qt) * 4
            o = XR + 4 * t + 2 * qt
            A('v_cvt_pk_bf16_f32 v%d, v%d, v%d', o, a, a + 1)
            A('v_cvt_pk_bf16_f32 v%d, v%d, v%d', o + 1, a + 2, a + 3)
            A('buffer_store_dwordx2 %s, v%d, %s, s%d offen offset:%d', v(o, 2), vXO, OUT, sB if qt else sOUT, 32 * t)
    stamp(8)
    A('s_add_u32 s%d, s%d, 8', sSEG, sSEG)
    A('s_cmp_lt_u32 s%d, 64', sSEG)
    A('s_cbranch_scc1 L_F_loop')
    finish_role(5)
```

```python
import sys
from asmlib import Asm, Stream, v, a_, s
from layout import *

OPT = dict(stamp=0, force_slow=0, roles='all', memdbg=0)
for arg in sys.argv[2:]:
    k, val = arg.split('=')
    OPT[k] = val if k in ('roles', 'sq', 'sv', 'qp', 'xc', 'xp') else int(val)

A = Asm()
sW, sT, sG, sMODE = 4, 5, 6, 7
WS, XS, WA, WB, OUT, DBG, MEM0 = 's[8:11]', 's[12:15]', 's[16:19]', 's[20:23]', 's[24:27]', 's[28:31]', 's[32:35]'
sBUD = 36
sA, sB, sC = 37, 38, 39
pX, pMEM0, pWQ, pWK, pWV, pWO, pW1, pW2, pOUT, pDBG, pWS = 40, 42, 44, 46, 48, 50, 56, 58, 60, 62, 64
sSEG, sIDX, sHEAD = 66, 67, 68
s0_, s1_, s2_, s3_, s4_, s5_, s6_, s7_ = range(70, 78)
sPH, sNSEG, sSTRD = 3, 69, 52
BUDGET = 1 << 16
D_INIT = 36
D_FAIL = 44
D_LN2 = 40
D_FIN = 48
D_PROG = 132


def ntc(bit):
    return ' nt' if OPT.get('ntc', 15) & bit else ''


def srd(base, ptr, nbytes):
    A('s_mov_b32 s%d, s%d', base, ptr)
    A('s_and_b32 s%d, s%d, 0xffff', base + 1, ptr + 1)
    A('s_mov_b32 s%d, 0x%x', base + 2, nbytes)
    A('s_mov_b32 s%d, 0x20000', base + 3)


def poll_tail(loop, done, sleep=0):
    if sleep:
        A('s_sleep %d', sleep)
    A('s_sub_u32 s%d, s%d, 1', sBUD, sBUD)
    A('s_cbranch_scc0 %s', loop)
    A('s_mov_b32 s%d, 0', sBUD)
    A.label(done)


def stamp(idx, vt=None):
    if OPT['stamp']:
        A('s_memrealtime s[%d:%d]', 80 + 2 * idx, 81 + 2 * idx)


def tstamp(idx):
    if OPT.get('trace'):
        return '%s s[%d:%d]' % ('s_memrealtime' if idx == 9 else 's_memtime', 80 + 2 * idx, 81 + 2 * idx)
    return None


def ts(idx):
    t = tstamp(idx)
    if t:
        A(t)


def trace_dump(vt):
    if not OPT.get('trace'):
        return
    A('s_waitcnt lgkmcnt(0)')
    for i in range(10):
        A('v_writelane_b32 v%d, s%d, %d', vt, 80 + 2 * i, i)
    A('v_mbcnt_lo_u32_b32 v%d, -1, 0', vt + 1)
    A('v_lshlrev_b32 v%d, 2, v%d', vt + 1, vt + 1)
    A('s_lshl_b32 s%d, s%d, 5', sA, sG)
    A('s_add_u32 s%d, s%d, s%d', sA, sA, sT)
    A('s_lshl_b32 s%d, s%d, 2', sA, sA)
    A('s_add_u32 s%d, s%d, s%d', sA, sA, sW)
    A('s_lshl_b32 s%d, s%d, 6', sA, sA)
    A('s_add_u32 s%d, s%d, s%d', sA, sA, sSEG)
    A('s_lshl_b32 s%d, s%d, 6', sA, sA)
    A('s_add_u32 s%d, s%d, %d', sA, sA, TRACE)
    A('s_mov_b64 exec, 0x3ff')
    A('buffer_store_dword v%d, v%d, %s, s%d offen', vt, vt + 1, WS, sA)
    A('s_mov_b64 exec, -1')


def dl_stamp(word, vt, absolute=False):
    if not OPT.get('dl'):
        return
    A('s_memrealtime s[96:97]')
    A('s_waitcnt lgkmcnt(0)')
    A('s_and_b32 s96, s%d, 0xfffffff', 98 if absolute else 96)
    A('v_mov_b32 v%d, s96', vt)
    A('v_mov_b32 v%d, %d', vt + 1, 4 * word)
    A('s_mov_b64 exec, 1')
    A('buffer_atomic_umax v%d, v%d, %s, 0 offen', vt, vt + 1, DBG)
    A('s_mov_b64 exec, -1')


def light_stamp(vt):
    if not OPT.get('lt'):
        return
    A('s_memrealtime s[96:97]')
    A('s_waitcnt lgkmcnt(0)')
    A('v_mov_b32 v%d, s96', vt)
    A('v_mov_b32 v%d, s98', vt + 1)
    A('s_lshl_b32 s%d, s%d, 6', sA, sHEAD)
    A('s_add_u32 s%d, s%d, s%d', sA, sA, sSEG)
    A('s_lshl_b32 s%d, s%d, 3', sA, sA)
    A('s_add_u32 s%d, s%d, %d', sA, sA, TRACE)
    A('s_mov_b64 exec, 1')
    A('buffer_store_dwordx2 %s, off, %s, s%d', v(vt, 2), WS, sA)
    A('s_mov_b64 exec, -1')


def arrive_init(vt):
    L = A.newlabel('Larr')
    A('s_cmp_lg_u32 s%d, 0', sW)
    A('s_cbranch_scc1 %s', L)
    A('s_lshl_b32 s%d, s%d, 16', sA, sMODE)
    A('s_add_u32 s%d, s%d, 1', sA, sA)
    A('s_mov_b64 exec, 1')
    A('v_mov_b32 v%d, s%d', vt, sA)
    A('v_mov_b32 v%d, %d', vt + 1, D_INIT)
    A('buffer_atomic_add v%d, v%d, %s, 0 offen', vt, vt + 1, DBG)
    A('s_mov_b64 exec, -1')
    A.label(L)


def arrive_once():
    L = A.newlabel('Lao')
    A('s_cmp_lg_u32 s%d, 0', sPH)
    A('s_cbranch_scc1 %s', L)
    arrive_init(2)
    A.label(L)


def wait_init(vt, lds=163836, par=False):
    L, D = A.newlabel('Lwi'), A.newlabel('Lwid')
    A('v_mov_b32 v%d, %d', vt + 1, D_INIT)
    A('s_cmp_lg_u32 s%d, 0', sW)
    K = A.newlabel('Lwik')
    A('s_cbranch_scc1 %s', K)
    A.label(L)
    A('buffer_load_dword v%d, v%d, %s, 0 offen sc1', vt, vt + 1, DBG)
    A('s_waitcnt vmcnt(0)')
    A('v_readfirstlane_b32 s%d, v%d', sA, vt)
    A('s_and_b32 s%d, s%d, 0x%x', sB, sA, 0x200ffff if par else 0xffff)
    A('s_cmp_eq_u32 s%d, 0x%x', sB, 0x2000100 if par else 0x100)
    A('s_cbranch_scc1 %s', D)
    poll_tail(L, D, sleep=6)
    A('v_mov_b32 v%d, %d', vt + 1, lds)
    A('ds_write_b32 v%d, v%d', vt + 1, vt)
    A('s_waitcnt lgkmcnt(0)')
    A.label(K)
    A('s_waitcnt vmcnt(0)')
    A('s_barrier')
    A('v_mov_b32 v%d, %d', vt + 1, lds)
    A('ds_read_b32 v%d, v%d', vt, vt + 1)
    A('s_waitcnt lgkmcnt(0)')
    A('v_readfirstlane_b32 s%d, v%d', sA, vt)
    A('s_bfe_u32 s%d, s%d, 0x80010', sMODE, sA)


def zero_flag(vt, sflag):
    A('s_mov_b64 exec, 1')
    A('v_mov_b32 v%d, 0', vt)
    A('buffer_store_dword v%d, v%d, %s, s%d offen sc1', vt, vt, WS, sflag)
    A('s_mov_b64 exec, -1')


SLOT = 24576
NT = ['']
NSLOT = 6
sLW6, sLW5, sSTR = 90, 91, 92


def stages_n192(srdname, srs, scol, dest, lane, setup=True):
    vo, va, vb = 4, 10, 13
    t0, t1, t2 = 16, 17, 18
    if setup:
        for i in range(6):
            A('v_add_u32 v%d, %d, v%d', t0, 64 * i, lane)
            A('v_mul_u32_u24 v%d, 2731, v%d', t1, t0)
            A('v_lshrrev_b32 v%d, 16, v%d', t1, t1)
            A('v_mul_u32_u24 v%d, 24, v%d', t2, t1)
            A('v_sub_u32 v%d, v%d, v%d', t0, t0, t2)
            A('v_and_b32 v%d, 2, v%d', t2, t1)
            A('v_xor_b32 v%d, v%d, v%d', t0, t0, t2)
            A('v_and_b32 v%d, 8, v%d', t2, t1)
            A('v_lshrrev_b32 v%d, 1, v%d', t2, t2)
            A('v_xor_b32 v%d, v%d, v%d', t0, t0, t2)
            A('s_lshl_b32 s%d, s%d, 4', sA, sW)
            A('v_add_u32 v%d, s%d, v%d', t1, sA, t1)
            A('v_mul_lo_u32 v%d, v%d, s%d', t1, t1, srs)
            A('v_lshl_add_u32 v%d, v%d, 4, v%d', t0, t0, t1)
            A('v_add_u32 v%d, s%d, v%d', vo + i, scol, t0)
        A('v_lshrrev_b32 v%d, 4, v%d', t0, lane)
        A('v_bfe_u32 v%d, v%d, 2, 2', t1, lane)
        A('v_lshl_add_u32 v%d, v%d, 3, v%d', t2, t0, t1)
        A('v_mul_u32_u24 v%d, 384, v%d', vb, t2)
        A('v_and_b32 v%d, 1, v%d', vb + 1, lane)
        A('v_lshl_add_u32 v%d, v%d, 3, v%d', vb, vb + 1, vb)
        A('v_and_b32 v%d, 2, v%d', t1, t1)
        A('v_and_b32 v%d, 1, v%d', t0, t0)
        A('v_lshl_or_b32 v%d, v%d, 2, v%d', t1, t0, t1)
        A('v_bfe_u32 v%d, v%d, 1, 1', t0, lane)
        A('s_mul_i32 s%d, s%d, 6', sA, sW)
        for t in range(3):
            A('v_add_u32 v%d, s%d, v%d', t2, sA, t0)
            A('v_add_u32 v%d, %d, v%d', t2, 2 * t, t2)
            A('v_xor_b32 v%d, v%d, v%d', t2, t2, t1)
            A('v_lshl_add_u32 v%d, v%d, 4, v%d', va + t, t2, vb)
        A('s_mul_i32 s%d, s%d, 6144', sLW6, sW)
        A('s_lshl_b32 s%d, s%d, 6', sSTR, srs)

    def mk(st):
        def issue(base):
            A('s_mul_i32 s%d, s%d, %d', sA, sSTR, st)
            for i in range(6):
                A('s_add_u32 m0, s%d, %d', sLW6, base + i * 1024)
                A('buffer_load_dwordx4 v%d, %s, s%d offen%s lds', vo + i, srdname, sA, NT[0])

        def consume(w, base):
            for t in range(3):
                A('v_add_u32 v%d, %d, v%d', vb + t, base, va + t)
            for kkl in range(2):
                for j in range(2):
                    for t in range(3):
                        A('ds_read_b64_tr_b16 %s, v%d offset:%d', dest(w, st, kkl, j, t), vb + t, (32 * kkl + 4 * j) * 384)
        return (issue, consume, 6)
    return [mk(st) for st in range(10)]


def stages_k192(srdname, sbase, dest, lane):
    vo, va = 19, 4
    t0, t1, t2, t3 = 2, 3, 16, 17
    A('s_lshl_b32 s%d, s%d, 2', sA, sW)
    for i in range(5):
        A('v_add_u32 v%d, %d, v%d', t0, 64 * i, lane)
        A('v_mul_u32_u24 v%d, 820, v%d', t1, t0)
        A('v_lshrrev_b32 v%d, 16, v%d', t1, t1)
        A('v_mul_u32_u24 v%d, 80, v%d', t2, t1)
        A('v_sub_u32 v%d, v%d, v%d', t0, t0, t2)
        A('v_add_u32 v%d, s%d, v%d', t1, sA, t1)
        A('v_and_b32 v%d, 7, v%d', t2, t1)
        A('v_lshlrev_b32 v%d, 1, v%d', t2, t2)
        A('v_xor_b32 v%d, v%d, v%d', t0, t0, t2)
        A('v_mul_u32_u24 v%d, 1280, v%d', t1, t1)
        A('v_lshl_add_u32 v%d, v%d, 4, v%d', vo + i, t0, t1)
    A('s_mul_i32 s%d, s%d, 5120', sLW5, sW)
    state = {}

    def late_setup():
        u0, u1 = 14, 15
        A('v_lshrrev_b32 v%d, 2, v%d', u0, lane)
        A('v_mul_u32_u24 v%d, 1280, v%d', t3, u0)
        A('v_and_b32 v%d, 1, v%d', u1, lane)
        A('v_lshl_add_u32 v%d, v%d, 3, v%d', t3, u1, t3)
        A('v_and_b32 v%d, 7, v%d', u0, u0)
        A('v_lshlrev_b32 v%d, 1, v%d', u0, u0)
        A('v_bfe_u32 v%d, v%d, 1, 1', u1, lane)
        A('s_mul_i32 s%d, s%d, 20', sA, sW)
        A('v_add_u32 v%d, s%d, v%d', u1, sA, u1)
        for T in range(10):
            A('v_add_u32 v%d, %d, v%d', t2, 2 * T, u1)
            A('v_xor_b32 v%d, v%d, v%d', t2, t2, u0)
            A('v_lshl_add_u32 v%d, v%d, 4, v%d', va + T, t2, t3)

    def mk(st):
        def issue(base):
            A('s_add_u32 s%d, s%d, %d', sA, sbase, st * 20480)
            for i in range(5):
                A('s_add_u32 m0, s%d, %d', sLW5, base + i * 1024)
                A('buffer_load_dwordx4 v%d, %s, s%d offen%s lds', vo + i, srdname, sA, NT[0])

        def consume(w, base):
            if st == 0:
                late_setup()
                state['cur'] = 0
            hi = (base // 49152) * 49152
            if hi != state['cur']:
                for T in range(10):
                    A('v_add_u32 v%d, %d, v%d', va + T, hi - state['cur'], va + T)
                state['cur'] = hi
            for T in range(10):
                A('ds_read_b64_tr_b16 %s, v%d offset:%d', dest(st, T), va + T, base - hi)
        return (issue, consume, 5)
    return [mk(st) for st in range(12)]


def per_wave(body):
    done = A.newlabel('Lpw')
    labs = [A.newlabel('Lpw') for _ in range(4)]
    for w in range(1, 4):
        A('s_cmp_eq_u32 s%d, %d', sW, w)
        A('s_cbranch_scc1 %s', labs[w])
    for w in range(4):
        A.label(labs[w])
        body(w)
        if w < 3:
            A('s_branch %s', done)
    A.label(done)


def run_stages(stages, first_hook=None, wsel=False):
    n = len(stages)

    def body(w):
        for st in range(n):
            out = sum(stages[k][2] for k in range(st + 1, min(n, st + NSLOT)))
            A('s_waitcnt vmcnt(%d)', out)
            A('s_barrier')
            if st == 0:
                stamp(7)
            if st == 9:
                stamp(8)
            stages[st][1](w, (st % NSLOT) * SLOT)
            A('s_waitcnt lgkmcnt(0)')
            if st + NSLOT < n:
                A('s_barrier')
                stages[st + NSLOT][0]((st % NSLOT) * SLOT)
    for st in range(min(NSLOT, n)):
        stages[st][0](st * SLOT)
        if st == 1 and first_hook:
            A('s_waitcnt vmcnt(%d)', stages[0][2] + stages[1][2])
            A('s_barrier')
            first_hook()
    if wsel:
        per_wave(body)
    else:
        body(0)


def entry():
    A('s_cmp_ge_u32 s2, 256')
    A('s_cbranch_scc1 L_end')
    A('s_load_dwordx16 s[40:55], s[0:1], 0')
    A('s_load_dwordx8 s[56:63], s[0:1], 64')
    A('s_load_dwordx2 s[64:65], s[0:1], 96')
    A('v_lshrrev_b32 v2, 6, v0')
    A('v_and_b32 v1, 63, v0')
    A('v_readfirstlane_b32 s%d, v2', sW)
    A('s_mov_b32 s%d, %d', sBUD, BUDGET)
    A('s_getreg_b32 s%d, hwreg(HW_REG_XCC_ID)', sC)
    A('s_and_b32 s%d, s%d, 15', sC, sC)
    A('s_waitcnt lgkmcnt(0)')
    srd(8, pWS, WS_BYTES)
    srd(12, pX, 2048 * 640 * 2)
    srd(16, pWQ, 640 * 6144 * 2)
    srd(20, pWK, 640 * 6144 * 2)
    srd(24, pOUT, 2048 * 640 * 2)
    srd(28, pDBG, 256)
    srd(32, pMEM0, 8 * 640 * 2)
    stamp(0)
    if OPT.get('lt') or OPT.get('dl'):
        A('s_memrealtime s[98:99]')
    A('s_cmp_lg_u32 s%d, 0', sW)
    A('s_cbranch_scc1 L_tk_done')
    A('s_mov_b64 exec, 1')
    A('s_and_b32 s%d, s%d, 7', sG, sC)
    A('s_mov_b32 s%d, 8', sB)
    A.label('L_tk_try')
    A('s_lshl_b32 s%d, s%d, 5', sA, sG)
    A('v_mov_b32 v2, 1')
    A('v_mov_b32 v3, s%d', sA)
    A('buffer_atomic_add v2, v3, %s, 0 offen sc0', DBG)
    A('s_waitcnt vmcnt(0)')
    A('v_readfirstlane_b32 s%d, v2', sT)
    A('s_cmp_lt_u32 s%d, 32', sT)
    A('s_cbranch_scc1 L_tk_got')
    A('s_sub_u32 s%d, s%d, 1', sB, sB)
    A('s_mov_b32 s%d, s%d', sG, sB)
    A('s_cbranch_scc0 L_tk_try')
    A('s_mov_b32 s%d, 8', sG)
    A('s_mov_b32 s%d, 0', sT)
    A.label('L_tk_got')
    A('s_lshl_b32 s%d, s%d, 5', sA, sG)
    A('s_add_u32 s%d, s%d, s%d', sA, sA, sT)
    A('v_mov_b32 v2, s%d', sA)
    A('v_mov_b32 v3, 0')
    A('ds_write_b32 v3, v2')
    A('s_waitcnt lgkmcnt(0)')
    A('s_mov_b64 exec, -1')
    A.label('L_tk_done')
    A('s_barrier')
    A('v_mov_b32 v3, 0')
    A('ds_read_b32 v2, v3')
    A('s_waitcnt lgkmcnt(0)')
    A('v_readfirstlane_b32 s%d, v2', sA)
    A('s_barrier')
    A('s_lshr_b32 s%d, s%d, 5', sG, sA)
    A('s_and_b32 s%d, s%d, 31', sT, sA)
    stamp(4)
    if OPT.get('cw', 1):
        A('s_getpc_b64 s[72:73]')
        A.label('L_pc')
        A('s_and_b32 s73, s73, 0xffff')
        A('s_mov_b32 s74, L_end - L_pc')
        A('s_mov_b32 s75, 0x20000')
        A('s_lshl_b32 s%d, s%d, 2', sA, sT)
        A('s_add_u32 s%d, s%d, s%d', sA, sA, sW)
        A('s_lshl_b32 s%d, s%d, 13', sA, sA)
        A('v_lshl_add_u32 v2, v1, 7, s%d', sA)
        A('buffer_load_dword v255, v2, s[72:75], 0 offen')
    A('s_mov_b32 s%d, 0', sMODE)
    A('s_cmp_ge_u32 s%d, 8', sG)
    A('s_cbranch_scc1 L_end')
    A('s_cmp_ge_u32 s%d, 4', sG)
    A('s_cbranch_scc1 L_notR')
    A('s_cmp_ge_u32 s%d, 26', sT)
    A('s_cbranch_scc1 L_SP')
    A('s_cmp_lg_u32 s%d, s%d', sG, sC)
    A('s_cselect_b32 s%d, 1, %d', sMODE, OPT['force_slow'])
    A('s_cmp_ge_u32 s%d, 16', sT)
    A('s_cbranch_scc1 L_C')
    A('s_and_b32 s%d, s%d, 7', sIDX, sT)
    A('s_lshl_b32 s%d, s%d, 3', sHEAD, sG)
    A('s_add_u32 s%d, s%d, s%d', sHEAD, sHEAD, sIDX)
    A('s_cmp_lt_u32 s%d, 8', sT)
    A('s_cbranch_scc1 L_RQ')
    A('s_branch L_RV')
    A.label('L_notR')
    A('s_sub_u32 s%d, s%d, 4', sG, sG)
    A('s_mov_b32 s%d, 0', sPH)
    A('s_lshl_b32 s%d, s%d, 3', sA, sG)
    A('s_and_b32 s%d, s%d, 7', sB, sT)
    A('s_add_u32 s%d, s%d, s%d', sA, sA, sB)
    A('s_add_u32 s%d, s%d, 64', sIDX, sA)
    A('s_cmp_lt_u32 s%d, 8', sT)
    A('s_cbranch_scc1 L_P1')
    A('s_mov_b32 s%d, s%d', sIDX, sA)
    A('s_cmp_lt_u32 s%d, 16', sT)
    A('s_cbranch_scc1 L_P2')
    A('s_cmp_lt_u32 s%d, 24', sT)
    A('s_cselect_b32 s%d, 32, 0', sB)
    A('s_add_u32 s%d, s%d, s%d', sIDX, sA, sB)
    A('s_branch L_P1')


def r_finish(vt):
    L = A.newlabel('Lrf')
    A('s_waitcnt vmcnt(0)')
    A('s_barrier')
    A('s_cmp_lg_u32 s%d, 0', sW)
    A('s_cbranch_scc1 %s', L)
    A('s_mov_b64 exec, 1')
    A('v_mov_b32 v%d, 1', vt)
    A('v_mov_b32 v%d, %d', vt + 1, D_FIN)
    A('buffer_atomic_add v%d, v%d, %s, 0 offen sc0', vt, vt + 1, DBG)
    A('s_waitcnt vmcnt(0)')
    A('v_readfirstlane_b32 s%d, v%d', sA, vt)
    A('s_mov_b64 exec, -1')
    A('s_cmp_lg_u32 s%d, 39', sA)
    A('s_cbranch_scc1 %s', L)
    A('s_mov_b64 exec, 1')
    A('v_mov_b32 v%d, 64', vt)
    A('v_mov_b32 v%d, %d', vt + 1, D_PROG)
    A('buffer_atomic_umax v%d, v%d, %s, 0 offen', vt, vt + 1, DBG)
    A('s_mov_b64 exec, -1')
    A.label(L)


def role_off(name):
    if OPT['roles'] == 'all' or name in OPT['roles'].split(','):
        return False
    arrive_init(2)
    A('s_endpgm')
    return True


def finish_role(slot_reg_expr=None):
    L = A.newlabel('Lfin')
    A('s_waitcnt vmcnt(0)')
    if slot_reg_expr == 5:
        dl_stamp(7, 2)
        dl_stamp(2, 2, True)
    if slot_reg_expr == 4:
        dl_stamp(6, 2)
        dl_stamp(1, 2, True)
    A('s_cmp_lg_u32 s%d, 0', sBUD)
    A('s_cbranch_scc1 %s', L)
    A('s_mov_b64 exec, 1')
    A('v_mov_b32 v2, 1')
    A('v_mov_b32 v3, %d', D_FAIL)
    A('buffer_atomic_add v2, v3, %s, 0 offen', DBG)
    A('s_mov_b64 exec, -1')
    A.label(L)
    if OPT['stamp']:
        A('s_memrealtime s[98:99]')
        A('s_waitcnt lgkmcnt(0)')
        A('s_mov_b64 exec, 1')
        A('s_lshl_b32 s%d, s2, 2', sA)
        A('s_add_u32 s%d, s%d, s%d', sA, sA, sW)
        A('s_mul_i32 s%d, s%d, 48', sA, sA)
        A('s_add_u32 s%d, s%d, %d', sA, sA, STAMP)
        A('v_mov_b32 v3, 0')
        for i in range(10):
            A('v_mov_b32 v2, s%d', 80 + 2 * i)
            A('buffer_store_dword v2, v3, %s, s%d offen offset:%d', WS, sA, 4 * i)
        A('s_lshl_b32 s%d, s%d, 8', sB, sG)
        A('s_add_u32 s%d, s%d, s%d', sB, sB, sT)
        A('s_add_u32 s%d, s%d, %d', sB, sB, slot_reg_expr << 16)
        A('v_mov_b32 v2, s%d', sB)
        A('buffer_store_dword v2, v3, %s, s%d offen offset:40', WS, sA)
    A('s_endpgm')


def role_p1():
    NT[0] = ' nt' if OPT.get('nt', 2) & 1 else ''
    A.label('L_P1')
    if role_off('P1'):
        return
    sRS, sCOL, sOUTB, sFLAG, sXN, sLB = s0_, s1_, s2_, s3_, s4_, s5_
    sS0, sOST, sXST = 78, 79, 53
    lane = 1
    A('s_lshr_b32 s%d, s%d, 5', sA, sIDX)
    A('s_and_b32 s%d, s%d, 31', sHEAD, sIDX)
    A('s_mov_b32 s%d, 12288', sRS)
    A('s_mov_b32 s%d, 0x80008000', s6_)
    A('s_cmp_eq_u32 s%d, 1', sA)
    A('s_cselect_b32 s16, s%d, s%d', pWK, pWQ)
    A('s_cselect_b32 s17, s%d, s%d', pWK + 1, pWQ + 1)
    A('s_cmp_eq_u32 s%d, 2', sA)
    A('s_cselect_b32 s16, s%d, s16', pWV)
    A('s_cselect_b32 s17, s%d, s17', pWV + 1)
    A('s_lshr_b32 s%d, s%d, 3', sB, sHEAD)
    A('s_and_b32 s%d, s%d, 7', sC, sHEAD)
    A('s_cmp_eq_u32 s%d, 3', sA)
    A('s_cselect_b32 s16, s%d, s16', pW1)
    A('s_cselect_b32 s17, s%d, s17', pW1 + 1)
    A('s_cselect_b32 s18, 0x%x, s18', 640 * 1536 * 2)
    A('s_cselect_b32 s%d, 3072, s%d', sRS, sRS)
    A('s_cselect_b32 s%d, 0, s%d', s6_, s6_)
    A('s_cselect_b32 s%d, s%d, s%d', sHEAD, sC, sHEAD)
    A('s_cselect_b32 s%d, s%d, 0', sS0, sB)
    A('s_cselect_b32 s%d, 4, 1', sSTRD)
    A('s_cselect_b32 s%d, 16, 64', sNSEG)
    A('s_and_b32 s17, s17, 0xffff')
    A('s_mul_i32 s%d, s%d, 384', sCOL, sHEAD)
    assert KX - QX == 32 * 64 * 12288 and VX - KX == 32 * 64 * 12288
    A('s_lshl_b32 s%d, s%d, 5', sA, sA)
    A('s_add_u32 s%d, s%d, s%d', sA, sA, sHEAD)
    A('s_lshl_b32 s%d, s%d, 6', sA, sA)
    A('s_add_u32 s%d, s%d, s%d', sA, sA, sS0)
    A('s_mul_i32 s%d, s%d, 12288', sOUTB, sA)
    A('s_mul_i32 s%d, s%d, 3072', sA, sW)
    A('s_add_u32 s%d, s%d, s%d', sOUTB, sOUTB, sA)
    A('s_add_u32 s%d, s%d, %d', sOUTB, sOUTB, QX)
    A('s_mul_i32 s%d, s%d, 12288', sOST, sSTRD)
    A('s_mul_i32 s%d, s%d, 40960', sXST, sSTRD)
    A('s_lshl_b32 s%d, s%d, 7', sFLAG, sIDX)
    A('s_lshl_b32 s%d, s%d, 2', sA, sW)
    A('s_add_u32 s%d, s%d, s%d', sFLAG, sFLAG, sA)
    A('s_add_u32 s%d, s%d, %d', sFLAG, sFLAG, FL_P1)
    A('s_cmp_lg_u32 s%d, 0', sPH)
    A('s_cbranch_scc1 L_P1_nz')
    zero_flag(2, sFLAG)
    A('s_cmp_ge_u32 s%d, 64', sIDX)
    A('s_cselect_b32 s%d, %d, 0', sA, FL_P2 - FL_P1 - 96 * 128)
    A('s_add_u32 s%d, s%d, s%d', sA, sA, sFLAG)
    A('s_add_u32 s%d, s%d, %d', sA, sA, 64 * 128)
    A('s_cmp_ge_u32 s%d, 32', sIDX)
    A('s_cselect_b32 s%d, s%d, s%d', sA, sA, sFLAG)
    zero_flag(2, sA)
    A.label('L_P1_nz')
    run_stages(stages_n192(WA, sRS, sCOL, lambda w, st, kkl, j, t: a_(((2 * st + kkl) * 3 + t) * 4 + 2 * j, 2), lane),
               first_hook=arrive_once)
    stamp(1)
    wait_init(2)
    stamp(2)
    vL16, vLA, vFLOOR, vZ, vCNT = 2, 3, 4, 5, 6
    acc = [8, 20]
    o0, o1, o2 = 32, 36, 40
    ring, NR = 44, 8
    A('v_lshlrev_b32 v%d, 4, v%d', vL16, lane)
    A('v_mov_b32 v%d, v%d', vLA, vL16)
    A('v_mov_b32 v%d, s%d', vFLOOR, s6_)
    A('v_mov_b32 v%d, 0', vZ)
    A('s_mul_i32 s%d, s%d, 10240', sLB, sW)
    A('s_mul_i32 s%d, s%d, 40960', sXN, sS0)
    A('s_add_u32 s%d, s%d, s%d', sXN, sXN, sLB)
    A('s_add_u32 s%d, s%d, %d', sXN, sXN, XN)
    A('s_mov_b32 s%d, 0', s7_)

    def dma_ops():
        ops = []
        for i in range(10):
            if i % 4 == 0:
                ops.append(['s_add_u32 s%d, s%d, s%d' % (sA, sLB, s7_),
                            's_add_u32 m0, s%d, %d' % (sA, i * 1024),
                            's_add_u32 s%d, s%d, %d' % (sB, sXN, i * 1024)])
            ops.append(['buffer_load_dwordx4 v%d, %s, s%d offen offset:%d lds' % (vL16, WS, sB, (i % 4) * 1024)])
        ops.append(['s_add_u32 s%d, s%d, s%d' % (sXN, sXN, sXST),
                    's_add_u32 s%d, s%d, 40960' % (s7_, s7_),
                    's_cmp_eq_u32 s%d, %d' % (s7_, 3 * 40960),
                    's_cselect_b32 s%d, 0, s%d' % (s7_, s7_)])
        return ops

    for _ in range(3):
        for op in dma_ops():
            for ln in op:
                A(ln)
    A('s_waitcnt vmcnt(10)')
    A('s_barrier')
    PRE = 6
    for f in range(PRE):
        A('ds_read_b128 %s, v%d offset:%d', v(ring + 4 * (f % NR), 4), vLA, f * 1024)
    A('s_mov_b32 s%d, 0', sSEG)
    A('s_mov_b32 s%d, 40960', s6_)

    def epi(tt):
        a0 = acc[tt]
        dst = o0 if tt == 0 else o1
        ops = []
        for i in range(4):
            ops.append(['v_cvt_pk_bf16_f32 v%d, v%d, v%d' % (dst + i, a0 + 2 * i, a0 + 2 * i + 1)])
        for i in range(2):
            ops.append(['v_cvt_pk_bf16_f32 v%d, v%d, v%d' % (o2 + 2 * tt + i, a0 + 8 + 2 * i, a0 + 9 + 2 * i)])
        for r in [dst + i for i in range(4)] + [o2 + 2 * tt, o2 + 2 * tt + 1]:
            ops.append(['v_pk_max_i16 v%d, v%d, v%d' % (r, r, vFLOOR)])
        return ops

    def st(k):
        return ['buffer_store_dwordx4 %s, v%d, %s, s%d offen offset:%d sc1' % (v((o0, o1, o2)[k], 4), vL16, WS, sOUTB, 1024 * k)]

    def flag_ops(n):
        return [['s_waitcnt vmcnt(%d)' % n, 'v_mov_b32 v%d, s%d' % (vCNT, sSEG)],
                ['s_mov_b64 exec, 1', 'buffer_store_dword v%d, v%d, %s, s%d offen sc1' % (vCNT, vZ, WS, sFLAG), 's_mov_b64 exec, -1']]

    def body(first):
        fill = {}

        def place(start, ops, step=1):
            k = start
            for op in ops:
                while k % 3 == 0 or k in fill:
                    k += 1
                fill[k] = op
                k += step
            return k
        adv = ['s_add_u32 s%d, s%d, s%d' % (sOUTB, sOUTB, sOST)]
        if not first:
            fill[1] = ['s_waitcnt vmcnt(1)', 's_barrier']
            fill[2] = st(0)
            k = place(4, epi(1) + [st(1), st(2) + adv])
            place(k, dma_ops(), step=2)
            place(OPT.get('p1f', 76), flag_ops(10))
        else:
            fill[110] = ['s_waitcnt vmcnt(0)']
        place(82, epi(0))
        for f in range(40):
            tt, kk = divmod(f, 20)
            A('s_waitcnt lgkmcnt(%d)', PRE - 1)
            for t in range(3):
                m = 3 * f + t
                d = v(acc[tt] + 4 * t, 4)
                A('v_mfma_f32_16x16x32_bf16 %s, %s, %s, %s', d, a_((kk * 3 + t) * 4, 4), v(ring + 4 * (f % NR), 4),
                  '0' if kk == 0 else d)
                if t == 0:
                    g = f + PRE
                    if g == 40:
                        A('v_add_u32 v%d, s%d, v%d', vLA, s6_, vL16)
                    A('ds_read_b128 %s, v%d offset:%d', v(ring + 4 * (g % NR), 4), vLA, (g % 40) * 1024)
                for ln in fill.get(m, []):
                    A(ln)
        assert max(fill) < 120
        A('s_add_u32 s%d, s%d, 40960', s6_, s6_)
        A('s_cmp_eq_u32 s%d, %d', s6_, 3 * 40960)
        A('s_cselect_b32 s%d, 0, s%d', s6_, s6_)
        A('s_add_u32 s%d, s%d, 1', sSEG, sSEG)

    body(True)
    stamp(3)
    A.label('L_P1_loop')
    body(False)
    A('s_cmp_lt_u32 s%d, s%d', sSEG, sNSEG)
    A('s_cbranch_scc1 L_P1_loop')
    for op in [st(0)] + epi(1) + [st(1), st(2)] + flag_ops(0):
        for ln in op:
            A(ln)
    A('s_sub_u32 s%d, s%d, 32', sA, sIDX)
    A('s_cmp_ge_u32 s%d, 64', sA)
    A('s_cbranch_scc1 L_P1_fin')
    A('s_waitcnt vmcnt(0) lgkmcnt(0)')
    A('s_barrier')
    A('s_mov_b32 s%d, 1', sPH)
    A('s_mov_b32 s%d, s%d', sIDX, sA)
    A('s_cmp_ge_u32 s%d, 32', sA)
    A('s_cbranch_scc1 L_P2')
    A('s_add_u32 s%d, s%d, 96', sIDX, sA)
    A('s_branch L_P1')
    A.label('L_P1_fin')
    finish_role(1)


def p2_frag(E):
    w, t = divmod(E, 3)
    return (w, t) if t < 2 else (4 + (w >> 1), w & 1)


def role_p2():
    A.label('L_P2')
    if role_off('P2'):
        return
    sBASE, sVIN, sOUTB, sFLAG, sSRC, sLB, sAV, sSLOT = s0_, s1_, s2_, s3_, s4_, s5_, s6_, s7_
    lane = 1
    sS0, sIST, sOST = 53, 54, 55
    A('s_bfe_u32 s%d, s%d, 0x20003', sB, sIDX)
    A('s_and_b32 s%d, s%d, 7', sC, sIDX)
    A('s_cmp_lt_u32 s%d, 32', sIDX)
    A('s_cselect_b32 s16, s%d, s%d', pWO, pW2)
    A('s_cselect_b32 s17, s%d, s%d', pWO + 1, pW2 + 1)
    A('s_cselect_b32 s18, s18, 0x%x', 640 * 1536 * 2)
    A('s_cselect_b32 s%d, s%d, s%d', sA, sIDX, sC)
    A('s_cselect_b32 s%d, 0, s%d', sS0, sB)
    A('s_cselect_b32 s%d, 1, 4', sSTRD)
    A('s_cselect_b32 s%d, 64, 16', sNSEG)
    A('s_cselect_b32 s%d, 0, 32', sHEAD)
    A('s_add_u32 s%d, s%d, s%d', sHEAD, sHEAD, sA)
    A('s_and_b32 s17, s17, 0xffff')
    A('s_mul_i32 s%d, s%d, %d', sBASE, sA, 192 * 1280)
    A('s_mul_i32 s%d, s%d, 12288', sIST, sSTRD)
    A('s_mul_i32 s%d, s%d, %d', sOST, sSTRD, 40 * 40960)
    A('s_lshl_b32 s%d, s%d, 7', sFLAG, sIDX)
    A('s_lshl_b32 s%d, s%d, 2', sA, sW)
    A('s_add_u32 s%d, s%d, s%d', sFLAG, sFLAG, sA)
    A('s_add_u32 s%d, s%d, %d', sSRC, sFLAG, FL_P1 + 64 * 128)
    A('s_add_u32 s%d, s%d, %d', sFLAG, sFLAG, FL_P2)
    A('s_cmp_lg_u32 s%d, 0', sPH)
    A('s_cbranch_scc1 L_P2_nz')
    zero_flag(2, sFLAG)
    A.label('L_P2_nz')

    def dest(E, T):
        kk, half = p2_frag(E)
        return a_((T * 6 + kk) * 4 + 2 * half, 2)
    run_stages(stages_k192(WA, sBASE, dest, lane), first_hook=arrive_once)
    stamp(1)
    wait_init(2)
    stamp(2)
    vL16, vLA, vZ, vCNT, vFL = 2, 3, 5, 6, 7
    acc = [8, 16]
    ob = [24, 28]
    vf = 32
    NS = 4
    A('v_lshlrev_b32 v%d, 4, v%d', vL16, lane)
    A('v_mov_b32 v%d, v%d', vLA, vL16)
    A('v_mov_b32 v%d, 0', vZ)
    A('s_mul_i32 s%d, s%d, 3072', sLB, sW)
    A('s_lshl_b32 s%d, s%d, 6', sA, sHEAD)
    A('s_add_u32 s%d, s%d, s%d', sA, sA, sS0)
    A('s_mul_i32 s%d, s%d, 12288', sVIN, sA)
    A('s_add_u32 s%d, s%d, s%d', sVIN, sVIN, sLB)
    A('s_add_u32 s%d, s%d, %d', sVIN, sVIN, VX)
    A('s_mul_i32 s%d, s%d, 40', sA, sS0)
    A('s_add_u32 s%d, s%d, s%d', sA, sA, sHEAD)
    A('s_mul_i32 s%d, s%d, 40960', sOUTB, sA)
    A('s_mul_i32 s%d, s%d, 10240', sA, sW)
    A('s_add_u32 s%d, s%d, s%d', sOUTB, sOUTB, sA)
    A('s_add_u32 s%d, s%d, %d', sOUTB, sOUTB, VO)
    A('s_mov_b32 s%d, 0', sAV)
    A('s_mov_b32 s%d, 0', sSLOT)
    sNEXT = 78
    sRD = 79
    A('s_mov_b32 s%d, 0', sNEXT)

    def need_avail():
        L, D = A.newlabel('Lp2w'), A.newlabel('Lp2d')
        A('s_sub_u32 s%d, s%d, 1', sA, sNSEG)
        A('s_min_u32 s%d, s%d, s%d', sA, sA, sNEXT)
        A('s_cmp_gt_u32 s%d, s%d', sAV, sA)
        A('s_cbranch_scc1 %s', D)
        A.label(L)
        A('buffer_load_dword v%d, v%d, %s, s%d offen sc1', vFL, vZ, WS, sSRC)
        A('s_waitcnt vmcnt(0)')
        A('v_readfirstlane_b32 s%d, v%d', sAV, vFL)
        A('s_cmp_gt_u32 s%d, s%d', sAV, sA)
        A('s_cbranch_scc1 %s', D)
        poll_tail(L, D, sleep=1)

    def dma():
        A('s_add_u32 m0, s%d, s%d', sLB, sSLOT)
        for i in range(3):
            A('buffer_load_dwordx4 v%d, %s, s%d offen offset:%d sc1%s lds', vL16, WS, sVIN, i * 1024, ntc(1))
        A('s_add_u32 s%d, s%d, s%d', sVIN, sVIN, sIST)
        A('s_add_u32 s%d, s%d, 12288', sSLOT, sSLOT)
        A('s_cmp_eq_u32 s%d, %d', sSLOT, NS * 12288)
        A('s_cselect_b32 s%d, 0, s%d', sSLOT, sSLOT)
        A('s_add_u32 s%d, s%d, 1', sNEXT, sNEXT)

    def rd(tt, kk):
        d = vf + (kk * 2 + tt) * 4
        if kk < 4:
            return ['ds_read_b128 %s, v%d offset:%d' % (v(d, 4), vLA, kk * 3072 + tt * 1024)]
        return ['ds_read_b64 %s, v%d offset:%d' % (v(d + 2 * h, 2), vLA, (2 * (kk - 4) + h) * 3072 + 2048 + tt * 8) for h in range(2)]

    need_avail(); dma()
    A('s_waitcnt vmcnt(0)')
    A('s_barrier')
    for kk in range(6):
        for tt in range(2):
            for ln in rd(tt, kk):
                A(ln)
    A('s_mov_b32 s%d, 12288', sRD)
    A('s_mov_b32 s%d, 0', sSEG)

    def epi(T):
        a0 = acc[T & 1]
        o = ob[T & 1]
        ops = [['v_cvt_pk_bf16_f32 v%d, v%d, v%d' % (o + i, a0 + 2 * i, a0 + 2 * i + 1)] for i in range(4)]
        st = []
        if T % 4 == 0:
            st.append('s_add_u32 s%d, s%d, %d' % (sC, sOUTB, T * 1024))
        st.append('buffer_store_dwordx4 %s, v%d, %s, s%d offen offset:%d sc1' % (v(o, 4), vL16, WS, sC, (T % 4) * 1024))
        if T == 9:
            st.append('s_add_u32 s%d, s%d, s%d' % (sOUTB, sOUTB, sOST))
        ops.append(st)
        return ops

    def flag_ops(n):
        return [['s_waitcnt vmcnt(%d)' % n, 'v_mov_b32 v%d, s%d' % (vCNT, sSEG)],
                ['s_mov_b64 exec, 1', 'buffer_store_dword v%d, v%d, %s, s%d offen sc1' % (vCNT, vZ, WS, sFLAG), 's_mov_b64 exec, -1']]

    def body(first, drain=False):
        if not drain:
            need_avail(); dma()
        A('s_waitcnt lgkmcnt(0)')
        for T in range(10):
            fill = {}
            if T > 0 or not first:
                for i, op in enumerate(epi((T - 1) % 10)):
                    fill[5 + i] = op
            if T == 5 and not first:
                f = flag_ops(4)
                fill[1], fill[2] = f
            if T == 8 and not drain:
                fill[10] = ['s_waitcnt vmcnt(8)', 's_barrier', 'v_add_u32 v%d, s%d, v%d' % (vLA, sRD, vL16)]
            for kk in range(6):
                for tt in range(2):
                    m = kk * 2 + tt
                    d = v(acc[T & 1] + 4 * tt, 4)
                    A('v_mfma_f32_16x16x32_bf16 %s, %s, %s, %s', d, v(vf + m * 4, 4), a_((T * 6 + kk) * 4, 4), '0' if kk == 0 else d)
                    if T == 9 and not drain:
                        for ln in rd(tt, kk):
                            A(ln)
                    for ln in fill.get(m, []):
                        A(ln)
        A('s_add_u32 s%d, s%d, 1', sSEG, sSEG)
        if drain:
            for op in epi(9) + flag_ops(0):
                for ln in op:
                    A(ln)
            need_avail(); dma()
            A('v_add_u32 v%d, s%d, v%d', vLA, sRD, vL16)
            A('s_waitcnt vmcnt(0)')
            A('s_barrier')
            for kk in range(6):
                for tt in range(2):
                    for ln in rd(tt, kk):
                        A(ln)
        A('s_add_u32 s%d, s%d, 12288', sRD, sRD)
        A('s_cmp_eq_u32 s%d, %d', sRD, NS * 12288)
        A('s_cselect_b32 s%d, 0, s%d', sRD, sRD)

    A.label('L_P2_drain')
    body(True, drain=True)
    stamp(3)
    A('s_cmp_lt_u32 s%d, %d', sSEG, OPT.get('ndr', 2))
    A('s_cbranch_scc1 L_P2_drain')
    body(True)
    A.label('L_P2_loop')
    body(False)
    A('s_cmp_lt_u32 s%d, s%d', sSEG, sNSEG)
    A('s_cbranch_scc1 L_P2_loop')
    for op in epi(9) + flag_ops(0):
        for ln in op:
            A(ln)
    A('s_cmp_lt_u32 s%d, 32', sIDX)
    A('s_cbranch_scc0 L_P2_fin')
    A('s_waitcnt vmcnt(0) lgkmcnt(0)')
    A('s_branch L_F_go')
    A.label('L_P2_fin')
    finish_role(2)


def allreduce8(x, t, op):
    A('%s_dpp v%d, v%d, v%d row_ror:8 row_mask:0xf bank_mask:0xf', op, x, x, x)
    A('v_mov_b32 v%d, v%d', t, x)
    A('v_permlane16_swap_b32 v%d, v%d', x, t)
    A('%s v%d, v%d, v%d', op, x, x, t)
    A('v_mov_b32 v%d, v%d', t, x)
    A('v_permlane32_swap_b32 v%d, v%d', x, t)
    A('%s v%d, v%d, v%d', op, x, x, t)


def layernorm():
    lane = 1
    vIN, vOUTA, t0, t1, vM, vS = 2, 3, 4, 5, 6, 7
    raw, f = 8, 48
    A('v_and_b32 v%d, 7, v%d', t0, lane)
    A('v_lshrrev_b32 v%d, 3, v%d', t1, lane)
    A('s_lshl_b32 s%d, s%d, 3', sA, sW)
    A('v_add_u32 v%d, s%d, v%d', vIN, sA, t0)
    A('v_mul_u32_u24 v%d, 1280, v%d', vIN, vIN)
    A('v_lshl_add_u32 v%d, v%d, 4, v%d', vIN, t1, vIN)
    A('s_and_b32 s%d, s%d, 1', sA, sW)
    A('s_lshl_b32 s%d, s%d, 7', sA, sA)
    A('s_lshr_b32 s%d, s%d, 1', sB, sW)
    A('s_mul_i32 s%d, s%d, 20480', sB, sB)
    A('s_add_u32 s%d, s%d, s%d', sA, sA, sB)
    A('v_lshlrev_b32 v%d, 8, v%d', vOUTA, t1)
    A('v_lshl_add_u32 v%d, v%d, 4, v%d', vOUTA, t0, vOUTA)
    A('v_add_u32 v%d, s%d, v%d', vOUTA, sA, vOUTA)
    A.label('L_ln_loop')
    A('s_mul_i32 s%d, s%d, 40960', sA, sSEG)
    for j in range(10):
        A('buffer_load_dwordx4 %s, v%d, %s, s%d offen offset:%d', v(raw + 4 * j, 4), vIN, XS, sA, 128 * j)
    A('v_mov_b32 v%d, 0', vM)
    A('v_mov_b32 v%d, 0', vS)
    for j in range(10):
        A('s_waitcnt vmcnt(%d)', 9 - j)
        for i in range(4):
            d = 4 * j + i
            A('v_lshlrev_b32 v%d, 16, v%d', f + 2 * d, raw + d)
            A('v_and_b32 v%d, 0xffff0000, v%d', f + 2 * d + 1, raw + d)
            A('v_add_f32 v%d, v%d, v%d', vM, vM, f + 2 * d)
            A('v_add_f32 v%d, v%d, v%d', vS, vS, f + 2 * d + 1)
    A('v_add_f32 v%d, v%d, v%d', vM, vM, vS)
    allreduce8(vM, t0, 'v_add_f32')
    A('v_mul_f32 v%d, 0x3acccccd, v%d', vM, vM)
    A('v_mov_b32 v%d, 0', vS)
    A('v_mov_b32 v%d, 0', t1)
    for e in range(0, 80, 2):
        A('v_sub_f32 v%d, v%d, v%d', raw, f + e, vM)
        A('v_sub_f32 v%d, v%d, v%d', raw + 1, f + e + 1, vM)
        A('v_fmac_f32 v%d, v%d, v%d', vS, raw, raw)
        A('v_fmac_f32 v%d, v%d, v%d', t1, raw + 1, raw + 1)
    A('v_add_f32 v%d, v%d, v%d', vS, vS, t1)
    allreduce8(vS, t0, 'v_add_f32')
    A('v_mul_f32 v%d, 0x3acccccd, v%d', vS, vS)
    A('v_cvt_pk_bf16_f32 v%d, v%d, v%d', t0, vM, vS)
    A('v_lshlrev_b32 v%d, 16, v%d', vM, t0)
    A('v_and_b32 v%d, 0xffff0000, v%d', vS, t0)
    A('v_add_f32 v%d, 0x3727c5ac, v%d', vS, vS)
    A('v_cvt_pk_bf16_f32 v%d, v%d, v%d', vS, vS, vS)
    A('v_and_b32 v%d, 0xffff0000, v%d', vS, vS)
    A('v_sqrt_f32 v%d, v%d', vS, vS)
    A('v_cvt_pk_bf16_f32 v%d, v%d, v%d', vS, vS, vS)
    A('v_and_b32 v%d, 0xffff0000, v%d', vS, vS)
    A('v_rcp_f32 v%d, v%d', vS, vS)
    A('s_add_u32 s%d, s%d, %d', sA, sA, XN)
    for j in range(10):
        for i in range(4):
            d = 4 * j + i
            A('v_sub_f32 v%d, v%d, v%d', f + 2 * d, f + 2 * d, vM)
            A('v_sub_f32 v%d, v%d, v%d', f + 2 * d + 1, f + 2 * d + 1, vM)
            A('v_cvt_pk_bf16_f32 v%d, v%d, v%d', t0, f + 2 * d, f + 2 * d + 1)
            A('v_lshlrev_b32 v%d, 16, v%d', t1, t0)
            A('v_and_b32 v%d, 0xffff0000, v%d', t0, t0)
            A('v_mul_f32 v%d, v%d, v%d', t1, t1, vS)
            A('v_mul_f32 v%d, v%d, v%d', t0, t0, vS)
            A('v_cvt_pk_bf16_f32 v%d, v%d, v%d', raw + d, t1, t0)
        A('buffer_store_dwordx4 %s, v%d, %s, s%d offen offset:%d sc1', v(raw + 4 * j, 4), vOUTA, WS, sA, 2048 * (j & 1))
        if j & 1:
            A('s_add_u32 s%d, s%d, 4096', sA, sA)


import roles_r


def main():
    g = globals()
    entry()
    role_p1()
    role_p2()
    NT[0] = ' nt' if OPT.get('nt', 2) & 2 else ''
    roles_r.emit(g)
    A.label('L_end')
    A('s_endpgm')
    body = A.finish()
    ref = open('cdna_kernels/%s.s.ref' % NAME).read().split('\n')
    head = [ln for ln in ref if ln.startswith(';') and '@launch' not in ln and 'Override' not in ln and 'grid=ceil' not in ln]
    txt = '\n'.join(head) + '\n; @launch grid=(256,1,1) block=(256,1,1) lds=163840\n'
    txt += '; generated by dev/gen.py (hand-written generator)\n'
    txt += '.amdgcn_target "amdgcn-amd-amdhsa--gfx950"\n.text\n.globl %s_kernel\n.p2align 8\n.type %s_kernel,@function\n%s_kernel:\n' % (NAME, NAME, NAME)
    txt += body
    txt += '''.section .rodata,"a"
.p2align 6
.amdhsa_kernel %s_kernel
  .amdhsa_next_free_vgpr 512
  .amdhsa_next_free_sgpr 102
  .amdhsa_accum_offset 256
  .amdhsa_group_segment_fixed_size 0
  .amdhsa_float_denorm_mode_32 3
  .amdhsa_kernarg_size 104
  .amdhsa_user_sgpr_count 2
  .amdhsa_user_sgpr_kernarg_segment_ptr 1
  .amdhsa_system_sgpr_workgroup_id_x 1
.end_amdhsa_kernel
''' % NAME
    open(sys.argv[1], 'w').write(txt)
    print('wrote', sys.argv[1], len(txt), 'bytes;', A.n_nops, 'hazard nops')


if __name__ == '__main__':
    main()
```
